```python
import torch

def _softmax(x, axis=-1):
    return torch.softmax(x, dim=axis)
def _gelu(x):
    return torch.nn.functional.gelu(x, approximate="tanh")
def _silu(x):
    return torch.nn.functional.silu(x)
def _sigmoid(x):
    return torch.sigmoid(x)
def _layernorm(x, axis=-1, eps=1e-5):
    m = x.mean(dim=axis, keepdim=True)
    v = x.var(dim=axis, keepdim=True, unbiased=False)
    return (x - m) / torch.sqrt(v + eps)
def _scatter_add(tgt, idx, src, axis=0):
    return tgt.clone().index_add_(axis, idx, src)
def _segment_sum(src, seg, n):
    out = torch.zeros((n,) + src.shape[1:], dtype=src.dtype)
    return out.index_add_(0, seg, src)
def _pad(x, pw):
    flat = tuple(v for pair in reversed(pw) for v in pair)
    return torch.nn.functional.pad(x, flat)

kernel_name = 'standalone__edge_featured_mpnn_egc__graph'

def setup_inputs():

    _w = (lambda a: (lambda t: t.to(torch.bfloat16) if t.is_floating_point() else t)(torch.as_tensor(a)))
    N, deg, D, De = 10000, 16, 128, max(16, 1)
    E = N * deg
    return {
        "x": _w((lambda *s: torch.randn(*s, dtype=torch.bfloat16) * 0.1)(N, D)),
        "e_attr": _w((lambda *s: torch.randn(*s, dtype=torch.bfloat16) * 0.1)(E, De)),
        "src": _w((lambda lo, hi, *s: torch.randint(lo, hi, s))(0, N, E).to(torch.int64)),
        "dst": _w((lambda lo, hi, *s: torch.randint(lo, hi, s))(0, N, E).to(torch.int64)),
        "u_w": _w((lambda *s: torch.randn(*s, dtype=torch.bfloat16) * 0.05)(D, D)),
        "v_w": _w((lambda *s: torch.randn(*s, dtype=torch.bfloat16) * 0.05)(D, D)),
        "g_w": _w((lambda *s: torch.randn(*s, dtype=torch.bfloat16) * 0.1)(2 * D + De, D)),
    }

def reference(x, e_attr, src, dst, u_w, v_w, g_w):
    N, D = x.shape
    g_in = torch.concatenate([x[dst], x[src], e_attr], axis=-1)
    eta = _sigmoid(g_in @ g_w)
    hv = x @ v_w
    msg = eta * hv[src]
    agg = _segment_sum(msg, dst, N)
    return _silu(x @ u_w + agg)
```

```python
import re
TRANS = ('v_exp_f32','v_log_f32','v_rcp_f32','v_rsq_f32','v_sqrt_f32','v_sin_f32','v_cos_f32')
def regs_of(tok):
    tok = tok.strip()
    tok = re.sub(r'^-', '', tok)
    m = re.match(r'^abs\((.*)\)$', tok) or re.match(r'^\|(.*)\|$', tok) or re.match(r'^sext\((.*)\)$', tok)
    if m: tok = m.group(1)
    m = re.match(r'^([vs])(\d+)$', tok)
    if m: return [(m.group(1), int(m.group(2)))]
    m = re.match(r'^([vs])\[(\d+):(\d+)\]$', tok)
    if m: return [(m.group(1), i) for i in range(int(m.group(2)), int(m.group(3))+1)]
    if tok in ('vcc','vcc_lo','vcc_hi'): return [('vcc',0)]
    if tok in ('exec','exec_lo','exec_hi'): return [('exec',0)]
    return []
def split_ops(s):
    out=[];d=0;cur=''
    for ch in s:
        if ch in '[(': d+=1
        if ch in '])': d-=1
        if ch==',' and d==0: out.append(cur.strip());cur=''
        else: cur+=ch
    if cur.strip(): out.append(cur.strip())
    return out
class Asm:
    def __init__(s):
        s.lines=[]; s.pos=0
        s.w={}
        s.mc={}
        s.st={}
        s.maxv=0; s.maxs=0; s.nnop=0
    def raw(s,t): s.lines.append(t)
    def label(s,l): s.lines.append(l+':')
    def comment(s,t): s.lines.append('    ; '+t)
    def nop(s,n):
        while n>0:
            k=min(n,16); s.lines.append('    s_nop %d'%(k-1)); s.pos+=k; n-=k; s.nnop+=1
    def settle(s):
        need=0
        for r,(p,k) in s.w.items():
            req={'valu':2,'trans':2,'sdwa':2,'mfma4':8,'mfma8':12,'valus':5}[k]
            need=max(need,req-(s.pos-p-1))
        for r,(p,k) in s.mc.items(): need=max(need,(3 if k==4 else 7)-(s.pos-p-1))
        for r,p in s.st.items(): need=max(need,2-(s.pos-p-1))
        if need>0: s.nop(need)
    def __call__(s, text):
        text=text.strip()
        code=text.split(';')[0].strip()
        m=re.match(r'^(\S+)\s*(.*)$',code); op=m.group(1); rest=m.group(2)
        toks=split_ops(rest)
        if toks:
            last=toks[-1].split()
            toks[-1]=last[0] if last else ''
        isv=op.startswith('v_'); ismf=op.startswith('v_mfma')
        isvm=op.startswith(('buffer_','global_')); isds=op.startswith('ds_')
        dst=[];src=[]
        if isv:
            nd=1
            if op.startswith(('v_add_co','v_sub_co','v_addc_co','v_subb_co','v_mad_u64')): nd=2
            for t in toks[:nd]: dst+=regs_of(t)
            for t in toks[nd:]: src+=regs_of(t)
            if op.startswith(('v_fmac','v_swap')): src+=dst
            if op.startswith('v_swap'): dst=dst+regs_of(toks[1])
            if op.startswith('v_cmpx'): dst.append(('exec',0))
        elif isvm:
            if ('load' in op and not re.search(r'\blds\b',rest)) or ('atomic' in op and 'sc0' in rest):
                dst+=regs_of(toks[0])
                for t in toks[1:]: src+=regs_of(t)
                if 'atomic' in op: src+=regs_of(toks[0])
            else:
                for t in toks: src+=regs_of(t)
        elif isds:
            if op.startswith(('ds_read','ds_bpermute','ds_permute','ds_swizzle')) or '_rtn' in op:
                dst+=regs_of(toks[0])
                for t in toks[1:]: src+=regs_of(t)
            else:
                for t in toks: src+=regs_of(t)
        else:
            for t in toks:
                for r in regs_of(t):
                    if r[0]=='s': s.maxs=max(s.maxs,r[1])
        for r in dst+src:
            if r[0]=='v': s.maxv=max(s.maxv,r[1])
            if r[0]=='s': s.maxs=max(s.maxs,r[1])
        need=0
        def req(p,n):
            nonlocal need
            need=max(need,n-(s.pos-p-1))
        if isv or isvm or isds:
            srcC=regs_of(toks[3]) if ismf else []
            for r in src:
                if r not in s.w: continue
                p,k=s.w[r]
                if r[0]=='v':
                    if k in('mfma4','mfma8'):
                        n={'mfma4':8,'mfma8':12}[k]
                        if ismf and r in srcC and r not in regs_of(toks[1])+regs_of(toks[2]):
                            n=0 if s.w[r][0]==s.w.get(srcC[0],(None,))[0] and s.w[r][0]==s.w.get(srcC[-1],(None,))[0] else {'mfma4':6,'mfma8':10}[k]
                        req(p,n)
                    else:
                        if ismf: req(p,2)
                        elif isv and k=='trans' and op.split('_e')[0] not in TRANS: req(p,1)
                        elif isv and k=='sdwa': req(p,1)
                        if isv and (op.startswith(('v_readlane','v_readfirstlane'))): req(p,1)
                        if isv and (op.startswith('v_permlane') or 'dpp' in text or 'row_' in text or 'quad_perm' in text): req(p,2)
                else:
                    if k=='valus':
                        if isvm: req(p,5)
                        elif isv:
                            if op.startswith(('v_readlane','v_writelane')): req(p,4)
                            else: req(p,2)
            if isv and op.startswith(('v_cndmask','v_addc','v_subb','v_div_fmas')) and ('vcc',0) in s.w and s.w[('vcc',0)][1]=='valus':
                req(s.w[('vcc',0)][0],2)
            if ('exec',0) in s.w and s.w[('exec',0)][1]=='valus':
                p=s.w[('exec',0)][0]
                if ismf or op.startswith(('v_readlane','v_readfirstlane','v_writelane','v_permlane')): req(p,4)
                if 'dpp' in text or 'row_' in text: req(p,5)
            for r in dst:
                if r[0]!='v': continue
                if r in s.w and s.w[r][1] in('mfma4','mfma8'):
                    p,k=s.w[r]
                    if not ismf: req(p,{'mfma4':8,'mfma8':12}[k])
                    elif r not in srcC: req(p,{'mfma4':8,'mfma8':12}[k])
                if r in s.mc and not ismf:
                    p,k=s.mc[r]; req(p,3 if k==4 else 7)
                if r in s.st: req(s.st[r],2)
        if need>0: s.nop(need)
        s.lines.append('    '+text)
        if isv:
            for r in dst:
                if r[0]=='v':
                    k='valu'
                    if ismf: k='mfma8' if '32x32' in op else 'mfma4'
                    elif op.split('_e')[0] in TRANS: k='trans'
                    elif 'sdwa' in op or 'op_sel' in text: k='sdwa'
                    s.w[r]=(s.pos,k)
                else: s.w[r]=(s.pos,'valus')
            if ismf:
                for r in regs_of(toks[3]): s.mc[r]=(s.pos,8 if '32x32' in op else 4)
        elif isvm or isds:
            for r in dst: s.w.pop(r,None)
            if isvm and 'store' in op and ('x4' in op or 'x3' in op):
                for r in (regs_of(toks[0]) if op.startswith('buffer') else regs_of(toks[1])): s.st[r]=s.pos
        else:
            if toks and op.startswith('s_') and not op.startswith(('s_cmp','s_cbranch','s_branch','s_waitcnt','s_barrier','s_nop','s_endpgm','s_setprio')):
                for r in regs_of(toks[0]): s.w.pop(r,None)
        if op=='s_nop': s.pos+=int(rest.split()[0])+1
        else: s.pos+=1
    def text(s): return '\n'.join(s.lines)+'\n'
```

```python
import sys, struct
from asmlib import Asm
NAME='standalone__edge_featured_mpnn_egc__graph'
N=10000;E=160000;NSB=625;CH=80;CE=2000;CAP=16
OFF_T=0;THALF=N*256
OFF_XA=2*THALF; OFF_XU=OFF_XA+NSB*4096; OFF_CT=OFF_XU+NSB*4096; OFF_META=OFF_CT+4096
META_SB=CH*CAP*4
WS_END=OFF_META+NSB*META_SB
def f2u(f): return struct.unpack('<I',struct.pack('<f',f))[0]
NLOG2E=f2u(-1.4426950408889634)
TINY=f2u(2.0**-80)
def srd(a,d,lo,hi,n):
    a(f's_mov_b32 s{d}, s{lo}'); a(f's_and_b32 s{d+1}, s{hi}, 0xffff'); a(f's_mov_b32 s{d+2}, {n}'); a(f's_mov_b32 s{d+3}, 0x20000')
def srd_off(a,d,lo,hi,off,n):
    a(f's_add_u32 s{d}, s{lo}, {off}'); a(f's_addc_u32 s{d+1}, s{hi}, 0'); a(f's_and_b32 s{d+1}, s{d+1}, 0xffff')
    a(f's_mov_b32 s{d+2}, {n}'); a(f's_mov_b32 s{d+3}, 0x20000')

def k1():
    a=Asm()
    a('s_load_dwordx16 s[4:19], s[0:1], 0')
    a('s_load_dwordx2 s[20:21], s[0:1], 72')
    a('s_cmp_gt_u32 s2, 240'); a('s_cbranch_scc1 K1_END')
    a('s_waitcnt lgkmcnt(0)')
    srd(a,24,20,21,WS_END)
    a('s_cmp_lt_u32 s2, 80'); a('s_cbranch_scc1 K1_SORT')
    a('s_cmp_eq_u32 s2, 240'); a('s_cbranch_scc1 K1_CT')
    a('s_sub_u32 s3, s2, 80')
    a('s_and_b32 s40, s3, 7'); a('s_lshr_b32 s41, s3, 5'); a('s_lshl_b32 s41, s41, 3'); a('s_add_u32 s40, s40, s41')
    a('s_lshr_b32 s41, s3, 3'); a('s_and_b32 s42, s41, 1')
    a('s_lshr_b32 s43, s41, 1'); a('s_and_b32 s43, s43, 1')
    a('s_cmp_eq_u32 s43, 0')
    a('s_cselect_b32 s44, 32768, 0')
    a('s_cselect_b32 s46, s14, s12'); a('s_cselect_b32 s47, s15, s13')
    srd_off(a,28,16,17,'s44',32768)
    srd(a,32,46,47,32768)
    srd(a,36,4,5,N*256)
    a('s_lshl_b32 s45, s42, 7')
    a('v_and_b32 v1, 7, v0'); a('v_lshrrev_b32 v2, 3, v0')
    a('v_lshlrev_b32 v3, 8, v2'); a('v_lshl_add_u32 v3, v1, 4, v3')
    a('v_add_u32 v4, 16384, v3')
    a('buffer_load_dwordx4 v[8:11], v3, s[28:31], s45 offen')
    a('buffer_load_dwordx4 v[12:15], v4, s[28:31], s45 offen')
    a('buffer_load_dwordx4 v[16:19], v3, s[32:35], s45 offen')
    a('buffer_load_dwordx4 v[20:23], v4, s[32:35], s45 offen')
    a('v_lshrrev_b32 v5, 6, v0'); a('v_readfirstlane_b32 s48, v5')
    a('v_and_b32 v6, 63, v0')
    a('v_and_b32 v7, 15, v6')
    a('v_lshrrev_b32 v5, 4, v6')
    a('s_lshl_b32 s49, s40, 4'); a('s_lshl_b32 s50, s48, 1'); a('s_add_u32 s49, s49, s50')
    a('s_lshl_b32 s50, s49, 12')
    a('s_add_u32 s51, s50, 4096')
    a('v_lshlrev_b32 v24, 8, v7'); a('v_lshl_add_u32 v24, v5, 4, v24')
    XA0=28
    for t in range(2):
        for s in range(4):
            r=XA0+16*t+4*s
            a(f'buffer_load_dwordx4 v[{r}:{r+3}], v24, s[36:39], s{50+t} offen offset:{64*s}')
    a('v_lshrrev_b32 v25, 4, v2'); a('v_mul_u32_u24 v25, 4736, v25')
    a('v_and_b32 v26, 15, v2'); a('v_mul_u32_u24 v26, 288, v26'); a('v_add_u32 v25, v25, v26')
    a('v_bfe_u32 v26, v2, 3, 1'); a('v_lshl_add_u32 v25, v26, 7, v25'); a('v_lshl_add_u32 v25, v1, 4, v25')
    a('v_lshrrev_b32 v26, 1, v5'); a('v_mul_u32_u24 v26, 4736, v26')
    a('v_and_b32 v27, 1, v5'); a('v_mul_u32_u24 v27, 2432, v27'); a('v_add_u32 v26, v26, v27')
    a('v_lshrrev_b32 v27, 2, v7'); a('v_mul_u32_u24 v27, 288, v27'); a('v_add_u32 v26, v26, v27')
    a('v_and_b32 v27, 3, v7'); a('v_lshl_add_u32 v26, v27, 3, v26')
    a('s_waitcnt vmcnt(11)'); a('ds_write_b128 v25, v[8:11]')
    a('s_waitcnt vmcnt(10)'); a(f'ds_write_b128 v25, v[12:15] offset:{4*4736}')
    a('s_waitcnt vmcnt(9)'); a('ds_write_b128 v25, v[16:19] offset:128')
    a('s_waitcnt vmcnt(8)'); a(f'ds_write_b128 v25, v[20:23] offset:{4*4736+128}')
    a('s_waitcnt lgkmcnt(0)'); a('s_barrier')
    BF=60; D0=188
    def bf(mm,b,s): return BF+((s*2+mm)*4+b)*4
    def dd(t,mm,b): return D0+t*32+(mm*4+b)*4
    for s in range(4):
        for mm in range(2):
            for b in range(4):
                for u in range(2):
                    r=bf(mm,b,s)+2*u
                    a(f'ds_read_b64_tr_b16 v[{r}:{r+1}], v26 offset:{s*9472+u*1152+mm*128+b*32}')
        if s>=1:
            pass
    a('s_waitcnt vmcnt(0) lgkmcnt(0)')
    for s in range(4):
        for t in range(2):
            for mm in range(2):
                for b in range(4):
                    d=dd(t,mm,b); x=XA0+16*t+4*s; w=bf(mm,b,s)
                    c='0' if s==0 else f'v[{d}:{d+3}]'
                    a(f'v_mfma_f32_16x16x32_bf16 v[{d}:{d+3}], v[{x}:{x+3}], v[{w}:{w+3}], {c}')
    a('s_cmp_eq_u32 s43, 1'); a('s_cbranch_scc1 K1_P1')
    a(f's_mov_b32 s52, {NLOG2E}'); a(f'v_mov_b32 v8, {TINY}')
    a('s_mov_b32 s53, 0x80008000'); a('s_mov_b32 s54, 0x07060100'); a('s_mov_b32 s55, 0x07060302')
    a(f's_mul_i32 s56, s42, {THALF}')
    srd_off(a,28,20,21,'s56',THALF)
    a('v_lshlrev_b32 v9, 10, v5'); a('v_lshl_add_u32 v9, v7, 4, v9')
    a.settle()
    for t in range(2):
        for i in range(4):
            o=12+((t*4+i)%2)*8
            for bp in range(2):
                h0=dd(t,1,2*bp)+i; h1=dd(t,1,2*bp+1)+i
                a(f'v_cvt_pk_bf16_f32 v{o+4+bp}, v{h0}, v{h1}')
                a(f'v_xor_b32 v{o+6+bp}, s53, v{o+4+bp}')
            for b in range(4):
                xb=dd(t,0,b)+i
                a(f'v_fma_f32 v{xb}, v{xb}, s52, v8')
            for b in range(4):
                xb=dd(t,0,b)+i
                a(f'v_sub_u32_sdwa v{xb}, v{xb}, sext(v{o+6+b//2}) dst_sel:DWORD dst_unused:UNUSED_PAD src0_sel:DWORD src1_sel:WORD_{b%2}')
            for b in range(4):
                xb=dd(t,0,b)+i
                a(f'v_perm_b32 v{o+b}, v{xb}, v{o+4+b//2}, s{54+b%2}')
            a(f'buffer_store_dwordx4 v[{o}:{o+3}], v9, s[28:31], s{50+t} offen offset:{256*i}')
    a('s_endpgm')
    a.label('K1_P1')
    a.settle()
    a('v_lshrrev_b32 v9, 1, v5'); a('v_lshlrev_b32 v9, 8, v9'); a('v_lshl_add_u32 v9, v7, 4, v9')
    a('v_and_b32 v10, 1, v5'); a('v_lshl_add_u32 v9, v10, 3, v9')
    a('v_lshlrev_b32 v10, 4, v6')
    a('s_lshl_b32 s56, s42, 11')
    a(f's_add_u32 s57, s56, {OFF_XA}'); srd_off(a,28,20,21,'s57',NSB*4096-2048)
    a(f's_add_u32 s57, s56, {OFF_XU}'); srd_off(a,32,20,21,'s57',NSB*4096-2048)
    for t in range(2):
        o=12+t*20
        for b in range(4):
            d=dd(t,0,b)
            a(f'v_cvt_pk_bf16_f32 v{o+2*b}, v{d}, v{d+1}'); a(f'v_cvt_pk_bf16_f32 v{o+2*b+1}, v{d+2}, v{d+3}')
            a(f'buffer_store_dwordx2 v[{o+2*b}:{o+2*b+1}], v9, s[28:31], s{50+t} offen offset:{512*b}')
        for b in range(4):
            d=dd(t,1,b)
            a(f'v_cvt_pk_bf16_f32 v{o+8+2*b}, v{d}, v{d+1}'); a(f'v_cvt_pk_bf16_f32 v{o+8+2*b+1}, v{d+2}, v{d+3}')
        a(f'buffer_store_dwordx4 v[{o+8}:{o+11}], v10, s[32:35], s{50+t} offen')
        a(f'buffer_store_dwordx4 v[{o+12}:{o+15}], v10, s[32:35], s{50+t} offen offset:1024')
    a('s_endpgm')
    a.label('K1_CT')
    a('v_cmp_gt_u32 vcc, 256, v0'); a('s_and_saveexec_b64 s[40:41], vcc'); a('s_cbranch_execz K1_END')
    srd(a,28,16,17,272*256)
    a('v_lshrrev_b32 v1, 5, v0'); a('v_lshlrev_b32 v1, 5, v1')
    a('v_and_b32 v2, 15, v0'); a('v_lshl_add_u32 v1, v2, 1, v1')
    a('v_bfe_u32 v2, v0, 4, 1'); a('v_lshl_add_u32 v1, v2, 11, v1'); a('v_add_u32 v1, 65536, v1')
    for j in range(8): a(f'buffer_load_ushort v{8+j}, v1, s[28:31], 0 offen offset:{256*j}')
    a('v_lshlrev_b32 v3, 4, v0'); a(f'v_add_u32 v3, {OFF_CT}, v3')
    a('s_waitcnt vmcnt(0)')
    for j in range(4): a(f'v_lshl_or_b32 v{16+j}, v{9+2*j}, 16, v{8+2*j}')
    a('buffer_store_dwordx4 v[16:19], v3, s[24:27], 0 offen')
    a('s_endpgm')
    a.label('K1_SORT')
    srd(a,28,10,11,E*4); srd(a,32,8,9,E*4)
    a(f's_mul_i32 s40, s2, {CE*4}')
    a('v_lshlrev_b32 v1, 4, v0')
    a('buffer_load_dwordx4 v[8:11], v1, s[28:31], s40 offen')
    a('buffer_load_dwordx4 v[12:15], v1, s[32:35], s40 offen')
    for j in range(4): a(f'v_mov_b32 v{16+j}, -1')
    a('v_mov_b32 v20, 0'); a('v_mov_b32 v21, 0'); a('v_lshlrev_b32 v2, 3, v0')
    for j in range(5): a(f'ds_write_b128 v1, v[16:19] offset:{8192*j}')
    a('ds_write_b64 v2, v[20:21] offset:40960')
    a('v_mov_b32 v3, 1'); a('v_lshlrev_b32 v4, 7, v0')
    a('s_waitcnt lgkmcnt(0)'); a('s_barrier')
    a(f'v_cmp_gt_u32 vcc, {CE//4}, v0'); a('s_and_saveexec_b64 s[42:43], vcc')
    a('s_waitcnt vmcnt(1)')
    for j in range(4):
        a(f'v_lshrrev_b32 v{24+j}, 4, v{8+j}'); a(f'v_lshlrev_b32 v{28+j}, 2, v{24+j}')
        a(f'ds_add_rtn_u32 v{32+j}, v{28+j}, v3 offset:40960')
    a('s_waitcnt vmcnt(0)')
    for j in range(4):
        a(f'v_and_b32 v{8+j}, 15, v{8+j}'); a(f'v_lshl_or_b32 v{8+j}, v{12+j}, 18, v{8+j}')
        a(f'v_add3_u32 v{8+j}, v{8+j}, v4, {32*j}' if 32*j<=64 else f'v_add_u32 v{8+j}, v{8+j}, v4')
        if 32*j>64: a(f'v_add_u32 v{8+j}, {32*j}, v{8+j}')
    for j in range(4):
        a(f's_waitcnt lgkmcnt({3-j+j})' if False else f's_waitcnt lgkmcnt({3})' if False else 's_waitcnt lgkmcnt(0)') if j==0 else None
        a(f'v_min_u32 v{32+j}, 15, v{32+j}'); a(f'v_lshlrev_b32 v{32+j}, 2, v{32+j}')
        a(f'v_lshl_add_u32 v{32+j}, v{24+j}, 6, v{32+j}')
        a(f'ds_write_b32 v{32+j}, v{8+j}')
    a('s_mov_b64 exec, s[42:43]')
    a('s_waitcnt lgkmcnt(0)'); a('s_barrier')
    a('v_lshrrev_b32 v5, 2, v0'); a('v_lshlrev_b32 v6, 2, v5')
    for j in range(5):
        a(f'ds_read_b128 v[{40+4*j}:{43+4*j}], v1 offset:{8192*j}')
        a(f'ds_read_b32 v{60+j}, v6 offset:{40960+512*j}')
    a(f'v_mul_u32_u24 v7, {META_SB}, v5'); a('v_and_b32 v22, 3, v0'); a('v_lshl_add_u32 v7, v22, 4, v7')
    a('v_cmp_eq_u32 vcc, 0, v22'); a('v_cndmask_b32 v23, -1, -2, vcc')
    a('v_mov_b32 v22, -1')
    a('s_lshl_b32 s44, s2, 6'); a(f's_add_u32 s44, s44, {OFF_META}')
    for j in range(5):
        a(f's_waitcnt lgkmcnt({8-2*j})')
        a(f'v_cmp_lt_u32 vcc, {CAP}, v{60+j}')
        a(f'v_cndmask_b32 v{40+4*j}, v{40+4*j}, v23, vcc')
        for i in range(1,4): a(f'v_cndmask_b32 v{40+4*j+i}, v{40+4*j+i}, v22, vcc')
        a(f'buffer_store_dwordx4 v[{40+4*j}:{43+4*j}], v7, s[24:27], s44 offen')
        a(f's_add_u32 s44, s44, {128*META_SB}')
    a.label('K1_END')
    a('s_endpgm')
    return a

LCAP=704; ARR=LCAP*4; IDOFF=3*ARR; WREG=9216
def k2():
    a=Asm()
    a('s_load_dwordx8 s[4:11], s[0:1], 0')
    a('s_load_dwordx2 s[18:19], s[0:1], 56')
    a('s_load_dwordx2 s[20:21], s[0:1], 72')
    a('s_lshr_b32 s40, s2, 3'); a('s_lshl_b32 s40, s40, 2'); a('s_and_b32 s41, s2, 3'); a('s_add_u32 s40, s40, s41')
    a('s_bfe_u32 s41, s2, 0x10002')
    a(f's_cmp_ge_u32 s40, {NSB}'); a('s_cbranch_scc1 K2_END')
    a('v_lshrrev_b32 v7, 6, v0'); a('v_readfirstlane_b32 s42, v7')
    a('v_and_b32 v160, 63, v0')
    L='v160'
    a(f's_mul_i32 s43, s40, {META_SB}'); a(f's_mul_i32 s44, s42, {META_SB//2}'); a('s_add_u32 s43, s43, s44'); a(f's_add_u32 s43, s43, {OFF_META}')
    a(f'v_lshlrev_b32 v1, 4, {L}'); a(f'v_lshlrev_b32 v2, 3, {L}')
    a('s_waitcnt lgkmcnt(0)')
    srd(a,24,20,21,WS_END)
    MR=116
    a(f'buffer_load_dwordx4 v[{MR}:{MR+3}], v1, s[24:27], s43 offen')
    a(f'buffer_load_dwordx4 v[{MR+4}:{MR+7}], v1, s[24:27], s43 offen offset:1024')
    a(f'buffer_load_dwordx2 v[{MR+8}:{MR+9}], v2, s[24:27], s43 offen offset:2048')
    a('s_lshl_b32 s44, s40, 12'); a('s_lshl_b32 s45, s41, 11'); a('s_add_u32 s44, s44, s45')
    a(f's_add_u32 s46, s44, {OFF_XA-512}'); a(f's_add_u32 s47, s45, {OFF_CT}')
    a('v_mov_b32 v3, s47'); a('v_mov_b32 v4, s46'); a(f'v_cmp_gt_u32 vcc, 32, {L}')
    a('v_cndmask_b32 v3, v4, v3, vcc'); a('v_add_u32 v3, v3, v1')
    BO=8; ACC=24; D=40; X=72; Y=116
    for b in range(4): a(f'buffer_load_dwordx4 v[{BO+4*b}:{BO+4*b+3}], v3, s[24:27], 0 offen offset:{512*b}')
    a(f's_add_u32 s46, s44, {OFF_XU}')
    a(f'buffer_load_dwordx4 v[{X}:{X+3}], v1, s[24:27], s46 offen')
    a(f'buffer_load_dwordx4 v[{X+4}:{X+7}], v1, s[24:27], s46 offen offset:1024')
    a(f's_mul_i32 s46, s41, {THALF}'); srd_off(a,28,20,21,'s46',THALF)
    srd(a,32,6,7,E*32)
    a(f's_mul_i32 s48, s42, {WREG}')
    for j in range(3):
        a(f'v_lshrrev_b32 v4, 3, {L}')
        if j: a(f'v_add_u32 v4, {8*j}, v4')
        a(f'v_and_b32 v5, 7, {L}'); a('v_lshlrev_b32 v5, 1, v5'); a('v_sub_u32 v4, v4, v5')
        a('v_mov_b32 v6, 0'); a('v_mov_b32 v5, 0x3f80'); a('v_cmp_eq_u32 vcc, 0, v4'); a('v_cndmask_b32 v6, v6, v5, vcc')
        a('v_mov_b32 v5, 0x3f800000'); a('v_cmp_eq_u32 vcc, 1, v4'); a('v_cndmask_b32 v6, v6, v5, vcc')
        a(f'v_lshl_add_u32 v5, {L}, 2, s48')
        a(f'ds_write_b32 v5, v6 offset:{IDOFF+256*j}')
    a(f'v_and_b32 v1, 15, {L}'); a(f'v_lshrrev_b32 v7, 4, {L}')
    a('v_lshl_add_u32 v161, v7, 4, s48')
    a(f'v_mov_b32 v3, {ARR}'); a(f'v_mov_b32 v4, {2*ARR}'); a(f'v_cmp_gt_u32 vcc, 32, {L}'); a('v_cndmask_b32 v3, v4, v3, vcc')
    a('v_lshl_add_u32 v3, v1, 2, v3'); a('v_add_u32 v162, s48, v3')
    a(f'v_lshrrev_b32 v4, 2, {L}'); a('v_lshl_add_u32 v4, v4, 2, s48'); a(f'v_add_u32 v163, {2*ARR}, v4')
    a('v_and_b32 v5, 1, v7'); a('v_lshlrev_b32 v5, 4, v5')
    a(f'v_and_b32 v6, 3, {L}'); a('v_lshlrev_b32 v6, 3, v6')
    a('v_lshlrev_b32 v1, 4, v1')
    a(f's_mul_i32 s49, s42, {40*CE*32}')
    a(f'v_lshrrev_b32 v{D}, 2, {L}'); a(f'v_mul_u32_u24 v{D}, {CE*32}, v{D}'); a(f'v_add_u32 v{D}, s49, v{D}')
    a(f'v_add_u32 v{D+1}, {16*CE*32}, v{D}')
    a(f'v_lshrrev_b32 v{D+2}, 3, {L}'); a(f'v_mul_u32_u24 v{D+2}, {CE*32}, v{D+2}'); a(f'v_add_u32 v{D+2}, s49, v{D+2}'); a(f'v_add_u32 v{D+2}, {32*CE*32}, v{D+2}')
    a(f's_add_u32 s50, s48, {IDOFF}')
    a('s_lshr_b32 s51, s48, 2')
    a('s_mov_b32 s52, -2'); a(f's_mov_b32 s53, {NLOG2E}'); a('s_mov_b32 s62, 4')
    def compact(w0,w1,w2,t):
        a(f'v_mbcnt_lo_u32_b32 v{t}, vcc_lo, 0'); a(f'v_mbcnt_hi_u32_b32 v{t}, vcc_hi, v{t}')
        a(f'v_add_lshl_u32 v{t}, v{t}, s51, 2')
        a('s_bcnt1_i32_b64 s54, vcc'); a('s_add_u32 s51, s51, s54')
        a('s_mov_b64 exec, vcc')
        a(f'ds_write_b32 v{t}, v{w0}'); a(f'ds_write_b32 v{t}, v{w1} offset:{ARR}'); a(f'ds_write_b32 v{t}, v{w2} offset:{2*ARR}')
        a('s_mov_b64 exec, -1')
    a('s_waitcnt vmcnt(6)')
    a(f'v_cmp_eq_u32 s[56:57], s52, v{MR}'); a(f'v_cmp_eq_u32 s[58:59], s52, v{MR+4}'); a(f'v_cmp_eq_u32 s[60:61], s52, v{MR+8}')
    for r in range(10):
        rec=MR+r; cb=D+r//4; t=D+4+(r%2)*4
        a(f'v_cmp_gt_u32 vcc, s52, v{rec}')
        a(f'v_lshrrev_b32 v{t}, 18, v{rec}'); a(f'v_lshlrev_b32 v{t}, 8, v{t}')
        a(f'v_and_b32 v{t+1}, 0xffe0, v{rec}'); a(f'v_add_u32 v{t+1}, v{t+1}, v{cb}')
        a(f'v_and_b32 v{t+2}, 15, v{rec}'); a(f'v_lshl_add_u32 v{t+2}, v{t+2}, 5, s50')
        compact(t,t+1,t+2,t+3)
    a('s_waitcnt vmcnt(0)')
    a('s_cmp_eq_u32 s42, 0'); a('s_cselect_b32 s54, -1, 0'); a('s_cselect_b32 s55, 0xffff0000, 0')
    for b in range(4):
        for p in range(2):
            x=X+2*b+p
            a(f'v_lshlrev_b32 v{ACC+4*b+2*p}, 16, v{x}'); a(f'v_and_b32 v{ACC+4*b+2*p}, s54, v{ACC+4*b+2*p}')
            a(f'v_and_b32 v{ACC+4*b+2*p+1}, s55, v{x}')
    a.label('K2_PROC')
    a(f'v_add_lshl_u32 v{D}, {L}, s51, 2'); a(f'v_mov_b32 v{D+1}, 0'); a(f's_add_u32 s54, s50, 512'); a(f'v_mov_b32 v{D+2}, s54')
    a(f'ds_write_b32 v{D}, v{D+1}'); a(f'ds_write_b32 v{D}, v{D+1} offset:{ARR}'); a(f'ds_write_b32 v{D}, v{D+2} offset:{2*ARR}')
    a('s_lshr_b32 s54, s48, 2'); a('s_sub_u32 s54, s51, s54'); a('s_add_u32 s54, s54, 31'); a('s_lshr_b32 s63, s54, 5')
    a('v_mov_b32 v2, v161'); a('v_mov_b32 v3, v162'); a('v_mov_b32 v4, v163')
    a('s_cmp_eq_u32 s63, 0'); a('s_cbranch_scc1 K2_NEXT')
    def issue(S):
        G=S; A=S+32; SS=S+40; W=D+16
        a(f'ds_read_b128 v[{W}:{W+3}], v2'); a(f'ds_read_b128 v[{W+4}:{W+7}], v2 offset:64')
        a(f'ds_read_b32 v{W+8}, v3'); a(f'ds_read_b32 v{W+9}, v3 offset:64')
        a(f'ds_read_b32 v{W+10}, v4'); a(f'ds_read_b32 v{W+11}, v4 offset:64')
        a('v_add_u32 v2, 128, v2'); a('v_add_u32 v3, 128, v3'); a('v_add_u32 v4, 128, v4')
        a('s_waitcnt lgkmcnt(4)')
        for i in range(8):
            a(f'v_add_u32 v{W+i}, v{W+i}, v1')
            a(f'buffer_load_dwordx4 v[{G+4*i}:{G+4*i+3}], v{W+i}, s[28:31], 0 offen')
        a('s_waitcnt lgkmcnt(0)')
        a(f'v_add_u32 v{W+8}, v{W+8}, v5'); a(f'v_add_u32 v{W+9}, v{W+9}, v5')
        a(f'v_add_u32 v{W+10}, v{W+10}, v6'); a(f'v_add_u32 v{W+11}, v{W+11}, v6')
        a('s_mov_b32 exec_hi, 0')
        a(f'buffer_load_dwordx4 v[{A}:{A+3}], v{W+8}, s[32:35], 0 offen'); a(f'buffer_load_dwordx4 v[{A+4}:{A+7}], v{W+9}, s[32:35], 0 offen')
        a('s_not_b64 exec, exec')
        a(f'ds_read_b128 v[{A}:{A+3}], v{W+8}'); a(f'ds_read_b128 v[{A+4}:{A+7}], v{W+9}')
        a('s_mov_b64 exec, -1')
        a(f'ds_read_b64_tr_b16 v[{SS}:{SS+1}], v{W+10}'); a(f'ds_read_b64_tr_b16 v[{SS+2}:{SS+3}], v{W+11}')
    def compute(S):
        G=S; A=S+32; SS=S+40
        for t in range(2):
            for b in range(4):
                d=D+16*t+4*b
                a(f'v_mfma_f32_16x16x32_bf16 v[{d}:{d+3}], v[{A+4*t}:{A+4*t+3}], v[{BO+4*b}:{BO+4*b+3}], 0')
        for t in range(2):
            el=[(D+16*t+4*b+i, G+16*t+4*i+b) for b in range(4) for i in range(4)]
            for d,g in el: a(f'v_fma_f32 v{d}, v{d}, s53, v{g}')
            for d,g in el: a(f'v_exp_f32 v{d}, v{d}')
            for d,g in el: a(f'v_add_f32 v{d}, 1.0, v{d}')
            for d,g in el: a(f'v_rcp_f32 v{d}, v{d}')
            for d,g in el: a(f'v_lshlrev_b32 v{g}, 16, v{g}')
            for d,g in el: a(f'v_mul_f32 v{d}, v{d}, v{g}')
            for b in range(4):
                d=D+16*t+4*b; m=D+4*b+2*t
                a(f'v_cvt_pk_bf16_f32 v{m}, v{d}, v{d+1}'); a(f'v_cvt_pk_bf16_f32 v{m+1}, v{d+2}, v{d+3}')
        for b in range(4):
            a(f'v_mfma_f32_16x16x32_bf16 v[{ACC+4*b}:{ACC+4*b+3}], v[{SS}:{SS+3}], v[{D+4*b}:{D+4*b+3}], v[{ACC+4*b}:{ACC+4*b+3}]')
    issue(X)
    a.label('K2_LOOP')
    for (cur,nxt,tag) in ((X,Y,'A'),(Y,X,'B')):
        a('s_cmp_lt_u32 s63, 2'); a(f's_cbranch_scc1 K2_LAST{tag}')
        issue(nxt)
        a('s_waitcnt vmcnt(10) lgkmcnt(0)')
        a(f's_branch K2_GO{tag}')
        a.label(f'K2_LAST{tag}')
        a('s_waitcnt vmcnt(0) lgkmcnt(0)')
        a.label(f'K2_GO{tag}')
        compute(cur)
        a('s_sub_u32 s63, s63, 1'); a('s_cmp_eq_u32 s63, 0')
        if tag=='A': a('s_cbranch_scc1 K2_NEXT')
        else: a('s_cbranch_scc0 K2_LOOP')
    a.label('K2_NEXT')
    a.settle()
    a('s_cmp_lt_u32 s62, 4'); a('s_cbranch_scc1 K2_SLOW')
    a('s_or_b64 s[64:65], s[56:57], s[58:59]'); a('s_or_b64 s[64:65], s[64:65], s[60:61]'); a('s_cbranch_scc0 K2_FINAL')
    a('s_mov_b32 s62, 0')
    a('s_cmp_eq_u64 s[56:57], 0'); a('s_cbranch_scc1 K2_O1')
    a('s_ff1_i32_b64 s64, s[56:57]'); a('s_bitset0_b64 s[56:57], s64'); a('s_lshr_b32 s66, s64, 2'); a('s_branch K2_O3')
    a.label('K2_O1')
    a('s_cmp_eq_u64 s[58:59], 0'); a('s_cbranch_scc1 K2_O2')
    a('s_ff1_i32_b64 s64, s[58:59]'); a('s_bitset0_b64 s[58:59], s64'); a('s_lshr_b32 s66, s64, 2'); a('s_add_u32 s66, s66, 16'); a('s_branch K2_O3')
    a.label('K2_O2')
    a('s_ff1_i32_b64 s64, s[60:61]'); a('s_bitset0_b64 s[60:61], s64'); a('s_lshr_b32 s66, s64, 3'); a('s_add_u32 s66, s66, 32')
    a.label('K2_O3')
    a('s_mul_i32 s64, s42, 40'); a('s_add_u32 s66, s66, s64'); a(f's_mul_i32 s66, s66, {CE}')
    a.label('K2_SLOW')
    srd(a,68,10,11,E*4); srd(a,72,8,9,E*4)
    a('s_mul_i32 s64, s62, 500'); a('s_add_u32 s64, s64, s66'); a('s_lshl_b32 s65, s64, 2')
    a(f'v_lshlrev_b32 v{D}, 4, {L}')
    a(f'buffer_load_dwordx4 v[{MR}:{MR+3}], v{D}, s[68:71], s65 offen'); a(f'buffer_load_dwordx4 v[{MR+4}:{MR+7}], v{D}, s[68:71], s65 offen offset:1024')
    a(f'buffer_load_dwordx4 v[{MR+8}:{MR+11}], v{D}, s[72:75], s65 offen'); a(f'buffer_load_dwordx4 v[{MR+12}:{MR+15}], v{D}, s[72:75], s65 offen offset:1024')
    a('s_lshr_b32 s51, s48, 2'); a('s_add_u32 s62, s62, 1')
    a('s_waitcnt vmcnt(0)')
    for r in range(8):
        t=D+4; idx=256*(r//4)+(r%4)
        a(f'v_lshlrev_b32 v{D+1}, 2, {L}'); a(f'v_add_u32 v{D+1}, {idx}, v{D+1}')
        a(f'v_cmp_gt_u32 s[76:77], 500, v{D+1}' if False else f'v_mov_b32 v{D+2}, 500'); a(f'v_cmp_lt_u32 s[76:77], v{D+1}, v{D+2}')
        a(f'v_lshrrev_b32 v{D+2}, 4, v{MR+r}'); a(f'v_cmp_eq_u32 vcc, s40, v{D+2}')
        a('s_and_b64 vcc, vcc, s[76:77]')
        a(f'v_lshlrev_b32 v{t}, 8, v{MR+8+r}')
        a(f'v_add_lshl_u32 v{t+1}, v{D+1}, s64, 5')
        a(f'v_and_b32 v{t+2}, 15, v{MR+r}'); a(f'v_lshl_add_u32 v{t+2}, v{t+2}, 5, s50')
        compact(t,t+1,t+2,t+3)
    a('s_branch K2_PROC')
    a.label('K2_FINAL')
    a(f'v_lshrrev_b32 v7, 4, {L}'); a('v_mul_u32_u24 v2, 1088, v7'); a('v_lshrrev_b32 v3, 2, v1'); a('v_add3_u32 v2, v2, v3, s48')
    for b in range(4):
        for i in range(4): a(f'ds_write_b32 v2, v{ACC+4*b+i} offset:{272*i+64*b}')
    a('v_lshrrev_b32 v3, 3, v0'); a('v_and_b32 v4, 7, v0')
    a('v_mul_u32_u24 v5, 272, v3'); a('v_lshl_add_u32 v5, v4, 5, v5')
    a('v_lshlrev_b32 v6, 8, v3'); a('v_lshl_add_u32 v6, v4, 4, v6')
    srd(a,24,18,19,N*256)
    a('s_lshl_b32 s44, s40, 12'); a('s_lshl_b32 s45, s41, 7'); a('s_add_u32 s44, s44, s45')
    a('s_waitcnt lgkmcnt(0)'); a('s_barrier')
    a('ds_read_b128 v[8:11], v5'); a('ds_read_b128 v[12:15], v5 offset:16')
    a(f'ds_read_b128 v[16:19], v5 offset:{WREG}'); a(f'ds_read_b128 v[20:23], v5 offset:{WREG+16}')
    a('s_waitcnt lgkmcnt(0)')
    for i in range(8): a(f'v_add_f32 v{8+i}, v{8+i}, v{16+i}')
    for i in range(8): a(f'v_mul_f32 v{16+i}, s53, v{8+i}')
    for i in range(8): a(f'v_exp_f32 v{16+i}, v{16+i}')
    for i in range(8): a(f'v_add_f32 v{16+i}, 1.0, v{16+i}')
    for i in range(8): a(f'v_rcp_f32 v{16+i}, v{16+i}')
    for i in range(8): a(f'v_mul_f32 v{8+i}, v{8+i}, v{16+i}')
    for i in range(4): a(f'v_cvt_pk_bf16_f32 v{24+i}, v{8+2*i}, v{9+2*i}')
    a('buffer_store_dwordx4 v[24:27], v6, s[24:27], s44 offen')
    a.label('K2_END')
    a('s_endpgm')
    return a

def kd(name,a):
    nv=a.maxv+1
    return f'''.amdhsa_kernel {name}
  .amdhsa_next_free_vgpr {nv}
  .amdhsa_next_free_sgpr {max(a.maxs+1,16)}
  .amdhsa_accum_offset {(nv+3)//4*4}
  .amdhsa_group_segment_fixed_size 0
  .amdhsa_kernarg_size 80
  .amdhsa_user_sgpr_count 2
  .amdhsa_user_sgpr_kernarg_segment_ptr 1
  .amdhsa_system_sgpr_workgroup_id_x 1
.end_amdhsa_kernel
'''
def build(kernels, path):
    hdr=open('cdna_kernels/'+NAME+'.s.ref').read().split('; Override')[0]
    out=hdr
    for (n,a,g,b,l) in kernels: out+=f'; @launch kernel={n} grid=({g},1,1) block=({b},1,1) lds={l}\n'
    out+='.amdgcn_target "amdgcn-amd-amdhsa--gfx950"\n.text\n'
    seen=[]
    for (n,a,g,b,l) in kernels:
        if n in seen: continue
        seen.append(n)
        out+=f'.globl {n}\n.p2align 8\n.type {n},@function\n{n}:\n'+a.text()
    out+='.section .rodata,"a"\n'
    seen=[]
    for (n,a,g,b,l) in kernels:
        if n in seen: continue
        seen.append(n)
        out+='.p2align 6\n'+kd(n,a)
        print(n,'vgpr',a.maxv+1,'sgpr',a.maxs+1,'nops',a.nnop,'lines',len(a.lines))
    open(path,'w').write(out)
if __name__=='__main__':
    build([('prep_kernel',k1(),241,512,45056),(NAME+'_kernel',k2(),1256,128,2*WREG)], sys.argv[1] if len(sys.argv)>1 else 'cdna_kernels/'+NAME+'.s')
```

```python
from gen1 import *
def empty():
    a=Asm(); a('v_mov_b32 v1, 0'); a('s_endpgm'); return a
K1=('prep_kernel',k1(),241,512,45056); K2=(NAME+'_kernel',k2(),1256,128,2*WREG); EM=('empty_kernel',empty(),1,64,0)
build([K1,K2,EM],'v_a.s')
build([K1,K1,K2],'v_b.s')
build([K1,K2,K2],'v_c.s')
build([EM,EM,EM,K1,K2],'v_d.s')
```

```python
import sys, struct
from asmlib import Asm
NAME='standalone__edge_featured_mpnn_egc__graph'
N=10000;E=160000;NSB=625;CH=80;CE=2000;CAP=16
OFF_T=0;THALF=N*256
OFF_XA=2*THALF; OFF_XU=OFF_XA+NSB*4096; OFF_CT=OFF_XU+NSB*4096; OFF_META=OFF_CT+4096
META_SB=CH*CAP*4
WS_END=OFF_META+NSB*META_SB
def f2u(f): return struct.unpack('<I',struct.pack('<f',f))[0]
NLOG2E=f2u(-1.4426950408889634)
TINY=f2u(2.0**-80)
def srd(a,d,lo,hi,n):
    a(f's_mov_b32 s{d}, s{lo}'); a(f's_and_b32 s{d+1}, s{hi}, 0xffff'); a(f's_mov_b32 s{d+2}, {n}'); a(f's_mov_b32 s{d+3}, 0x20000')
def srd_off(a,d,lo,hi,off,n):
    a(f's_add_u32 s{d}, s{lo}, {off}'); a(f's_addc_u32 s{d+1}, s{hi}, 0'); a(f's_and_b32 s{d+1}, s{d+1}, 0xffff')
    a(f's_mov_b32 s{d+2}, {n}'); a(f's_mov_b32 s{d+3}, 0x20000')

STAMP=False
EXP=''
OFF_ST=1<<26
def stamp(a,i,real=False):
    if not STAMP: return
    a(f's_{"memrealtime" if real else "memtime"} s[{80+2*i}:{81+2*i}]'); a('s_waitcnt lgkmcnt(0)')
def stamp_out(a,n,idx_sgpr,base,vt):
    if not STAMP: return
    a('s_mov_b64 exec, 1')
    a('s_mov_b32 s96, s20'); a('s_and_b32 s97, s21, 0xffff'); a('s_mov_b32 s98, 0x10000000'); a('s_mov_b32 s99, 0x20000')
    a(f's_lshl_b32 s100, {idx_sgpr}, 6'); a(f's_add_u32 s100, s100, {base}')
    a(f'v_mov_b32 v{vt}, 0')
    for i in range(n):
        a(f'v_mov_b32 v{vt+1}, s{80+2*i}'); a(f'buffer_store_dword v{vt+1}, v{vt}, s[96:99], s100 offen offset:{4*i}')
    a('s_getreg_b32 s80, hwreg(HW_REG_HW_ID)'); a(f'v_mov_b32 v{vt+1}, s80'); a(f'buffer_store_dword v{vt+1}, v{vt}, s[96:99], s100 offen offset:56')
    a('s_getreg_b32 s80, hwreg(HW_REG_XCC_ID)'); a(f'v_mov_b32 v{vt+1}, s80'); a(f'buffer_store_dword v{vt+1}, v{vt}, s[96:99], s100 offen offset:60')
def k1():
    a=Asm()
    stamp(a,0,True); stamp(a,1)
    a('s_load_dwordx16 s[4:19], s[0:1], 0')
    a('s_load_dwordx2 s[20:21], s[0:1], 72')
    a('s_cmp_gt_u32 s2, 240'); a('s_cbranch_scc1 K1_END')
    a('s_waitcnt lgkmcnt(0)')
    srd(a,24,20,21,WS_END)
    a('s_cmp_lt_u32 s2, 80'); a('s_cbranch_scc1 K1_SORT')
    a('s_cmp_eq_u32 s2, 240'); a('s_cbranch_scc1 K1_CT')
    a('s_sub_u32 s3, s2, 80')
    a('s_and_b32 s40, s3, 7'); a('s_lshr_b32 s41, s3, 5'); a('s_lshl_b32 s41, s41, 3'); a('s_add_u32 s40, s40, s41')
    a('s_lshr_b32 s41, s3, 3'); a('s_and_b32 s42, s41, 1')
    a('s_lshr_b32 s43, s41, 1'); a('s_and_b32 s43, s43, 1')
    a('s_cmp_eq_u32 s43, 0')
    a('s_cselect_b32 s44, 32768, 0')
    a('s_cselect_b32 s46, s14, s12'); a('s_cselect_b32 s47, s15, s13')
    srd_off(a,28,16,17,'s44',32768)
    srd(a,32,46,47,32768)
    srd(a,36,4,5,N*256)
    a('s_lshl_b32 s45, s42, 7')
    a('v_and_b32 v1, 7, v0'); a('v_lshrrev_b32 v2, 3, v0')
    a('v_lshlrev_b32 v3, 8, v2'); a('v_lshl_add_u32 v3, v1, 4, v3')
    a('v_add_u32 v4, 16384, v3')
    a('buffer_load_dwordx4 v[8:11], v3, s[28:31], s45 offen')
    a('buffer_load_dwordx4 v[12:15], v4, s[28:31], s45 offen')
    a('buffer_load_dwordx4 v[16:19], v3, s[32:35], s45 offen')
    a('buffer_load_dwordx4 v[20:23], v4, s[32:35], s45 offen')
    a('v_lshrrev_b32 v5, 6, v0'); a('v_readfirstlane_b32 s48, v5')
    a('v_and_b32 v6, 63, v0')
    a('v_and_b32 v7, 15, v6')
    a('v_lshrrev_b32 v5, 4, v6')
    a('s_lshl_b32 s49, s40, 4'); a('s_lshl_b32 s50, s48, 1'); a('s_add_u32 s49, s49, s50')
    a('s_lshl_b32 s50, s49, 12')
    a('s_add_u32 s51, s50, 4096')
    a('v_lshlrev_b32 v24, 8, v7'); a('v_lshl_add_u32 v24, v5, 4, v24')
    XA0=28
    for t in range(2):
        for s in range(4):
            r=XA0+16*t+4*s
            a(f'buffer_load_dwordx4 v[{r}:{r+3}], v24, s[36:39], s{50+t} offen offset:{64*s}')
    a('v_lshrrev_b32 v25, 4, v2'); a('v_mul_u32_u24 v25, 4736, v25')
    a('v_and_b32 v26, 15, v2'); a('v_mul_u32_u24 v26, 288, v26'); a('v_add_u32 v25, v25, v26')
    a('v_bfe_u32 v26, v2, 3, 1'); a('v_lshl_add_u32 v25, v26, 7, v25'); a('v_lshl_add_u32 v25, v1, 4, v25')
    a('v_lshrrev_b32 v26, 1, v5'); a('v_mul_u32_u24 v26, 4736, v26')
    a('v_and_b32 v27, 1, v5'); a('v_mul_u32_u24 v27, 2432, v27'); a('v_add_u32 v26, v26, v27')
    a('v_lshrrev_b32 v27, 2, v7'); a('v_mul_u32_u24 v27, 288, v27'); a('v_add_u32 v26, v26, v27')
    a('v_and_b32 v27, 3, v7'); a('v_lshl_add_u32 v26, v27, 3, v26')
    a('s_waitcnt vmcnt(11)'); a('ds_write_b128 v25, v[8:11]')
    a('s_waitcnt vmcnt(10)'); a(f'ds_write_b128 v25, v[12:15] offset:{4*4736}')
    a('s_waitcnt vmcnt(9)'); a('ds_write_b128 v25, v[16:19] offset:128')
    a('s_waitcnt vmcnt(8)'); a(f'ds_write_b128 v25, v[20:23] offset:{4*4736+128}')
    stamp(a,2)
    a('s_waitcnt lgkmcnt(0)'); a('s_barrier')
    BF=60; D0=188
    def bf(mm,b,s): return BF+((s*2+mm)*4+b)*4
    def dd(t,mm,b): return D0+t*32+(mm*4+b)*4
    for s in range(4):
        for mm in range(2):
            for b in range(4):
                for u in range(2):
                    r=bf(mm,b,s)+2*u
                    a(f'ds_read_b64_tr_b16 v[{r}:{r+1}], v26 offset:{s*9472+u*1152+mm*128+b*32}')
        if s>=1:
            pass
    a('s_waitcnt vmcnt(0) lgkmcnt(0)')
    stamp(a,3)
    for s in range(4):
        for t in range(2):
            for mm in range(2):
                for b in range(4):
                    d=dd(t,mm,b); x=XA0+16*t+4*s; w=bf(mm,b,s)
                    c='0' if s==0 else f'v[{d}:{d+3}]'
                    a(f'v_mfma_f32_16x16x32_bf16 v[{d}:{d+3}], v[{x}:{x+3}], v[{w}:{w+3}], {c}')
    stamp(a,4)
    a('s_cmp_eq_u32 s43, 1'); a('s_cbranch_scc1 K1_P1')
    a(f's_mov_b32 s52, {NLOG2E}'); a(f'v_mov_b32 v8, {TINY}')
    a('s_mov_b32 s53, 0x80008000'); a('s_mov_b32 s54, 0x07060100'); a('s_mov_b32 s55, 0x07060302')
    a(f's_mul_i32 s56, s42, {THALF}')
    srd_off(a,28,20,21,'s56',THALF)
    a('v_lshlrev_b32 v9, 10, v5'); a('v_lshl_add_u32 v9, v7, 4, v9')
    a.settle()
    for t in range(2):
        for i in range(4):
            o=12+((t*4+i)%2)*8
            for bp in range(2):
                h0=dd(t,1,2*bp)+i; h1=dd(t,1,2*bp+1)+i
                a(f'v_cvt_pk_bf16_f32 v{o+4+bp}, v{h0}, v{h1}')
                a(f'v_xor_b32 v{o+6+bp}, s53, v{o+4+bp}')
            for b in range(4):
                xb=dd(t,0,b)+i
                a(f'v_fma_f32 v{xb}, v{xb}, s52, v8')
            for b in range(4):
                xb=dd(t,0,b)+i
                a(f'v_sub_u32_sdwa v{xb}, v{xb}, sext(v{o+6+b//2}) dst_sel:DWORD dst_unused:UNUSED_PAD src0_sel:DWORD src1_sel:WORD_{b%2}')
            for b in range(4):
                xb=dd(t,0,b)+i
                a(f'v_perm_b32 v{o+b}, v{xb}, v{o+4+b//2}, s{54+b%2}')
            a(f'buffer_store_dwordx4 v[{o}:{o+3}], v9, s[28:31], s{50+t} offen offset:{256*i}')
    if STAMP:
        stamp(a,5); a('s_waitcnt vmcnt(0)'); stamp(a,6); stamp(a,7,True)
        a('v_lshrrev_b32 v70, 6, v0'); a('v_readfirstlane_b32 s78, v70')
        a('s_lshl_b32 s79, s2, 3'); a('s_add_u32 s79, s79, s78'); stamp_out(a,8,'s79',OFF_ST+(1<<20),70)
    a('s_endpgm')
    a.label('K1_P1')
    a.settle()
    a('v_lshrrev_b32 v9, 1, v5'); a('v_lshlrev_b32 v9, 8, v9'); a('v_lshl_add_u32 v9, v7, 4, v9')
    a('v_and_b32 v10, 1, v5'); a('v_lshl_add_u32 v9, v10, 3, v9')
    a('v_lshlrev_b32 v10, 4, v6')
    a('s_lshl_b32 s56, s42, 11')
    a(f's_add_u32 s57, s56, {OFF_XA}'); srd_off(a,28,20,21,'s57',NSB*4096-2048)
    a(f's_add_u32 s57, s56, {OFF_XU}'); srd_off(a,32,20,21,'s57',NSB*4096-2048)
    for t in range(2):
        o=12+t*20
        for b in range(4):
            d=dd(t,0,b)
            a(f'v_cvt_pk_bf16_f32 v{o+2*b}, v{d}, v{d+1}'); a(f'v_cvt_pk_bf16_f32 v{o+2*b+1}, v{d+2}, v{d+3}')
            a(f'buffer_store_dwordx2 v[{o+2*b}:{o+2*b+1}], v9, s[28:31], s{50+t} offen offset:{512*b}')
        for b in range(4):
            d=dd(t,1,b)
            a(f'v_cvt_pk_bf16_f32 v{o+8+2*b}, v{d}, v{d+1}'); a(f'v_cvt_pk_bf16_f32 v{o+8+2*b+1}, v{d+2}, v{d+3}')
        a(f'buffer_store_dwordx4 v[{o+8}:{o+11}], v10, s[32:35], s{50+t} offen')
        a(f'buffer_store_dwordx4 v[{o+12}:{o+15}], v10, s[32:35], s{50+t} offen offset:1024')
    if STAMP:
        stamp(a,5); a('s_waitcnt vmcnt(0)'); stamp(a,6); stamp(a,7,True)
        a('v_lshrrev_b32 v70, 6, v0'); a('v_readfirstlane_b32 s78, v70')
        a('s_lshl_b32 s79, s2, 3'); a('s_add_u32 s79, s79, s78'); stamp_out(a,8,'s79',OFF_ST+(1<<20),70)
    a('s_endpgm')
    a.label('K1_CT')
    a('v_cmp_gt_u32 vcc, 256, v0'); a('s_and_saveexec_b64 s[40:41], vcc'); a('s_cbranch_execz K1_END')
    srd(a,28,16,17,272*256)
    a('v_lshrrev_b32 v1, 5, v0'); a('v_lshlrev_b32 v1, 5, v1')
    a('v_and_b32 v2, 15, v0'); a('v_lshl_add_u32 v1, v2, 1, v1')
    a('v_bfe_u32 v2, v0, 4, 1'); a('v_lshl_add_u32 v1, v2, 11, v1'); a('v_add_u32 v1, 65536, v1')
    for j in range(8): a(f'buffer_load_ushort v{8+j}, v1, s[28:31], 0 offen offset:{256*j}')
    a('v_lshlrev_b32 v3, 4, v0'); a(f'v_add_u32 v3, {OFF_CT}, v3')
    a('s_waitcnt vmcnt(0)')
    for j in range(4): a(f'v_lshl_or_b32 v{16+j}, v{9+2*j}, 16, v{8+2*j}')
    a('buffer_store_dwordx4 v[16:19], v3, s[24:27], 0 offen')
    a('s_endpgm')
    a.label('K1_SORT')
    srd(a,28,10,11,E*4); srd(a,32,8,9,E*4)
    a(f's_mul_i32 s40, s2, {CE*4}')
    a('v_lshlrev_b32 v1, 4, v0')
    a('buffer_load_dwordx4 v[8:11], v1, s[28:31], s40 offen')
    a('buffer_load_dwordx4 v[12:15], v1, s[32:35], s40 offen')
    for j in range(4): a(f'v_mov_b32 v{16+j}, -1')
    a('v_mov_b32 v20, 0'); a('v_mov_b32 v21, 0'); a('v_lshlrev_b32 v2, 3, v0')
    for j in range(5): a(f'ds_write_b128 v1, v[16:19] offset:{8192*j}')
    a('ds_write_b64 v2, v[20:21] offset:40960')
    a('v_mov_b32 v3, 1'); a('v_lshlrev_b32 v4, 7, v0')
    a('s_waitcnt lgkmcnt(0)'); a('s_barrier')
    a(f'v_cmp_gt_u32 vcc, {CE//4}, v0'); a('s_and_saveexec_b64 s[42:43], vcc')
    stamp(a,2)
    a('s_waitcnt vmcnt(1)')
    stamp(a,3)
    for j in range(4):
        a(f'v_lshrrev_b32 v{24+j}, 4, v{8+j}'); a(f'v_lshlrev_b32 v{28+j}, 2, v{24+j}')
        a(f'ds_add_rtn_u32 v{32+j}, v{28+j}, v3 offset:40960')
    a('s_waitcnt vmcnt(0)')
    for j in range(4):
        a(f'v_and_b32 v{8+j}, 15, v{8+j}'); a(f'v_lshl_or_b32 v{8+j}, v{12+j}, 18, v{8+j}')
        a(f'v_add3_u32 v{8+j}, v{8+j}, v4, {32*j}' if 32*j<=64 else f'v_add_u32 v{8+j}, v{8+j}, v4')
        if 32*j>64: a(f'v_add_u32 v{8+j}, {32*j}, v{8+j}')
    for j in range(4):
        a(f's_waitcnt lgkmcnt({3-j+j})' if False else f's_waitcnt lgkmcnt({3})' if False else 's_waitcnt lgkmcnt(0)') if j==0 else None
        a(f'v_min_u32 v{32+j}, 15, v{32+j}'); a(f'v_lshlrev_b32 v{32+j}, 2, v{32+j}')
        a(f'v_lshl_add_u32 v{32+j}, v{24+j}, 6, v{32+j}')
        a(f'ds_write_b32 v{32+j}, v{8+j}')
    a('s_mov_b64 exec, s[42:43]')
    a('s_waitcnt lgkmcnt(0)'); a('s_barrier')
    stamp(a,4)
    a('v_lshrrev_b32 v5, 2, v0'); a('v_lshlrev_b32 v6, 2, v5')
    for j in range(5):
        a(f'ds_read_b128 v[{40+4*j}:{43+4*j}], v1 offset:{8192*j}')
        a(f'ds_read_b32 v{60+j}, v6 offset:{40960+512*j}')
    a(f'v_mul_u32_u24 v7, {META_SB}, v5'); a('v_and_b32 v22, 3, v0'); a('v_lshl_add_u32 v7, v22, 4, v7')
    a('v_cmp_eq_u32 vcc, 0, v22'); a('v_cndmask_b32 v23, -1, -2, vcc')
    a('v_mov_b32 v22, -1')
    a('s_lshl_b32 s44, s2, 6'); a(f's_add_u32 s44, s44, {OFF_META}')
    for j in range(5):
        a(f's_waitcnt lgkmcnt({8-2*j})')
        a(f'v_cmp_lt_u32 vcc, {CAP}, v{60+j}')
        a(f'v_cndmask_b32 v{40+4*j}, v{40+4*j}, v23, vcc')
        for i in range(1,4): a(f'v_cndmask_b32 v{40+4*j+i}, v{40+4*j+i}, v22, vcc')
        a(f'buffer_store_dwordx4 v[{40+4*j}:{43+4*j}], v7, s[24:27], s44 offen')
        a(f's_add_u32 s44, s44, {128*META_SB}')
    if STAMP:
        stamp(a,5); a('s_waitcnt vmcnt(0)'); stamp(a,6); stamp(a,7,True)
        a('v_lshrrev_b32 v70, 6, v0'); a('v_readfirstlane_b32 s78, v70')
        a('s_lshl_b32 s79, s2, 3'); a('s_add_u32 s79, s79, s78'); stamp_out(a,8,'s79',OFF_ST+(1<<20),70)
    a.label('K1_END')
    a('s_endpgm')
    return a

LCAP=704; ARR=LCAP*4; IDOFF=3*ARR; WREG=9216
def k2():
    a=Asm()
    stamp(a,0,True); stamp(a,1)
    a('s_load_dwordx8 s[4:11], s[0:1], 0')
    a('s_load_dwordx2 s[18:19], s[0:1], 56')
    a('s_load_dwordx2 s[20:21], s[0:1], 72')
    a('s_lshr_b32 s40, s2, 3'); a('s_lshl_b32 s40, s40, 2'); a('s_and_b32 s41, s2, 3'); a('s_add_u32 s40, s40, s41')
    a('s_bfe_u32 s41, s2, 0x10002')
    a(f's_cmp_ge_u32 s40, {NSB}'); a('s_cbranch_scc1 K2_END')
    a('v_lshrrev_b32 v7, 6, v0'); a('v_readfirstlane_b32 s42, v7')
    a('v_and_b32 v160, 63, v0')
    L='v160'
    a(f's_mul_i32 s43, s40, {META_SB}'); a(f's_mul_i32 s44, s42, {META_SB//2}'); a('s_add_u32 s43, s43, s44'); a(f's_add_u32 s43, s43, {OFF_META}')
    a(f'v_lshlrev_b32 v1, 4, {L}'); a(f'v_lshlrev_b32 v2, 3, {L}')
    a('s_waitcnt lgkmcnt(0)')
    srd(a,24,20,21,WS_END)
    MR=116
    a(f'buffer_load_dwordx4 v[{MR}:{MR+3}], v1, s[24:27], s43 offen')
    a(f'buffer_load_dwordx4 v[{MR+4}:{MR+7}], v1, s[24:27], s43 offen offset:1024')
    a(f'buffer_load_dwordx2 v[{MR+8}:{MR+9}], v2, s[24:27], s43 offen offset:2048')
    a('s_lshl_b32 s44, s40, 12'); a('s_lshl_b32 s45, s41, 11'); a('s_add_u32 s44, s44, s45')
    a(f's_add_u32 s46, s44, {OFF_XA-512}'); a(f's_add_u32 s47, s45, {OFF_CT}')
    a('v_mov_b32 v3, s47'); a('v_mov_b32 v4, s46'); a(f'v_cmp_gt_u32 vcc, 32, {L}')
    a('v_cndmask_b32 v3, v4, v3, vcc'); a('v_add_u32 v3, v3, v1')
    BO=8; ACC=24; D=40; X=72; Y=116
    for b in range(4): a(f'buffer_load_dwordx4 v[{BO+4*b}:{BO+4*b+3}], v3, s[24:27], 0 offen offset:{512*b}')
    a(f's_add_u32 s46, s44, {OFF_XU}')
    a(f'buffer_load_dwordx4 v[{X}:{X+3}], v1, s[24:27], s46 offen')
    a(f'buffer_load_dwordx4 v[{X+4}:{X+7}], v1, s[24:27], s46 offen offset:1024')
    a(f's_mul_i32 s46, s41, {THALF}'); srd_off(a,28,20,21,'s46',THALF)
    srd(a,32,6,7,E*32)
    a(f's_mul_i32 s48, s42, {WREG}')
    for j in range(3):
        a(f'v_lshrrev_b32 v4, 3, {L}')
        if j: a(f'v_add_u32 v4, {8*j}, v4')
        a(f'v_and_b32 v5, 7, {L}'); a('v_lshlrev_b32 v5, 1, v5'); a('v_sub_u32 v4, v4, v5')
        a('v_mov_b32 v6, 0'); a('v_mov_b32 v5, 0x3f80'); a('v_cmp_eq_u32 vcc, 0, v4'); a('v_cndmask_b32 v6, v6, v5, vcc')
        a('v_mov_b32 v5, 0x3f800000'); a('v_cmp_eq_u32 vcc, 1, v4'); a('v_cndmask_b32 v6, v6, v5, vcc')
        a(f'v_lshl_add_u32 v5, {L}, 2, s48')
        a(f'ds_write_b32 v5, v6 offset:{IDOFF+256*j}')
    a(f'v_and_b32 v1, 15, {L}'); a(f'v_lshrrev_b32 v7, 4, {L}')
    a('v_lshl_add_u32 v161, v7, 4, s48')
    a(f'v_mov_b32 v3, {ARR}'); a(f'v_mov_b32 v4, {2*ARR}'); a(f'v_cmp_gt_u32 vcc, 32, {L}'); a('v_cndmask_b32 v3, v4, v3, vcc')
    a('v_lshl_add_u32 v3, v1, 2, v3'); a('v_add_u32 v162, s48, v3')
    a(f'v_lshrrev_b32 v4, 2, {L}'); a('v_lshl_add_u32 v4, v4, 2, s48'); a(f'v_add_u32 v163, {2*ARR}, v4')
    a('v_and_b32 v5, 1, v7'); a('v_lshlrev_b32 v5, 4, v5')
    a(f'v_and_b32 v6, 3, {L}'); a('v_lshlrev_b32 v6, 3, v6')
    a('v_lshlrev_b32 v1, 4, v1')
    a(f's_mul_i32 s49, s42, {40*CE*32}')
    a(f'v_lshrrev_b32 v{D}, 2, {L}'); a(f'v_mul_u32_u24 v{D}, {CE*32}, v{D}'); a(f'v_add_u32 v{D}, s49, v{D}')
    a(f'v_add_u32 v{D+1}, {16*CE*32}, v{D}')
    a(f'v_lshrrev_b32 v{D+2}, 3, {L}'); a(f'v_mul_u32_u24 v{D+2}, {CE*32}, v{D+2}'); a(f'v_add_u32 v{D+2}, s49, v{D+2}'); a(f'v_add_u32 v{D+2}, {32*CE*32}, v{D+2}')
    a(f's_add_u32 s50, s48, {IDOFF}')
    a('s_lshr_b32 s51, s48, 2')
    a('s_mov_b32 s52, -2'); a(f's_mov_b32 s53, {NLOG2E}'); a('s_mov_b32 s62, 4')
    def compact(w0,w1,w2,t):
        a(f'v_mbcnt_lo_u32_b32 v{t}, vcc_lo, 0'); a(f'v_mbcnt_hi_u32_b32 v{t}, vcc_hi, v{t}')
        a(f'v_add_lshl_u32 v{t}, v{t}, s51, 2')
        a('s_bcnt1_i32_b64 s54, vcc'); a('s_add_u32 s51, s51, s54')
        a('s_mov_b64 exec, vcc')
        a(f'ds_write_b32 v{t}, v{w0}'); a(f'ds_write_b32 v{t}, v{w1} offset:{ARR}'); a(f'ds_write_b32 v{t}, v{w2} offset:{2*ARR}')
        a('s_mov_b64 exec, -1')
    a('s_waitcnt vmcnt(6)')
    stamp(a,2)
    a(f'v_cmp_eq_u32 s[56:57], s52, v{MR}'); a(f'v_cmp_eq_u32 s[58:59], s52, v{MR+4}'); a(f'v_cmp_eq_u32 s[60:61], s52, v{MR+8}')
    for r in range(10):
        rec=MR+r; cb=D+r//4; t=D+4+(r%2)*4
        a(f'v_cmp_gt_u32 vcc, s52, v{rec}')
        a(f'v_lshrrev_b32 v{t}, 18, v{rec}'); a(f'v_lshlrev_b32 v{t}, 8, v{t}')
        a(f'v_and_b32 v{t+1}, 0xffe0, v{rec}'); a(f'v_add_u32 v{t+1}, v{t+1}, v{cb}')
        if 'e' in EXP: a(f'v_and_b32 v{t+1}, 0x3e0, v{t+1}')
        if 't' in EXP: a(f'v_and_b32 v{t}, 0x3f00, v{t}')
        if 'u' in EXP: a(f'v_and_b32 v{t}, 0xfff00, v{t}')
        a(f'v_and_b32 v{t+2}, 15, v{rec}'); a(f'v_lshl_add_u32 v{t+2}, v{t+2}, 5, s50')
        compact(t,t+1,t+2,t+3)
    a('s_waitcnt vmcnt(0)')
    a('s_cmp_eq_u32 s42, 0'); a('s_cselect_b32 s54, -1, 0'); a('s_cselect_b32 s55, 0xffff0000, 0')
    for b in range(4):
        for p in range(2):
            x=X+2*b+p
            a(f'v_lshlrev_b32 v{ACC+4*b+2*p}, 16, v{x}'); a(f'v_and_b32 v{ACC+4*b+2*p}, s54, v{ACC+4*b+2*p}')
            a(f'v_and_b32 v{ACC+4*b+2*p+1}, s55, v{x}')
    stamp(a,3)
    a.label('K2_PROC')
    a(f'v_add_lshl_u32 v{D}, {L}, s51, 2'); a(f'v_mov_b32 v{D+1}, 0'); a(f's_add_u32 s54, s50, 512'); a(f'v_mov_b32 v{D+2}, s54')
    a(f'ds_write_b32 v{D}, v{D+1}'); a(f'ds_write_b32 v{D}, v{D+1} offset:{ARR}'); a(f'ds_write_b32 v{D}, v{D+2} offset:{2*ARR}')
    a('s_lshr_b32 s54, s48, 2'); a('s_sub_u32 s54, s51, s54'); a('s_add_u32 s54, s54, 31'); a('s_lshr_b32 s63, s54, 5')
    a('v_mov_b32 v2, v161'); a('v_mov_b32 v3, v162'); a('v_mov_b32 v4, v163')
    a('s_cmp_eq_u32 s63, 0'); a('s_cbranch_scc1 K2_NEXT')
    def issue(S):
        G=S; A=S+32; SS=S+40; W=D+16
        a(f'ds_read_b128 v[{W}:{W+3}], v2'); a(f'ds_read_b128 v[{W+4}:{W+7}], v2 offset:64')
        a(f'ds_read_b32 v{W+8}, v3'); a(f'ds_read_b32 v{W+9}, v3 offset:64')
        a(f'ds_read_b32 v{W+10}, v4'); a(f'ds_read_b32 v{W+11}, v4 offset:64')
        a('v_add_u32 v2, 128, v2'); a('v_add_u32 v3, 128, v3'); a('v_add_u32 v4, 128, v4')
        a('s_waitcnt lgkmcnt(4)')
        for i in range(8):
            a(f'v_add_u32 v{W+i}, v{W+i}, v1')
            a(f'buffer_load_dwordx4 v[{G+4*i}:{G+4*i+3}], v{W+i}, s[28:31], 0 offen')
        a('s_waitcnt lgkmcnt(0)')
        a(f'v_add_u32 v{W+8}, v{W+8}, v5'); a(f'v_add_u32 v{W+9}, v{W+9}, v5')
        a(f'v_add_u32 v{W+10}, v{W+10}, v6'); a(f'v_add_u32 v{W+11}, v{W+11}, v6')
        a('s_mov_b32 exec_hi, 0')
        a(f'buffer_load_dwordx4 v[{A}:{A+3}], v{W+8}, s[32:35], 0 offen'); a(f'buffer_load_dwordx4 v[{A+4}:{A+7}], v{W+9}, s[32:35], 0 offen')
        a('s_not_b64 exec, exec')
        a(f'ds_read_b128 v[{A}:{A+3}], v{W+8}'); a(f'ds_read_b128 v[{A+4}:{A+7}], v{W+9}')
        a('s_mov_b64 exec, -1')
        a(f'ds_read_b64_tr_b16 v[{SS}:{SS+1}], v{W+10}'); a(f'ds_read_b64_tr_b16 v[{SS+2}:{SS+3}], v{W+11}')
    def compute(S):
        G=S; A=S+32; SS=S+40
        for t in range(2):
            for b in range(4):
                d=D+16*t+4*b
                a(f'v_mfma_f32_16x16x32_bf16 v[{d}:{d+3}], v[{A+4*t}:{A+4*t+3}], v[{BO+4*b}:{BO+4*b+3}], 0')
        for t in range(2):
            el=[(D+16*t+4*b+i, G+16*t+4*i+b) for b in range(4) for i in range(4)]
            for d,g in el: a(f'v_fma_f32 v{d}, v{d}, s53, v{g}')
            for d,g in el: a(f'v_exp_f32 v{d}, v{d}')
            for d,g in el: a(f'v_add_f32 v{d}, 1.0, v{d}')
            for d,g in el: a(f'v_rcp_f32 v{d}, v{d}')
            for d,g in el: a(f'v_lshlrev_b32 v{g}, 16, v{g}')
            for d,g in el: a(f'v_mul_f32 v{d}, v{d}, v{g}')
            for b in range(4):
                d=D+16*t+4*b; m=D+4*b+2*t
                a(f'v_cvt_pk_bf16_f32 v{m}, v{d}, v{d+1}'); a(f'v_cvt_pk_bf16_f32 v{m+1}, v{d+2}, v{d+3}')
        for b in range(4):
            a(f'v_mfma_f32_16x16x32_bf16 v[{ACC+4*b}:{ACC+4*b+3}], v[{SS}:{SS+3}], v[{D+4*b}:{D+4*b+3}], v[{ACC+4*b}:{ACC+4*b+3}]')
    issue(X)
    if STAMP: a('s_waitcnt vmcnt(0)'); stamp(a,4)
    a.label('K2_LOOP')
    for (cur,nxt,tag) in ((X,Y,'A'),(Y,X,'B')):
        a('s_cmp_lt_u32 s63, 2'); a(f's_cbranch_scc1 K2_LAST{tag}')
        issue(nxt)
        a('s_waitcnt vmcnt(10) lgkmcnt(0)')
        a(f's_branch K2_GO{tag}')
        a.label(f'K2_LAST{tag}')
        a('s_waitcnt vmcnt(0) lgkmcnt(0)')
        a.label(f'K2_GO{tag}')
        compute(cur)
        a('s_sub_u32 s63, s63, 1'); a('s_cmp_eq_u32 s63, 0')
        if tag=='A': a('s_cbranch_scc1 K2_NEXT')
        else: a('s_cbranch_scc0 K2_LOOP')
    a.label('K2_NEXT')
    a.settle()
    a('s_cmp_lt_u32 s62, 4'); a('s_cbranch_scc1 K2_SLOW')
    a('s_or_b64 s[64:65], s[56:57], s[58:59]'); a('s_or_b64 s[64:65], s[64:65], s[60:61]'); a('s_cbranch_scc0 K2_FINAL')
    a('s_mov_b32 s62, 0')
    a('s_cmp_eq_u64 s[56:57], 0'); a('s_cbranch_scc1 K2_O1')
    a('s_ff1_i32_b64 s64, s[56:57]'); a('s_bitset0_b64 s[56:57], s64'); a('s_lshr_b32 s66, s64, 2'); a('s_branch K2_O3')
    a.label('K2_O1')
    a('s_cmp_eq_u64 s[58:59], 0'); a('s_cbranch_scc1 K2_O2')
    a('s_ff1_i32_b64 s64, s[58:59]'); a('s_bitset0_b64 s[58:59], s64'); a('s_lshr_b32 s66, s64, 2'); a('s_add_u32 s66, s66, 16'); a('s_branch K2_O3')
    a.label('K2_O2')
    a('s_ff1_i32_b64 s64, s[60:61]'); a('s_bitset0_b64 s[60:61], s64'); a('s_lshr_b32 s66, s64, 3'); a('s_add_u32 s66, s66, 32')
    a.label('K2_O3')
    a('s_mul_i32 s64, s42, 40'); a('s_add_u32 s66, s66, s64'); a(f's_mul_i32 s66, s66, {CE}')
    a.label('K2_SLOW')
    srd(a,68,10,11,E*4); srd(a,72,8,9,E*4)
    a('s_mul_i32 s64, s62, 500'); a('s_add_u32 s64, s64, s66'); a('s_lshl_b32 s65, s64, 2')
    a(f'v_lshlrev_b32 v{D}, 4, {L}')
    a(f'buffer_load_dwordx4 v[{MR}:{MR+3}], v{D}, s[68:71], s65 offen'); a(f'buffer_load_dwordx4 v[{MR+4}:{MR+7}], v{D}, s[68:71], s65 offen offset:1024')
    a(f'buffer_load_dwordx4 v[{MR+8}:{MR+11}], v{D}, s[72:75], s65 offen'); a(f'buffer_load_dwordx4 v[{MR+12}:{MR+15}], v{D}, s[72:75], s65 offen offset:1024')
    a('s_lshr_b32 s51, s48, 2'); a('s_add_u32 s62, s62, 1')
    a('s_waitcnt vmcnt(0)')
    for r in range(8):
        t=D+4; idx=256*(r//4)+(r%4)
        a(f'v_lshlrev_b32 v{D+1}, 2, {L}'); a(f'v_add_u32 v{D+1}, {idx}, v{D+1}')
        a(f'v_cmp_gt_u32 s[76:77], 500, v{D+1}' if False else f'v_mov_b32 v{D+2}, 500'); a(f'v_cmp_lt_u32 s[76:77], v{D+1}, v{D+2}')
        a(f'v_lshrrev_b32 v{D+2}, 4, v{MR+r}'); a(f'v_cmp_eq_u32 vcc, s40, v{D+2}')
        a('s_and_b64 vcc, vcc, s[76:77]')
        a(f'v_lshlrev_b32 v{t}, 8, v{MR+8+r}')
        a(f'v_add_lshl_u32 v{t+1}, v{D+1}, s64, 5')
        a(f'v_and_b32 v{t+2}, 15, v{MR+r}'); a(f'v_lshl_add_u32 v{t+2}, v{t+2}, 5, s50')
        compact(t,t+1,t+2,t+3)
    a('s_branch K2_PROC')
    a.label('K2_FINAL')
    stamp(a,5)
    a(f'v_lshrrev_b32 v7, 4, {L}'); a('v_mul_u32_u24 v2, 1088, v7'); a('v_lshrrev_b32 v3, 2, v1'); a('v_add3_u32 v2, v2, v3, s48')
    for b in range(4):
        for i in range(4): a(f'ds_write_b32 v2, v{ACC+4*b+i} offset:{272*i+64*b}')
    a('v_lshrrev_b32 v3, 3, v0'); a('v_and_b32 v4, 7, v0')
    a('v_mul_u32_u24 v5, 272, v3'); a('v_lshl_add_u32 v5, v4, 5, v5')
    a('v_lshlrev_b32 v6, 8, v3'); a('v_lshl_add_u32 v6, v4, 4, v6')
    srd(a,24,18,19,N*256)
    a('s_lshl_b32 s44, s40, 12'); a('s_lshl_b32 s45, s41, 7'); a('s_add_u32 s44, s44, s45')
    a('s_waitcnt lgkmcnt(0)'); a('s_barrier')
    a('ds_read_b128 v[8:11], v5'); a('ds_read_b128 v[12:15], v5 offset:16')
    a(f'ds_read_b128 v[16:19], v5 offset:{WREG}'); a(f'ds_read_b128 v[20:23], v5 offset:{WREG+16}')
    a('s_waitcnt lgkmcnt(0)')
    for i in range(8): a(f'v_add_f32 v{8+i}, v{8+i}, v{16+i}')
    for i in range(8): a(f'v_mul_f32 v{16+i}, s53, v{8+i}')
    for i in range(8): a(f'v_exp_f32 v{16+i}, v{16+i}')
    for i in range(8): a(f'v_add_f32 v{16+i}, 1.0, v{16+i}')
    for i in range(8): a(f'v_rcp_f32 v{16+i}, v{16+i}')
    for i in range(8): a(f'v_mul_f32 v{8+i}, v{8+i}, v{16+i}')
    for i in range(4): a(f'v_cvt_pk_bf16_f32 v{24+i}, v{8+2*i}, v{9+2*i}')
    a('buffer_store_dwordx4 v[24:27], v6, s[24:27], s44 offen')
    if STAMP:
        a('s_waitcnt vmcnt(0)'); stamp(a,6); stamp(a,7,True)
        a('s_lshl_b32 s79, s2, 1'); a('s_add_u32 s79, s79, s42'); stamp_out(a,8,'s79',OFF_ST,30)
    a.label('K2_END')
    a('s_endpgm')
    return a

def kd(name,a):
    nv=a.maxv+1
    return f'''.amdhsa_kernel {name}
  .amdhsa_next_free_vgpr {nv}
  .amdhsa_next_free_sgpr {max(a.maxs+1,16)}
  .amdhsa_accum_offset {(nv+3)//4*4}
  .amdhsa_group_segment_fixed_size 0
  .amdhsa_kernarg_size 80
  .amdhsa_user_sgpr_count 2
  .amdhsa_user_sgpr_kernarg_segment_ptr 1
  .amdhsa_system_sgpr_workgroup_id_x 1
.end_amdhsa_kernel
'''
def build(kernels, path):
    hdr=open('cdna_kernels/'+NAME+'.s.ref').read().split('; Override')[0]
    out=hdr
    for (n,a,g,b,l) in kernels: out+=f'; @launch kernel={n} grid=({g},1,1) block=({b},1,1) lds={l}\n'
    out+='.amdgcn_target "amdgcn-amd-amdhsa--gfx950"\n.text\n'
    seen=[]
    for (n,a,g,b,l) in kernels:
        if n in seen: continue
        seen.append(n)
        out+=f'.globl {n}\n.p2align 8\n.type {n},@function\n{n}:\n'+a.text()
    out+='.section .rodata,"a"\n'
    seen=[]
    for (n,a,g,b,l) in kernels:
        if n in seen: continue
        seen.append(n)
        out+='.p2align 6\n'+kd(n,a)
        print(n,'vgpr',a.maxv+1,'sgpr',a.maxs+1,'nops',a.nnop,'lines',len(a.lines))
    open(path,'w').write(out)
if __name__=='__main__':
    build([('prep_kernel',k1(),241,512,45056),(NAME+'_kernel',k2(),1256,128,2*WREG)], sys.argv[1] if len(sys.argv)>1 else 'cdna_kernels/'+NAME+'.s')
```

```python
import sys, struct
from asmlib import Asm
import gen1
from gen1 import srd, srd_off, f2u, build, NAME, stamp, stamp_out, OFF_ST
N=10000;E=160000;NBK=1000;CH=64;CE=2500;CAP=15
THALF=N*256
OFF_META=2*THALF
WS_END=OFF_META+NBK*4096
NLOG2E=f2u(-1.4426950408889634)
TINY=f2u(2.0**-100)
OPT=dict(st='',skipq=False,pref=False)
NG=79
K1_LDS=81920+4096
def wimg_addrs(a,vrow,vpiece,vdst,vt):
    a(f'v_lshrrev_b32 v{vdst}, 4, v{vrow}'); a(f'v_mul_u32_u24 v{vdst}, 4736, v{vdst}')
    a(f'v_and_b32 v{vt}, 15, v{vrow}'); a(f'v_mul_u32_u24 v{vt}, 288, v{vt}'); a(f'v_add_u32 v{vdst}, v{vdst}, v{vt}')
    a(f'v_bfe_u32 v{vt}, v{vrow}, 3, 1'); a(f'v_lshl_add_u32 v{vdst}, v{vt}, 7, v{vdst}'); a(f'v_lshl_add_u32 v{vdst}, v{vpiece}, 4, v{vdst}')
def tr_addr(a,vq,vc,vdst,vt):
    a(f'v_lshrrev_b32 v{vdst}, 1, v{vq}'); a(f'v_mul_u32_u24 v{vdst}, 4736, v{vdst}')
    a(f'v_and_b32 v{vt}, 1, v{vq}'); a(f'v_mul_u32_u24 v{vt}, 2432, v{vt}'); a(f'v_add_u32 v{vdst}, v{vdst}, v{vt}')
    a(f'v_lshrrev_b32 v{vt}, 2, v{vc}'); a(f'v_mul_u32_u24 v{vt}, 288, v{vt}'); a(f'v_add_u32 v{vdst}, v{vdst}, v{vt}')
    a(f'v_and_b32 v{vt}, 3, v{vc}'); a(f'v_lshl_add_u32 v{vdst}, v{vt}, 3, v{vdst}')
def gemm_stream(a,vtr,XF,slots,dres,base=0):
    hs=[(s,mm) for s in range(4) for mm in range(2)]
    def rd(h):
        s,mm=hs[h]; sl=slots[h%len(slots)]
        for b in range(4):
            for u in range(2):
                r=sl+4*b+2*u
                a(f'ds_read_b64_tr_b16 v[{r}:{r+1}], v{vtr} offset:{base+s*9472+u*1152+mm*128+b*32}')
    rd(0)
    for h in range(8):
        if h+1<8: rd(h+1); a('s_waitcnt lgkmcnt(8)')
        else: a('s_waitcnt lgkmcnt(0)')
        s,mm=hs[h]; sl=slots[h%len(slots)]
        for b in range(4):
            d=dres(mm,b); c='0' if s==0 else f'v[{d}:{d+3}]'
            a(f'v_mfma_f32_16x16x32_bf16 v[{d}:{d+3}], v[{XF+4*s}:{XF+4*s+3}], v[{sl+4*b}:{sl+4*b+3}], {c}')
def fin(a,wpw_shift,base):
    if gen1.STAMP:
        stamp(a,5); a('s_waitcnt vmcnt(0)'); stamp(a,6); stamp(a,7,True)
        a('v_lshrrev_b32 v70, 6, v0'); a('v_readfirstlane_b32 s78, v70')
        a(f's_lshl_b32 s79, s2, {wpw_shift}'); a('s_add_u32 s79, s79, s78'); stamp_out(a,8,'s79',base,70)
def k1():
    a=Asm(); ST=OPT['st']
    stamp(a,0,True); stamp(a,1)
    a('s_load_dwordx16 s[4:19], s[0:1], 0')
    a('s_load_dwordx2 s[20:21], s[0:1], 72')
    a(f's_cmp_ge_u32 s2, {CH+160}'); a('s_cbranch_scc1 K1_END')
    a(f's_cmp_lt_u32 s2, {CH}'); a('s_cbranch_scc1 K1_SORT')
    a(f's_sub_u32 s3, s2, {CH}')
    a('s_and_b32 s40, s3, 7'); a('s_lshr_b32 s41, s3, 4'); a('s_lshl_b32 s41, s41, 3'); a('s_add_u32 s40, s40, s41')
    a('s_bfe_u32 s42, s3, 0x10003')
    a(f's_cmp_ge_u32 s40, {NG}'); a('s_cbranch_scc1 K1_END')
    a('v_and_b32 v1, 7, v0'); a('v_lshrrev_b32 v2, 3, v0')
    a('v_lshlrev_b32 v3, 8, v2'); a('v_lshl_add_u32 v3, v1, 4, v3'); a('v_add_u32 v4, 16384, v3')
    a('v_lshrrev_b32 v5, 6, v0'); a('v_readfirstlane_b32 s48, v5')
    a('v_and_b32 v6, 63, v0'); a('v_and_b32 v7, 15, v6'); a('v_lshrrev_b32 v5, 4, v6')
    a('s_lshl_b32 s49, s40, 3'); a('s_add_u32 s49, s49, s48'); a('s_lshl_b32 s50, s49, 12')
    a('v_lshlrev_b32 v24, 8, v7'); a('v_lshl_add_u32 v24, v5, 4, v24')
    a('s_lshl_b32 s45, s42, 7')
    a('s_waitcnt lgkmcnt(0)')
    srd_off(a,28,16,17,32768,32768); srd(a,32,14,15,32768); srd(a,36,4,5,N*256)
    a('buffer_load_dwordx4 v[8:11], v3, s[28:31], s45 offen'); a('buffer_load_dwordx4 v[12:15], v4, s[28:31], s45 offen')
    a('buffer_load_dwordx4 v[16:19], v3, s[32:35], s45 offen'); a('buffer_load_dwordx4 v[20:23], v4, s[32:35], s45 offen')
    XF=28
    for s in range(4): a(f'buffer_load_dwordx4 v[{XF+4*s}:{XF+4*s+3}], v24, s[36:39], s50 offen offset:{64*s}')
    if OPT['pref']:
        srd(a,60,6,7,E*32)
        a('s_mul_i32 s64, s3, 32768'); a('v_lshlrev_b32 v100, 4, v0')
        for j in range(4):
            a(f'buffer_load_dwordx4 v[{104+4*j}:{107+4*j}], v100, s[60:63], s64 offen'); a('s_add_u32 s64, s64, 8192')
    np_=4 if OPT['pref'] else 0
    wimg_addrs(a,2,1,25,26); tr_addr(a,5,7,26,27)
    a(f's_mov_b32 s52, {NLOG2E}'); a(f's_mov_b32 s53, {NLOG2E}'); a(f's_mov_b32 s57, {TINY}')
    a('s_mov_b32 s58, 0x80008000'); a('s_mov_b32 s54, 0x07060100'); a('s_mov_b32 s55, 0x07060302'); a('s_mov_b32 s59, 0x80000000')
    a(f's_mul_i32 s56, s42, {THALF}'); srd_off(a,24,20,21,'s56',THALF)
    a(f's_waitcnt vmcnt({7+np_})'); a('ds_write_b128 v25, v[8:11]')
    a(f's_waitcnt vmcnt({6+np_})'); a(f'ds_write_b128 v25, v[12:15] offset:{4*4736}')
    a(f's_waitcnt vmcnt({5+np_})'); a('ds_write_b128 v25, v[16:19] offset:128')
    a(f's_waitcnt vmcnt({4+np_})'); a(f'ds_write_b128 v25, v[20:23] offset:{4*4736+128}')
    stamp(a,2)
    a('s_waitcnt lgkmcnt(0)'); a('s_barrier')
    a(f's_waitcnt vmcnt({np_})')
    stamp(a,3)
    D0=44
    dd=lambda mm,b: D0+(mm*4+b)*4
    gemm_stream(a,26,XF,[76,8],dd) if False else gemm_stream(a,26,XF,[76,92],dd)
    stamp(a,4)
    a('v_lshlrev_b32 v9, 10, v5'); a('v_lshl_add_u32 v9, v7, 4, v9')
    for b in range(4):
        d=dd(0,b)
        a(f'v_pk_mul_f32 v[{d}:{d+1}], v[{d}:{d+1}], s[52:53]'); a(f'v_pk_mul_f32 v[{d+2}:{d+3}], v[{d+2}:{d+3}], s[52:53]')
    for i in range(4):
        o=12+(i%2)*12
        for bp in range(2):
            a(f'v_cvt_pk_bf16_f32 v{o+4+bp}, v{dd(0,2*bp)+i}, v{dd(0,2*bp+1)+i}')
        for b in range(4): a(f'v_max_f32 v{o+8+b}, |v{dd(1,b)+i}|, s57')
        for bp in range(2): a(f'v_xor_b32 v{o+6+bp}, s58, v{o+4+bp}')
        for b in range(4):
            a(f'v_sub_u32_sdwa v{o+8+b}, v{o+8+b}, sext(v{o+6+b//2}) dst_sel:DWORD dst_unused:UNUSED_PAD src0_sel:DWORD src1_sel:WORD_{b%2}')
        for b in range(4): a(f'v_perm_b32 v{o+b}, v{o+8+b}, v{o+4+b//2}, s{54+b%2}')
        for b in range(4): a(f'v_and_or_b32 v{o+b}, v{dd(1,b)+i}, s59, v{o+b}')
        a(f'buffer_store_dwordx4 v[{o}:{o+3}], v9, s[24:27], s50 offen offset:{256*i} {ST}')
    fin(a,3,OFF_ST+(1<<20))
    a('s_endpgm')
    a.label('K1_SORT')
    a(f's_mul_i32 s40, s2, {CE*4}')
    a('v_mul_u32_u24 v1, 20, v0')
    a('v_mov_b32 v20, 0'); a('v_mov_b32 v21, 0'); a('v_lshlrev_b32 v2, 3, v0')
    a('ds_write_b64 v2, v[20:21] offset:0')
    a('s_waitcnt lgkmcnt(0)')
    srd(a,28,10,11,E*4); srd(a,32,8,9,E*4); srd(a,24,20,21,WS_END)
    a('buffer_load_dwordx4 v[8:11], v1, s[28:31], s40 offen'); a('buffer_load_dword v12, v1, s[28:31], s40 offen offset:16')
    a('buffer_load_dwordx4 v[14:17], v1, s[32:35], s40 offen'); a('buffer_load_dword v18, v1, s[32:35], s40 offen offset:16')
    a('v_mov_b32 v3, 1'); a('v_mul_u32_u24 v4, 80, v0')
    a('s_barrier')
    a(f'v_cmp_gt_u32 vcc, {CE//5}, v0'); a('s_and_saveexec_b64 s[42:43], vcc')
    stamp(a,2)
    a('s_waitcnt vmcnt(2)')
    stamp(a,3)
    for j in range(5):
        a(f'v_mul_u32_u24 v{24+j}, 52429, v{8+j}'); a(f'v_lshrrev_b32 v{24+j}, 19, v{24+j}')
        a(f'v_lshlrev_b32 v{30+j}, 2, v{24+j}')
        a(f'ds_add_rtn_u32 v{36+j}, v{30+j}, v3')
    a('s_waitcnt vmcnt(0)')
    for j in range(5):
        a(f'v_mul_u32_u24 v{30+j}, 10, v{24+j}'); a(f'v_sub_u32 v{8+j}, v{8+j}, v{30+j}')
        a(f'v_lshl_or_b32 v{8+j}, v{14+j}, 16, v{8+j}')
        a(f'v_add3_u32 v{8+j}, v{8+j}, v4, {16*j}')
        a(f'v_mul_u32_u24 v{24+j}, 80, v{24+j}')
    for j in range(5):
        a(f's_waitcnt lgkmcnt({4})' if j>0 else 's_waitcnt lgkmcnt(4)')
        a(f'v_min_u32 v{36+j}, {CAP-1}, v{36+j}'); a(f'v_lshl_add_u32 v{36+j}, v{36+j}, 2, v{24+j}')
        a(f'ds_write_b32 v{36+j}, v{8+j} offset:{4096+4}')
    a('s_mov_b64 exec, s[42:43]')
    a('v_lshrrev_b32 v5, 2, v0'); a('v_and_b32 v22, 3, v0')
    a('v_mul_u32_u24 v1, 80, v5'); a('v_lshl_add_u32 v1, v22, 4, v1'); a('v_add_u32 v2, 40960, v1')
    a('v_lshlrev_b32 v6, 2, v5')
    a('v_lshlrev_b32 v7, 12, v5'); a('v_lshl_add_u32 v7, v22, 4, v7')
    a('v_cmp_eq_u32 s[46:47], 0, v22'); a('v_lshlrev_b32 v22, 2, v22')
    a('s_lshl_b32 s44, s2, 6'); a(f's_add_u32 s44, s44, {OFF_META}')
    a('s_waitcnt lgkmcnt(0)'); a('s_barrier')
    stamp(a,4)
    for half in range(2):
        for j in range(4):
            jj=half*4+j
            a(f'ds_read_b128 v[{40+4*j}:{43+4*j}], v{1+half} offset:{4096+10240*j}')
            a(f'ds_read_b32 v{60+j}, v6 offset:{512*jj}')
        for j in range(4):
            a(f's_waitcnt lgkmcnt({6-2*j})')
            a(f'v_cndmask_b32 v{40+4*j}, v{40+4*j}, v{60+j}, s[46:47]')
            if OPT['skipq']:
                a(f'v_cmp_ge_u32 vcc, v{60+j}, v22'); a('s_mov_b64 exec, vcc')
            a(f'buffer_store_dwordx4 v[{40+4*j}:{43+4*j}], v7, s[24:27], s44 offen {ST}')
            if OPT['skipq']: a('s_mov_b64 exec, -1')
            a(f's_add_u32 s44, s44, {128*4096}')
        if half==0: a('s_waitcnt vmcnt(0)') if False else None
    fin(a,3,OFF_ST+(1<<20))
    a.label('K1_END')
    a('s_endpgm')
    return a

LCAP=1088; ARR=LCAP*4
WREG=512+2*ARR
WIMG=4*WREG; CIMG=WIMG+8*4736
K2_LDS=CIMG+16*160
def k2():
    a=Asm()
    stamp(a,0,True); stamp(a,1)
    a('s_load_dwordx16 s[4:19], s[0:1], 0')
    a('s_load_dwordx2 s[20:21], s[0:1], 72')
    a('s_lshr_b32 s40, s2, 3'); a('s_lshl_b32 s40, s40, 2'); a('s_and_b32 s41, s2, 3'); a('s_add_u32 s40, s40, s41')
    a('s_bfe_u32 s41, s2, 0x10002')
    a(f's_cmp_ge_u32 s40, {NBK//4}'); a('s_cbranch_scc1 K2_END')
    a('v_lshrrev_b32 v7, 6, v0'); a('v_readfirstlane_b32 s42, v7')
    a('v_and_b32 v7, 63, v0')
    a('s_lshl_b32 s40, s40, 2'); a('s_add_u32 s40, s40, s42')
    BO=16; ACC=32; SS=48; D0=56; D1=72; EE=88; XF=104; XR=120; BUF=[136,176,216]; MR=136
    a(f's_lshl_b32 s43, s40, 12'); a(f's_add_u32 s43, s43, {OFF_META}')
    a('v_lshlrev_b32 v15, 6, v7')
    a('v_and_b32 v52, 7, v0'); a('v_lshrrev_b32 v53, 3, v0')
    a('v_lshlrev_b32 v54, 8, v53'); a('v_lshl_add_u32 v54, v52, 4, v54')
    a('v_and_b32 v1, 15, v7'); a('v_lshrrev_b32 v55, 4, v7')
    a('v_lshlrev_b32 v14, 8, v1'); a('v_lshl_add_u32 v14, v55, 4, v14')
    a('s_lshl_b32 s45, s41, 7'); a('s_mul_i32 s46, s40, 2560')
    a('s_waitcnt lgkmcnt(0)')
    srd(a,24,20,21,WS_END)
    for j in range(4): a(f'buffer_load_dwordx4 v[{MR+4*j}:{MR+4*j+3}], v15, s[24:27], s43 offen offset:{16*j}')
    srd(a,64,16,17,272*256); srd(a,68,12,13,32768); srd(a,72,4,5,N*256)
    for j in range(4):
        a(f's_add_u32 s47, s45, {8192*j}')
        a(f'buffer_load_dwordx4 v[{D0+8*j}:{D0+8*j+3}], v54, s[64:67], s47 offen')
        a(f'buffer_load_dwordx4 v[{D0+8*j+4}:{D0+8*j+7}], v54, s[68:71], s47 offen')
    a('s_add_u32 s47, s45, 65536')
    a(f'buffer_load_dwordx4 v[{EE}:{EE+3}], v54, s[64:67], s47 offen')
    for s in range(4): a(f'buffer_load_dwordx4 v[{XF+4*s}:{XF+4*s+3}], v14, s[72:75], s46 offen offset:{64*s}')
    a(f's_mul_i32 s46, s41, {THALF}'); srd_off(a,28,20,21,'s46',THALF)
    a('s_mov_b32 s32, s6'); a('s_and_b32 s33, s7, 0xffff'); a('s_or_b32 s33, s33, 0x200000'); a(f's_mov_b32 s34, {E}'); a('s_mov_b32 s35, 0x20000')
    a(f's_mul_i32 s48, s42, {WREG}')
    a('v_lshrrev_b32 v4, 2, v7'); a('v_and_b32 v6, 3, v7'); a('v_lshlrev_b32 v5, 2, v6'); a('v_sub_u32 v5, v4, v5')
    a('v_lshlrev_b32 v2, 4, v5'); a('v_mov_b32 v8, 0x3f80'); a('v_mov_b32 v9, 0'); a('v_lshlrev_b64 v[8:9], v2, v[8:9]')
    a('v_cmp_gt_u32 vcc, 4, v5'); a('v_cndmask_b32 v8, 0, v8, vcc'); a('v_cndmask_b32 v9, 0, v9, vcc')
    a('v_lshl_add_u32 v2, v7, 3, s48'); a('ds_write_b64 v2, v[8:9]')
    a('v_lshl_add_u32 v12, v55, 4, s48'); a('v_add_u32 v12, 512, v12')
    a('v_lshl_add_u32 v13, v1, 2, s48'); a(f'v_add_u32 v13, {512+ARR}, v13')
    a('v_lshl_add_u32 v14, v4, 2, s48'); a(f'v_add_u32 v14, {512+ARR}, v14')
    a('v_lshlrev_b32 v9, 3, v55'); a('v_mov_b32 v11, v9'); a('v_add_u32 v5, s48, v9')
    a('v_lshl_add_u32 v6, v6, 3, s48')
    wimg_addrs(a,53,52,54,15)
    a('v_mul_u32_u24 v53, 160, v53'); a('v_lshl_add_u32 v53, v52, 4, v53')
    tr_addr(a,55,1,52,15)
    a('v_lshrrev_b32 v15, 2, v7'); a('v_mul_u32_u24 v55, 160, v15'); a('v_and_b32 v15, 3, v7'); a('v_lshl_add_u32 v55, v15, 3, v55')
    a('v_lshlrev_b32 v1, 4, v1')
    a(f'v_mul_u32_u24 v{XR}, {CE*512}, v7')
    a(f's_mov_b32 s53, {NLOG2E}'); a(f's_mov_b32 s52, {NLOG2E}'); a('s_mov_b32 s54, 1.0'); a('s_mov_b32 s55, 1.0'); a('s_mov_b32 s62, 5')
    a('s_mov_b32 s50, 0x0c070600'); a('s_mov_b32 s51, 0x1e0'); a('s_mov_b32 s49, 0')
    a('s_waitcnt vmcnt(13)')
    stamp(a,2)
    T=152
    a(f'v_cmp_lt_u32 s[56:57], {CAP}, v{MR}')
    a(f'v_cndmask_b32 v{MR}, v{MR}, 0, s[56:57]')
    a(f'v_mov_b32 v{T}, v{MR}')
    for sh in (1,2,4,8): a(f'v_add_u32_dpp v{T}, v{T}, v{T} row_shr:{sh} row_mask:0xf bank_mask:0xf bound_ctrl:0')
    a(f'v_add_u32_dpp v{T}, v{T}, v{T} row_bcast:15 row_mask:0xa bank_mask:0xf')
    a(f'v_add_u32_dpp v{T}, v{T}, v{T} row_bcast:31 row_mask:0xc bank_mask:0xf')
    a(f'v_readlane_b32 s58, v{T}, 63')
    a(f'v_sub_u32 v{T}, v{T}, v{MR}'); a(f'v_lshl_add_u32 v{T}, v{T}, 2, s48')
    for s in range(CAP):
        a(f'v_cmpx_lt_u32 vcc, {s}, v{MR}')
        if s>=4: a('s_cbranch_execz K2_CDONE')
        a(f'v_mad_u32_u16 v{T+1+s%2}, v{MR+1+s}, 32, v{XR}')
        a(f'ds_write_b32 v{T}, v{MR+1+s} offset:{512+4*s}'); a(f'ds_write_b32 v{T}, v{T+1+s%2} offset:{512+ARR+4*s}')
    a.label('K2_CDONE')
    a('s_mov_b64 exec, -1')
    stamp(a,3)
    a.label('K2_PROC')
    a(f'v_add_lshl_u32 v{T}, v7, s58, 2'); a(f'v_add_u32 v{T}, s48, v{T}'); a(f'v_mov_b32 v{T+1}, 0'); a(f'v_mov_b32 v{T+2}, 0x1e0')
    for j in range(2):
        a(f'ds_write_b32 v{T}, v{T+1} offset:{512+256*j}'); a(f'ds_write_b32 v{T}, v{T+2} offset:{512+ARR+256*j}')
    a('s_add_u32 s63, s58, 31'); a('s_lshr_b32 s63, s63, 5')
    a('s_max_u32 s59, s63, 3')
    a('v_mov_b32 v2, v12'); a('v_mov_b32 v3, v13'); a('v_mov_b32 v4, v14')
    def issue(S):
        G=S; A=S+32; W=XR
        a(f'ds_read_b128 v[{W}:{W+3}], v2'); a(f'ds_read_b128 v[{W+4}:{W+7}], v2 offset:64')
        a(f'ds_read2_b32 v[{W+8}:{W+9}], v3 offset0:0 offset1:16')
        a('v_add_u32 v2, 128, v2'); a('v_add_u32 v3, 128, v3')
        a('s_waitcnt lgkmcnt(1)')
        for i in range(8):
            a(f'v_perm_b32 v{W+i}, v{W+i}, v1, s50')
            a(f'buffer_load_dwordx4 v[{G+4*i}:{G+4*i+3}], v{W+i}, s[28:31], 0 offen')
        a('s_waitcnt lgkmcnt(0)')
        a(f'v_lshrrev_b32 v8, 9, v{W+8}'); a(f'v_lshrrev_b32 v10, 9, v{W+9}')
        a(f'v_and_or_b32 v{W+8}, v{W+8}, s51, v5'); a(f'v_and_or_b32 v{W+9}, v{W+9}, s51, v5')
        a(f'buffer_load_dwordx2 v[{A}:{A+1}], v[8:9], s[32:35], 0 idxen offen'); a(f'buffer_load_dwordx2 v[{A+4}:{A+5}], v[10:11], s[32:35], 0 idxen offen')
        a(f'ds_read_b64 v[{A+2}:{A+3}], v{W+8}'); a(f'ds_read_b64 v[{A+6}:{A+7}], v{W+9}')
    def compute(S):
        G=S; A=S+32; DD=[D0,D1]
        a(f'ds_read2_b32 v[{SS+4}:{SS+5}], v4 offset0:0 offset1:16'); a('v_add_u32 v4, 128, v4')
        for t in range(2):
            for b in range(4):
                for i in range(4): a(f'v_lshlrev_b32 v{DD[t]+4*b+i}, 16, v{G+16*t+4*i+b}')
            if t==1:
                a('s_waitcnt lgkmcnt(0)')
                a(f'v_and_or_b32 v{SS+4}, v{SS+4}, s51, v6'); a(f'v_and_or_b32 v{SS+5}, v{SS+5}, s51, v6')
                a(f'ds_read_b64_tr_b16 v[{SS}:{SS+1}], v{SS+4}'); a(f'ds_read_b64_tr_b16 v[{SS+2}:{SS+3}], v{SS+5}')
            for b in range(4):
                d=DD[t]+4*b
                a(f'v_mfma_f32_16x16x32_bf16 v[{d}:{d+3}], v[{A+4*t}:{A+4*t+3}], v[{BO+4*b}:{BO+4*b+3}], v[{d}:{d+3}]')
        for t in range(2):
            for b in range(4):
                for i in range(4): a(f'v_exp_f32 v{EE+4*i+b}, v{DD[t]+4*b+i}')
            for p in range(8): a(f'v_pk_add_f32 v[{EE+2*p}:{EE+2*p+1}], v[{EE+2*p}:{EE+2*p+1}], s[54:55]')
            for p in range(16): a(f'v_rcp_f32 v{EE+p}, v{EE+p}')
            for p in range(8): a(f'v_pk_mul_f32 v[{EE+2*p}:{EE+2*p+1}], v[{EE+2*p}:{EE+2*p+1}], v[{G+16*t+2*p}:{G+16*t+2*p+1}]')
            for b in range(4):
                m=D0+4*b+2*t
                a(f'v_cvt_pk_bf16_f32 v{m}, v{EE+b}, v{EE+4+b}'); a(f'v_cvt_pk_bf16_f32 v{m+1}, v{EE+8+b}, v{EE+12+b}')
        a('s_waitcnt lgkmcnt(0)')
        for b in range(4):
            a(f'v_mfma_f32_16x16x32_bf16 v[{ACC+4*b}:{ACC+4*b+3}], v[{SS}:{SS+3}], v[{D0+4*b}:{D0+4*b+3}], v[{ACC+4*b}:{ACC+4*b+3}]')
    for k in range(3): issue(BUF[k])
    a('s_cmp_lg_u32 s49, 0'); a('s_cbranch_scc1 K2_CHK')
    a('s_mov_b32 s49, 1')
    a('s_waitcnt vmcnt(34)')
    for j in range(4):
        a(f'ds_write_b128 v54, v[{D0+8*j}:{D0+8*j+3}] offset:{WIMG+9472*j}'); a(f'ds_write_b128 v54, v[{D0+8*j+4}:{D0+8*j+7}] offset:{WIMG+9472*j+128}')
    a(f'v_add_u32 v53, {CIMG}, v53'); a(f'v_add_u32 v55, {CIMG}, v55'); a(f'v_add_u32 v52, {WIMG}, v52')
    a('s_cmp_ge_u32 s42, 2'); a('s_cbranch_scc1 K2_NOC')
    a(f'ds_write_b128 v53, v[{EE}:{EE+3}]')
    a.label('K2_NOC')
    a('s_waitcnt lgkmcnt(0)'); a('s_barrier')
    for b in range(4): a(f'ds_read_b64_tr_b16 v[{EE+2*b}:{EE+2*b+1}], v55 offset:{32*b}')
    a('s_waitcnt vmcnt(30)')
    gemm_stream(a,52,XF,[D0,D1],lambda mm,b:(XR if mm==0 else ACC)+4*b)
    for b in range(4):
        for p in range(2):
            r=EE+2*b+p
            a(f'v_lshlrev_b32 v{EE+8}, 16, v{r}'); a(f'v_and_b32 v{EE+9}, 0xffff0000, v{r}')
            a(f'v_pk_mul_f32 v[{EE+8}:{EE+9}], v[{EE+8}:{EE+9}], s[52:53]')
            a(f'v_cvt_pk_bf16_f32 v{BO+4*b+p}, v{EE+8}, v{EE+9}')
    for b in range(4):
        for p in range(2):
            r=XR+4*b+2*p
            a(f'v_pk_mul_f32 v[{r}:{r+1}], v[{r}:{r+1}], s[52:53]')
            a(f'v_cvt_pk_bf16_f32 v{BO+4*b+2+p}, v{r}, v{r+1}')
    a.settle()
    stamp(a,4)
    a.label('K2_CHK')
    a('s_cmp_eq_u32 s63, 0'); a('s_cbranch_scc1 K2_NEXT')
    a.label('K2_LOOP')
    for k in range(3):
        a('s_cmp_ge_u32 s59, 3'); a(f's_cbranch_scc1 K2_W20_{k}')
        a('s_cmp_eq_u32 s59, 2'); a(f's_cbranch_scc1 K2_W10_{k}')
        a('s_waitcnt vmcnt(0)')
        a.label(f'K2_W10_{k}')
        a('s_waitcnt vmcnt(10)')
        a.label(f'K2_W20_{k}')
        a('s_waitcnt vmcnt(20) lgkmcnt(0)')
        compute(BUF[k])
        a('s_sub_u32 s59, s59, 1'); a('s_sub_u32 s63, s63, 1')
        a('s_cmp_lt_u32 s63, 3'); a(f's_cbranch_scc1 K2_NI_{k}')
        issue(BUF[k])
        a.label(f'K2_NI_{k}')
        a('s_cmp_eq_u32 s63, 0')
        if k<2: a('s_cbranch_scc1 K2_NEXT')
        else: a('s_cbranch_scc0 K2_LOOP')
    a.label('K2_NEXT')
    a.nop(8)
    a('s_cmp_lt_u32 s62, 5'); a('s_cbranch_scc1 K2_SLOW')
    a('s_cmp_eq_u64 s[56:57], 0'); a('s_cbranch_scc1 K2_FINAL')
    a('s_mov_b32 s62, 0')
    a('s_ff1_i32_b64 s60, s[56:57]'); a('s_bitset0_b64 s[56:57], s60'); a(f's_mul_i32 s61, s60, {CE}')
    a.label('K2_SLOW')
    a('s_waitcnt vmcnt(0) lgkmcnt(0)')
    srd(a,68,10,11,E*4); srd(a,72,8,9,E*4)
    a('s_mul_i32 s64, s62, 500'); a('s_add_u32 s64, s64, s61'); a('s_lshl_b32 s65, s64, 2')
    a(f'v_lshlrev_b32 v{T}, 4, v7')
    a(f'buffer_load_dwordx4 v[{MR}:{MR+3}], v{T}, s[68:71], s65 offen'); a(f'buffer_load_dwordx4 v[{MR+4}:{MR+7}], v{T}, s[68:71], s65 offen offset:1024')
    a(f'buffer_load_dwordx4 v[{MR+8}:{MR+11}], v{T}, s[72:75], s65 offen'); a(f'buffer_load_dwordx4 v[{MR+12}:{MR+15}], v{T}, s[72:75], s65 offen offset:1024')
    a('s_mov_b32 s58, 0'); a('s_add_u32 s62, s62, 1'); a('s_mul_i32 s66, s40, 10')
    a('s_waitcnt vmcnt(0)')
    for r in range(8):
        idx=256*(r//4)+(r%4)
        a(f'v_lshlrev_b32 v{T+1}, 2, v7'); a(f'v_add_u32 v{T+1}, {idx}, v{T+1}')
        a(f'v_mov_b32 v{T+2}, 500'); a(f'v_cmp_lt_u32 s[76:77], v{T+1}, v{T+2}')
        a(f'v_subrev_u32 v{T+2}, s66, v{MR+r}'); a(f'v_cmp_gt_u32 vcc, 10, v{T+2}')
        a('s_and_b64 vcc, vcc, s[76:77]')
        a(f'v_lshlrev_b32 v{T+3}, 16, v{MR+8+r}')
        a(f'v_add_lshl_u32 v{T+4}, v{T+1}, s64, 9'); a(f'v_lshl_add_u32 v{T+4}, v{T+2}, 5, v{T+4}')
        a(f'v_mbcnt_lo_u32_b32 v{T+5}, vcc_lo, 0'); a(f'v_mbcnt_hi_u32_b32 v{T+5}, vcc_hi, v{T+5}')
        a(f'v_add_lshl_u32 v{T+5}, v{T+5}, s58, 2'); a(f'v_add_u32 v{T+5}, s48, v{T+5}')
        a('s_bcnt1_i32_b64 s67, vcc'); a('s_add_u32 s58, s58, s67')
        a('s_mov_b64 exec, vcc')
        a(f'ds_write_b32 v{T+5}, v{T+3} offset:512'); a(f'ds_write_b32 v{T+5}, v{T+4} offset:{512+ARR}')
        a('s_mov_b64 exec, -1')
    a('s_branch K2_PROC')
    a.label('K2_FINAL')
    stamp(a,5)
    a('v_lshrrev_b32 v15, 4, v7'); a('v_mul_u32_u24 v2, 1088, v15'); a('v_lshrrev_b32 v3, 2, v1'); a('v_add3_u32 v2, v2, v3, s48')
    for b in range(4):
        for i in range(4): a(f'ds_write_b32 v2, v{ACC+4*b+i} offset:{512+272*i+64*b}')
    a('v_mul_u32_u24 v4, 272, v15'); a('v_add3_u32 v4, v4, v1, s48')
    for j in range(3): a(f'ds_read_b128 v[{D0+4*j}:{D0+4*j+3}], v4 offset:{512+1088*j}')
    a('v_lshlrev_b32 v6, 8, v15'); a('v_lshrrev_b32 v3, 1, v1'); a('v_add_u32 v6, v6, v3')
    a('s_mul_i32 s44, s40, 2560'); a('s_add_u32 s44, s44, s45')
    srd_off(a,24,18,19,'s44',2560-128)
    a('s_waitcnt lgkmcnt(0)')
    for p in range(6): a(f'v_pk_mul_f32 v[{D1+2*p}:{D1+2*p+1}], v[{D0+2*p}:{D0+2*p+1}], s[52:53]')
    for i in range(12): a(f'v_exp_f32 v{D1+i}, v{D1+i}')
    for p in range(6): a(f'v_pk_add_f32 v[{D1+2*p}:{D1+2*p+1}], v[{D1+2*p}:{D1+2*p+1}], s[54:55]')
    for i in range(12): a(f'v_rcp_f32 v{D1+i}, v{D1+i}')
    for p in range(6): a(f'v_pk_mul_f32 v[{D0+2*p}:{D0+2*p+1}], v[{D0+2*p}:{D0+2*p+1}], v[{D1+2*p}:{D1+2*p+1}]')
    for p in range(6): a(f'v_cvt_pk_bf16_f32 v{EE+p}, v{D0+2*p}, v{D0+2*p+1}')
    for j in range(3): a(f'buffer_store_dwordx2 v[{EE+2*j}:{EE+2*j+1}], v6, s[24:27], 0 offen offset:{1024*j}')
    if gen1.STAMP:
        a('s_waitcnt vmcnt(0)'); stamp(a,6); stamp(a,7,True)
        a('s_lshl_b32 s79, s2, 2'); a('s_add_u32 s79, s79, s42'); stamp_out(a,8,'s79',OFF_ST,30)
    a.label('K2_END')
    a('s_endpgm')
    return a
def mk(path):
    build([('prep_kernel',k1(),CH+160,512,K1_LDS+2048),(NAME+'_kernel',k2(),504,256,K2_LDS)],path)
if __name__=='__main__':
    for arg in sys.argv[2:]:
        if arg=='stamp': gen1.STAMP=True
        else:
            k,v=arg.split('='); OPT[k]=eval(v)
    mk(sys.argv[1])
```

```python
import sys, struct
from asmlib import Asm
import gen1
from gen1 import srd, srd_off, f2u, build, NAME, stamp, stamp_out, OFF_ST
N=10000;E=160000;NBK=1000;CH=64;CE=2500;CAP=15
THALF=N*256
OFF_META=2*THALF
WS_END=OFF_META+NBK*4096
NLOG2E=f2u(-1.4426950408889634)
TINY=f2u(2.0**-100)
OPT=dict(st='',skipq=False,pref=False,exp='',eld='',mld='',xld='',tld='',mq=2,early=True,prio=True)
NG=79
K1_LDS=81920+4096
def wimg_addrs(a,vrow,vpiece,vdst,vt):
    a(f'v_lshrrev_b32 v{vdst}, 4, v{vrow}'); a(f'v_mul_u32_u24 v{vdst}, 4736, v{vdst}')
    a(f'v_and_b32 v{vt}, 15, v{vrow}'); a(f'v_mul_u32_u24 v{vt}, 288, v{vt}'); a(f'v_add_u32 v{vdst}, v{vdst}, v{vt}')
    a(f'v_bfe_u32 v{vt}, v{vrow}, 3, 1'); a(f'v_lshl_add_u32 v{vdst}, v{vt}, 7, v{vdst}'); a(f'v_lshl_add_u32 v{vdst}, v{vpiece}, 4, v{vdst}')
def tr_addr(a,vq,vc,vdst,vt):
    a(f'v_lshrrev_b32 v{vdst}, 1, v{vq}'); a(f'v_mul_u32_u24 v{vdst}, 4736, v{vdst}')
    a(f'v_and_b32 v{vt}, 1, v{vq}'); a(f'v_mul_u32_u24 v{vt}, 2432, v{vt}'); a(f'v_add_u32 v{vdst}, v{vdst}, v{vt}')
    a(f'v_lshrrev_b32 v{vt}, 2, v{vc}'); a(f'v_mul_u32_u24 v{vt}, 288, v{vt}'); a(f'v_add_u32 v{vdst}, v{vdst}, v{vt}')
    a(f'v_and_b32 v{vt}, 3, v{vc}'); a(f'v_lshl_add_u32 v{vdst}, v{vt}, 3, v{vdst}')
def gemm_stream(a,vtr,XF,slots,dres,base=0):
    hs=[(s,mm) for s in range(4) for mm in range(2)]
    def rd(h):
        s,mm=hs[h]; sl=slots[h%len(slots)]
        for b in range(4):
            for u in range(2):
                r=sl+4*b+2*u
                a(f'ds_read_b64_tr_b16 v[{r}:{r+1}], v{vtr} offset:{base+s*9472+u*1152+mm*128+b*32}')
    rd(0)
    for h in range(8):
        if h+1<8: rd(h+1); a('s_waitcnt lgkmcnt(8)')
        else: a('s_waitcnt lgkmcnt(0)')
        s,mm=hs[h]; sl=slots[h%len(slots)]
        for b in range(4):
            d=dres(mm,b); c='0' if s==0 else f'v[{d}:{d+3}]'
            a(f'v_mfma_f32_16x16x32_bf16 v[{d}:{d+3}], v[{XF+4*s}:{XF+4*s+3}], v[{sl+4*b}:{sl+4*b+3}], {c}')
def fin(a,wpw_shift,base):
    if gen1.STAMP:
        stamp(a,5); a('s_waitcnt vmcnt(0)'); stamp(a,6); stamp(a,7,True)
        a('v_lshrrev_b32 v70, 6, v0'); a('v_readfirstlane_b32 s78, v70')
        a(f's_lshl_b32 s79, s2, {wpw_shift}'); a('s_add_u32 s79, s79, s78'); stamp_out(a,8,'s79',base,70)
def k1():
    a=Asm(); ST=OPT['st']
    stamp(a,0,True); stamp(a,1)
    a('s_load_dwordx16 s[4:19], s[0:1], 0')
    a('s_load_dwordx2 s[20:21], s[0:1], 72')
    a(f's_cmp_ge_u32 s2, {CH+160}'); a('s_cbranch_scc1 K1_END')
    a(f's_cmp_lt_u32 s2, {CH}'); a('s_cbranch_scc1 K1_SORT')
    a(f's_sub_u32 s3, s2, {CH}')
    a('s_and_b32 s40, s3, 7'); a('s_lshr_b32 s41, s3, 4'); a('s_lshl_b32 s41, s41, 3'); a('s_add_u32 s40, s40, s41')
    a('s_bfe_u32 s42, s3, 0x10003')
    a(f's_cmp_ge_u32 s40, {NG}'); a('s_cbranch_scc1 K1_END')
    a('v_and_b32 v1, 7, v0'); a('v_lshrrev_b32 v2, 3, v0')
    a('v_lshlrev_b32 v3, 8, v2'); a('v_lshl_add_u32 v3, v1, 4, v3'); a('v_add_u32 v4, 16384, v3')
    a('v_lshrrev_b32 v5, 6, v0'); a('v_readfirstlane_b32 s48, v5')
    a('v_and_b32 v6, 63, v0'); a('v_and_b32 v7, 15, v6'); a('v_lshrrev_b32 v5, 4, v6')
    a('s_lshl_b32 s49, s40, 3'); a('s_add_u32 s49, s49, s48'); a('s_lshl_b32 s50, s49, 12')
    a('v_lshlrev_b32 v24, 8, v7'); a('v_lshl_add_u32 v24, v5, 4, v24')
    a('s_lshl_b32 s45, s42, 7')
    a('s_waitcnt lgkmcnt(0)')
    srd_off(a,28,16,17,32768,32768); srd(a,32,14,15,32768); srd(a,36,4,5,N*256)
    a('buffer_load_dwordx4 v[8:11], v3, s[28:31], s45 offen'); a('buffer_load_dwordx4 v[12:15], v4, s[28:31], s45 offen')
    a('buffer_load_dwordx4 v[16:19], v3, s[32:35], s45 offen'); a('buffer_load_dwordx4 v[20:23], v4, s[32:35], s45 offen')
    XF=28
    for s in range(4): a(f'buffer_load_dwordx4 v[{XF+4*s}:{XF+4*s+3}], v24, s[36:39], s50 offen offset:{64*s}')
    if OPT['pref']:
        srd(a,60,6,7,E*32)
        a('s_mul_i32 s64, s3, 32768'); a('v_lshlrev_b32 v100, 4, v0')
        for j in range(4):
            a(f'buffer_load_dwordx4 v[{104+4*j}:{107+4*j}], v100, s[60:63], s64 offen'); a('s_add_u32 s64, s64, 8192')
    np_=4 if OPT['pref'] else 0
    wimg_addrs(a,2,1,25,26); tr_addr(a,5,7,26,27)
    a(f's_mov_b32 s52, {NLOG2E}'); a(f's_mov_b32 s53, {NLOG2E}'); a(f's_mov_b32 s57, {TINY}')
    a('s_mov_b32 s58, 0x80008000'); a('s_mov_b32 s54, 0x07060100'); a('s_mov_b32 s55, 0x07060302'); a('s_mov_b32 s59, 0x80000000')
    a(f's_mul_i32 s56, s42, {THALF}'); srd_off(a,24,20,21,'s56',THALF)
    a(f's_waitcnt vmcnt({7+np_})'); a('ds_write_b128 v25, v[8:11]')
    a(f's_waitcnt vmcnt({6+np_})'); a(f'ds_write_b128 v25, v[12:15] offset:{4*4736}')
    a(f's_waitcnt vmcnt({5+np_})'); a('ds_write_b128 v25, v[16:19] offset:128')
    a(f's_waitcnt vmcnt({4+np_})'); a(f'ds_write_b128 v25, v[20:23] offset:{4*4736+128}')
    stamp(a,2)
    a('s_waitcnt lgkmcnt(0)'); a('s_barrier')
    a(f's_waitcnt vmcnt({np_})')
    stamp(a,3)
    D0=44
    dd=lambda mm,b: D0+(mm*4+b)*4
    gemm_stream(a,26,XF,[76,8],dd) if False else gemm_stream(a,26,XF,[76,92],dd)
    stamp(a,4)
    a('v_lshlrev_b32 v9, 10, v5'); a('v_lshl_add_u32 v9, v7, 4, v9')
    for b in range(4):
        d=dd(0,b)
        a(f'v_pk_mul_f32 v[{d}:{d+1}], v[{d}:{d+1}], s[52:53]'); a(f'v_pk_mul_f32 v[{d+2}:{d+3}], v[{d+2}:{d+3}], s[52:53]')
    for i in range(4):
        o=12+(i%2)*12
        for bp in range(2):
            a(f'v_cvt_pk_bf16_f32 v{o+4+bp}, v{dd(0,2*bp)+i}, v{dd(0,2*bp+1)+i}')
        for b in range(4): a(f'v_max_f32 v{o+8+b}, |v{dd(1,b)+i}|, s57')
        for bp in range(2): a(f'v_xor_b32 v{o+6+bp}, s58, v{o+4+bp}')
        for b in range(4):
            a(f'v_sub_u32_sdwa v{o+8+b}, v{o+8+b}, sext(v{o+6+b//2}) dst_sel:DWORD dst_unused:UNUSED_PAD src0_sel:DWORD src1_sel:WORD_{b%2}')
        for b in range(4): a(f'v_perm_b32 v{o+b}, v{o+8+b}, v{o+4+b//2}, s{54+b%2}')
        for b in range(4): a(f'v_and_or_b32 v{o+b}, v{dd(1,b)+i}, s59, v{o+b}')
        a(f'buffer_store_dwordx4 v[{o}:{o+3}], v9, s[24:27], s50 offen offset:{256*i} {ST}')
    fin(a,3,OFF_ST+(1<<20))
    a('s_endpgm')
    a.label('K1_SORT')
    a(f's_mul_i32 s40, s2, {CE*4}')
    a('v_mul_u32_u24 v1, 20, v0')
    a('v_mov_b32 v20, 0'); a('v_mov_b32 v21, 0'); a('v_lshlrev_b32 v2, 3, v0')
    a('ds_write_b64 v2, v[20:21] offset:0')
    a('s_waitcnt lgkmcnt(0)')
    srd(a,28,10,11,E*4); srd(a,32,8,9,E*4); srd(a,24,20,21,WS_END)
    a('buffer_load_dwordx4 v[8:11], v1, s[28:31], s40 offen'); a('buffer_load_dword v12, v1, s[28:31], s40 offen offset:16')
    a('buffer_load_dwordx4 v[14:17], v1, s[32:35], s40 offen'); a('buffer_load_dword v18, v1, s[32:35], s40 offen offset:16')
    a('v_mov_b32 v3, 1'); a('v_mul_u32_u24 v4, 80, v0')
    a('s_barrier')
    a(f'v_cmp_gt_u32 vcc, {CE//5}, v0'); a('s_and_saveexec_b64 s[42:43], vcc')
    stamp(a,2)
    a('s_waitcnt vmcnt(2)')
    stamp(a,3)
    for j in range(5):
        a(f'v_mul_u32_u24 v{24+j}, 52429, v{8+j}'); a(f'v_lshrrev_b32 v{24+j}, 19, v{24+j}')
        a(f'v_lshlrev_b32 v{30+j}, 2, v{24+j}')
        a(f'ds_add_rtn_u32 v{36+j}, v{30+j}, v3')
    a('s_waitcnt vmcnt(0)')
    for j in range(5):
        a(f'v_mul_u32_u24 v{30+j}, 10, v{24+j}'); a(f'v_sub_u32 v{8+j}, v{8+j}, v{30+j}')
        a(f'v_lshl_or_b32 v{8+j}, v{14+j}, 16, v{8+j}')
        a(f'v_add3_u32 v{8+j}, v{8+j}, v4, {16*j}')
        a(f'v_mul_u32_u24 v{24+j}, 80, v{24+j}')
    for j in range(5):
        a(f's_waitcnt lgkmcnt({4})' if j>0 else 's_waitcnt lgkmcnt(4)')
        a(f'v_min_u32 v{36+j}, {CAP-1}, v{36+j}'); a(f'v_lshl_add_u32 v{36+j}, v{36+j}, 2, v{24+j}')
        a(f'ds_write_b32 v{36+j}, v{8+j} offset:{4096+4}')
    a('s_mov_b64 exec, s[42:43]')
    a('v_mul_u32_u24 v1, 80, v0'); a('v_lshlrev_b32 v6, 2, v0'); a('v_lshlrev_b32 v7, 12, v0')
    a('s_and_b32 s44, s2, 7'); a('s_lshl_b32 s44, s44, 3'); a('s_lshr_b32 s45, s2, 3'); a('s_add_u32 s44, s44, s45')
    a('s_lshl_b32 s44, s44, 4'); a(f's_add_u32 s44, s44, {OFF_META}'); a(f's_add_u32 s45, s44, {512*4096}')
    a('s_waitcnt lgkmcnt(0)'); a('s_barrier')
    stamp(a,4)
    for h in range(2):
        a(f'ds_read_b32 v{60+h}, v6 offset:{2048*h}')
        for q in range(2): a(f'ds_read_b128 v[{40+8*h+4*q}:{43+8*h+4*q}], v1 offset:{4096+40960*h+16*q}')
    for h in range(2):
        a(f's_waitcnt lgkmcnt({3-3*h})')
        a(f'v_mov_b32 v{40+8*h}, v{60+h}')
        a(f'v_cmp_lt_u32 vcc, 3, v{60+h}')
        a(f'buffer_store_dwordx4 v[{40+8*h}:{43+8*h}], v7, s[24:27], s{44+h} offen {ST}')
        a('s_mov_b64 exec, vcc')
        a(f'buffer_store_dwordx4 v[{44+8*h}:{47+8*h}], v7, s[24:27], s{44+h} offen offset:1024 {ST}')
        a('s_mov_b64 exec, -1')
    for h in range(2):
        a(f'v_cmp_lt_u32 vcc, 7, v{60+h}'); a('s_and_saveexec_b64 s[42:43], vcc'); a(f's_cbranch_execz K1_SK{h}')
        for q in range(2,4): a(f'ds_read_b128 v[{16+8*h+4*q}:{19+8*h+4*q}], v1 offset:{4096+40960*h+16*q}')
        a('s_waitcnt lgkmcnt(0)')
        for q in range(2,4): a(f'buffer_store_dwordx4 v[{16+8*h+4*q}:{19+8*h+4*q}], v7, s[24:27], s{44+h} offen offset:{1024*q} {ST}')
        a.label(f'K1_SK{h}')
        a('s_mov_b64 exec, s[42:43]')
    fin(a,3,OFF_ST+(1<<20))
    a.label('K1_END')
    a('s_endpgm')
    return a

LCAP=1088; ARR=LCAP*4
EB=512+2*ARR
WREG=EB+3072
XIMG=8*WREG; WIMG=XIMG+96*256; CIMG=WIMG+8*4736
K2_LDS=CIMG+16*160
NL=9
def k2():
    a=Asm()
    stamp(a,0,True); stamp(a,1)
    a('s_load_dwordx16 s[4:19], s[0:1], 0')
    a('s_load_dwordx2 s[20:21], s[0:1], 72')
    if OPT['prio']==2: a('s_setprio 3')
    a('s_lshr_b32 s40, s2, 3'); a('s_lshl_b32 s40, s40, 2'); a('s_and_b32 s41, s2, 3'); a('s_add_u32 s40, s40, s41')
    a('s_bfe_u32 s41, s2, 0x10002')
    a(f's_cmp_ge_u32 s40, {NBK//8}'); a('s_cbranch_scc1 K2_END')
    a('v_lshrrev_b32 v7, 6, v0'); a('v_readfirstlane_b32 s42, v7')
    a('v_and_b32 v7, 63, v0')
    a('s_mul_i32 s46, s40, 80')
    a('s_lshl_b32 s40, s40, 3'); a('s_add_u32 s40, s40, s42')
    BO=16; ACC=32; SS=48; D0=56; D1=72; EE=88; AF=104; XF=104; XR=120; BUF=[136,168,200]; MR=136; X=232
    a(f's_lshl_b32 s43, s40, 12'); a(f's_add_u32 s43, s43, {OFF_META}')
    a('v_lshlrev_b32 v15, 4, v7')
    a('v_and_b32 v52, 7, v0'); a('v_lshrrev_b32 v53, 3, v0')
    a('v_lshlrev_b32 v54, 8, v53'); a('v_lshl_add_u32 v54, v52, 4, v54')
    a('v_and_b32 v1, 15, v7'); a('v_lshrrev_b32 v55, 4, v7')
    a('s_mul_i32 s47, s42, 12'); a('s_add_u32 s46, s46, s47')
    a(f'v_lshlrev_b32 v{X+3}, 2, v55'); a(f'v_xor_b32 v{X+3}, v{X+3}, v1'); a(f'v_lshlrev_b32 v{X+3}, 4, v{X+3}')
    for j in range(3):
        a(f'v_add3_u32 v{X+j}, v55, s46, {4*j}'); a(f'v_min_u32 v{X+j}, {N-1}, v{X+j}'); a(f'v_lshl_add_u32 v{X+j}, v{X+j}, 8, v{X+3}')
    a('s_lshl_b32 s45, s41, 7')
    a(f's_mul_i32 s48, s42, {WREG}')
    a(f's_mul_i32 s36, s42, 3072'); a(f's_add_u32 s36, s36, {XIMG}')
    a('s_waitcnt lgkmcnt(0)')
    srd(a,24,20,21,WS_END)
    MQ=OPT['mq']
    for j in range(MQ): a(f'buffer_load_dwordx4 v[{MR+4*j}:{MR+4*j+3}], v15, s[24:27], s43 offen offset:{1024*j} {OPT["mld"]}')
    srd(a,64,16,17,272*256); srd(a,68,12,13,32768); srd(a,72,4,5,N*256)
    a(f's_mul_i32 s46, s41, {THALF}'); srd_off(a,28,20,21,'s46',THALF)
    a('s_mov_b32 s32, s6'); a('s_and_b32 s33, s7, 0xffff'); a('s_or_b32 s33, s33, 0x200000'); a(f's_mov_b32 s34, {E}'); a('s_mov_b32 s35, 0x20000')
    a('v_lshrrev_b32 v4, 2, v7'); a('v_and_b32 v6, 3, v7'); a('v_lshlrev_b32 v5, 2, v6'); a('v_sub_u32 v5, v4, v5')
    a('v_lshlrev_b32 v2, 4, v5'); a('v_mov_b32 v8, 0x3f80'); a('v_mov_b32 v9, 0'); a('v_lshlrev_b64 v[8:9], v2, v[8:9]')
    a('v_cmp_gt_u32 vcc, 4, v5'); a('v_cndmask_b32 v8, 0, v8, vcc'); a('v_cndmask_b32 v9, 0, v9, vcc')
    a('v_lshl_add_u32 v2, v7, 3, s48'); a('ds_write_b64 v2, v[8:9]')
    a('s_cmp_ge_u32 s42, 2'); a('s_cbranch_scc1 K2_NOC0')
    a('s_add_u32 s47, s45, 65536')
    a(f'buffer_load_dwordx4 v[{EE}:{EE+3}], v54, s[64:67], s47 offen')
    a.label('K2_NOC0')
    a('s_add_u32 s47, s45, 16384'); a('s_mov_b32 m0, s36')
    for j in range(2):
        a(f'buffer_load_dwordx4 v[{D0+8*j}:{D0+8*j+3}], v54, s[64:67], s{45+2*j} offen')
        a(f'buffer_load_dwordx4 v[{D0+8*j+4}:{D0+8*j+7}], v54, s[68:71], s{45+2*j} offen')
    for j in range(3):
        a(f'buffer_load_dwordx4 v{X+j}, s[72:75], 0 offen {OPT["xld"]} lds')
        if j<2: a('s_add_u32 m0, m0, 1024'); a('s_nop 0')
    a('v_lshl_add_u32 v12, v55, 4, s48'); a('v_add_u32 v12, 512, v12')
    a('v_lshl_add_u32 v13, v1, 2, s48'); a(f'v_add_u32 v13, {512+ARR}, v13')
    a('v_lshl_add_u32 v14, v4, 2, s48'); a(f'v_add_u32 v14, {512+ARR}, v14')
    a('v_lshl_add_u32 v5, v55, 3, s48')
    a(f'v_lshl_add_u32 v11, v1, 5, v5')
    a('v_lshl_add_u32 v6, v6, 3, s48')
    a('v_and_b32 v9, 1, v7'); a('v_lshlrev_b32 v9, 4, v9')
    wimg_addrs(a,53,52,54,15)
    a('v_mul_u32_u24 v53, 160, v53'); a('v_lshl_add_u32 v53, v52, 4, v53')
    tr_addr(a,55,1,52,15)
    a('s_mul_i32 s47, s42, 10'); a(f'v_add_u32 v{X+4}, s47, v1'); a(f'v_and_b32 v15, 3, v{X+4}')
    a(f'v_lshlrev_b32 v{X+4}, 8, v{X+4}'); a(f'v_lshl_add_u32 v{X+4}, v15, 6, v{X+4}'); a(f'v_lshl_add_u32 v{X+4}, v55, 4, v{X+4}'); a(f'v_add_u32 v{X+4}, {XIMG}, v{X+4}')
    for s in range(1,4): a(f'v_xor_b32 v{X+4+s}, {64*s}, v{X+4}')
    a('v_mul_u32_u24 v55, 160, v4'); a('v_and_b32 v15, 3, v7'); a('v_lshl_add_u32 v55, v15, 3, v55')
    a(f'v_add_u32 v53, {CIMG}, v53'); a(f'v_add_u32 v55, {CIMG}, v55'); a(f'v_add_u32 v52, {WIMG}, v52'); a(f'v_add_u32 v54, {WIMG}, v54')
    a('v_lshrrev_b32 v15, 1, v7'); a('v_lshl_add_u32 v15, v15, 2, s48'); a(f'v_add_u32 v15, {512+ARR}, v15')
    a('v_lshlrev_b32 v1, 4, v1')
    a(f'v_and_b32 v{XR}, 7, v7'); a(f'v_lshrrev_b32 v{XR+1}, 3, v7'); a(f'v_lshl_add_u32 v{XR}, v{XR}, 3, v{XR+1}')
    a(f'v_mul_u32_u24 v{XR}, {CE*512}, v{XR}')
    a(f's_mov_b32 s53, {NLOG2E}'); a(f's_mov_b32 s52, {NLOG2E}'); a('s_mov_b32 s54, 1.0'); a('s_mov_b32 s55, 1.0'); a('s_mov_b32 s62, 5')
    if 'g' in OPT['exp']: a('s_and_b32 s78, s2, 3'); a('s_mul_i32 s78, s78, 40000')
    a('s_mov_b32 s50, 0x0c070600'); a('s_mov_b32 s51, 0x1e0'); a('s_mov_b32 s49, 0')
    for k in range(3): a(f's_add_u32 s{36+k}, s48, {EB+1024*k}')
    a('s_waitcnt vmcnt(7)')
    stamp(a,2)
    T=152
    a(f'v_cmp_lt_u32 s[56:57], {CAP}, v{MR}')
    a(f'v_cndmask_b32 v{MR}, v{MR}, 0, s[56:57]')
    a(f'v_mov_b32 v{T}, v{MR}')
    for sh in (1,2,4,8): a(f'v_add_u32_dpp v{T}, v{T}, v{T} row_shr:{sh} row_mask:0xf bank_mask:0xf bound_ctrl:0')
    a(f'v_add_u32_dpp v{T}, v{T}, v{T} row_bcast:15 row_mask:0xa bank_mask:0xf')
    a(f'v_add_u32_dpp v{T}, v{T}, v{T} row_bcast:31 row_mask:0xc bank_mask:0xf')
    a(f'v_readlane_b32 s58, v{T}, 63')
    a(f'v_sub_u32 v{T}, v{T}, v{MR}'); a(f'v_lshl_add_u32 v{T}, v{T}, 2, s48')
    for s in range(CAP):
        a(f'v_cmpx_lt_u32 vcc, {s}, v{MR}')
        if s>=4: a('s_cbranch_execz K2_CDONE')
        if MQ<4 and s==4*MQ-1:
            a(f'v_lshlrev_b32 v{T+3}, 4, v7')
            for j in range(MQ,4): a(f'buffer_load_dwordx4 v[{MR+4*j}:{MR+4*j+3}], v{T+3}, s[24:27], s43 offen offset:{1024*j}')
            a('s_waitcnt vmcnt(0)')
        a(f'v_mad_u32_u16 v{T+1+s%2}, v{MR+1+s}, 32, v{XR}')
        a(f'ds_write_b32 v{T}, v{MR+1+s} offset:{512+4*s}'); a(f'ds_write_b32 v{T}, v{T+1+s%2} offset:{512+ARR+4*s}')
    a.label('K2_CDONE')
    a('s_mov_b64 exec, -1')
    a.label('K2_PROC')
    a(f'v_add_lshl_u32 v{T}, v7, s58, 2'); a(f'v_add_u32 v{T}, s48, v{T}'); a(f'v_mov_b32 v{T+1}, 0'); a(f'v_mov_b32 v{T+2}, 0x1e0')
    for j in range(2):
        a(f'ds_write_b32 v{T}, v{T+1} offset:{512+256*j}'); a(f'ds_write_b32 v{T}, v{T+2} offset:{512+ARR+256*j}')
    a('s_add_u32 s63, s58, 31'); a('s_lshr_b32 s63, s63, 5')
    a('s_max_u32 s59, s63, 2')
    a('v_mov_b32 v2, v12'); a('v_mov_b32 v3, v13'); a('v_mov_b32 v4, v14'); a('v_mov_b32 v10, v15')
    def issue(k,W=XR):
        G=BUF[k]
        a(f'ds_read_b128 v[{W}:{W+3}], v2 offset:{128*k}'); a(f'ds_read_b128 v[{W+4}:{W+7}], v2 offset:{128*k+64}')
        a(f'ds_read_b32 v8, v10 offset:{128*k}')
        a(f's_mov_b32 m0, s{36+k}')
        a('s_waitcnt lgkmcnt(1)')
        for i in range(8):
            a(f'v_perm_b32 v{W+i}, v{W+i}, v1, s50')
            if 't' in OPT['exp']: a(f'v_and_b32 v{W+i}, 0x3fff, v{W+i}')
            a(f'buffer_load_dwordx4 v[{G+4*i}:{G+4*i+3}], v{W+i}, s[28:31], 0 offen {OPT["tld"]}')
        a('s_waitcnt lgkmcnt(0)')
        a(f'v_lshrrev_b32 v8, 9, v8')
        if 'g' in OPT['exp']: a('v_lshrrev_b32 v8, 2, v8'); a('v_add_u32 v8, s78, v8')
        if 'e' in OPT['exp']: a('v_and_b32 v8, 63, v8')
        a(f'buffer_load_dwordx4 v[8:9], s[32:35], 0 idxen offen {OPT["eld"]} lds')
    def compute(k):
        G=BUF[k]; A=AF; DD=[D0,D1]
        a(f'ds_read2_b32 v[{SS+4}:{SS+5}], v3 offset0:{32*k} offset1:{32*k+16}')
        a(f'ds_read2_b32 v[{SS+6}:{SS+7}], v4 offset0:{32*k} offset1:{32*k+16}')
        for t in range(2): a(f'ds_read_b64 v[{A+4*t}:{A+4*t+1}], v11 offset:{EB+1024*k+512*t}')
        for t in range(2):
            for b in range(4):
                for i in range(4): a(f'v_lshlrev_b32 v{DD[t]+4*b+i}, 16, v{G+16*t+4*i+b}')
            if t==0:
                a('s_waitcnt lgkmcnt(2)')
                for u in range(2): a(f'v_and_or_b32 v{SS+4+u}, v{SS+4+u}, s51, v5')
                for u in range(2): a(f'ds_read_b64 v[{A+4*u+2}:{A+4*u+3}], v{SS+4+u}')
                for u in range(2): a(f'v_and_or_b32 v{SS+6+u}, v{SS+6+u}, s51, v6')
                for u in range(2): a(f'ds_read_b64_tr_b16 v[{SS+2*u}:{SS+2*u+1}], v{SS+6+u}')
        a('s_waitcnt lgkmcnt(2)')
        for t in range(2):
            for b in range(4):
                d=DD[t]+4*b
                a(f'v_mfma_f32_16x16x32_bf16 v[{d}:{d+3}], v[{A+4*t}:{A+4*t+3}], v[{BO+4*b}:{BO+4*b+3}], v[{d}:{d+3}]')
        for t in range(2):
            for b in range(4):
                for i in range(4): a(f'v_exp_f32 v{EE+4*i+b}, v{DD[t]+4*b+i}')
            for p in range(8): a(f'v_pk_add_f32 v[{EE+2*p}:{EE+2*p+1}], v[{EE+2*p}:{EE+2*p+1}], s[54:55]')
            for p in range(16): a(f'v_rcp_f32 v{EE+p}, v{EE+p}')
            for p in range(8): a(f'v_pk_mul_f32 v[{EE+2*p}:{EE+2*p+1}], v[{EE+2*p}:{EE+2*p+1}], v[{G+16*t+2*p}:{G+16*t+2*p+1}]')
            for b in range(4):
                m=D0+4*b+2*t
                a(f'v_cvt_pk_bf16_f32 v{m}, v{EE+b}, v{EE+4+b}'); a(f'v_cvt_pk_bf16_f32 v{m+1}, v{EE+8+b}, v{EE+12+b}')
        a('s_waitcnt lgkmcnt(0)')
        for b in range(4):
            a(f'v_mfma_f32_16x16x32_bf16 v[{ACC+4*b}:{ACC+4*b+3}], v[{SS}:{SS+3}], v[{D0+4*b}:{D0+4*b+3}], v[{ACC+4*b}:{ACC+4*b+3}]')
    a('s_cmp_lg_u32 s49, 0'); a('s_cbranch_scc1 K2_I1')
    stamp(a,3)
    a(f's_waitcnt vmcnt(0)')
    for j in range(2):
        a(f'ds_write_b128 v54, v[{D0+8*j}:{D0+8*j+3}] offset:{18944*j}'); a(f'ds_write_b128 v54, v[{D0+8*j+4}:{D0+8*j+7}] offset:{18944*j+128}')
    a('s_cmp_ge_u32 s42, 2'); a('s_cbranch_scc1 K2_NOC')
    a(f'ds_write_b128 v53, v[{EE}:{EE+3}]')
    a.label('K2_NOC')
    a('s_waitcnt lgkmcnt(0)'); a('s_barrier')
    stamp(a,4)
    a.label('K2_I1')
    issue(0)
    a('s_cmp_lg_u32 s49, 0'); a('s_cbranch_scc1 K2_I2')
    a('s_mov_b32 s49, 1')
    for s in range(4): a(f'ds_read_b128 v[{XF+4*s}:{XF+4*s+3}], v{X+4+s}')
    for b in range(4): a(f'ds_read_b64_tr_b16 v[{EE+2*b}:{EE+2*b+1}], v55 offset:{32*b}')
    gemm_stream(a,52,XF,[D0,D1],lambda mm,b:(XR if mm==0 else ACC)+4*b)
    for b in range(4):
        for p in range(2):
            r=EE+2*b+p
            a(f'v_lshlrev_b32 v{EE+8}, 16, v{r}'); a(f'v_and_b32 v{EE+9}, 0xffff0000, v{r}')
            a(f'v_pk_mul_f32 v[{EE+8}:{EE+9}], v[{EE+8}:{EE+9}], s[52:53]')
            a(f'v_cvt_pk_bf16_f32 v{BO+4*b+p}, v{EE+8}, v{EE+9}')
    for b in range(4):
        for p in range(2):
            r=XR+4*b+2*p
            a(f'v_pk_mul_f32 v[{r}:{r+1}], v[{r}:{r+1}], s[52:53]')
            a(f'v_cvt_pk_bf16_f32 v{BO+4*b+2+p}, v{r}, v{r+1}')
    a.settle()
    a.label('K2_I2')
    issue(1)
    a(f'ds_read2_b32 v[{SS+4}:{SS+5}], v3 offset0:0 offset1:16'); a('s_waitcnt lgkmcnt(0)')
    for u in range(2): a(f'v_and_or_b32 v{SS+4+u}, v{SS+4+u}, s51, v5')
    for u in range(2): a(f'ds_read_b64 v[{AF+4*u+2}:{AF+4*u+3}], v{SS+4+u}')
    stamp(a,5)
    a('s_cmp_eq_u32 s63, 0'); a('s_cbranch_scc1 K2_NEXT')
    a.label('K2_LOOP')
    def body(k):
        G=BUF[k]; A=AF; DD=[D0,D1]; kn=(k+2)%3; GN=BUF[kn]; W=XR
        skip=[0]
        def grp(f):
            l=f'K2_S{k}_{skip[0]}'; skip[0]+=1
            a(f's_cbranch_scc1 {l}'); f(); a.label(l)
        def ld(i):
            a(f'v_perm_b32 v{W+i}, v{W+i}, v1, s50')
            if 't' in OPT['exp']: a(f'v_and_b32 v{W+i}, 0x3fff, v{W+i}')
            a(f'buffer_load_dwordx4 v[{GN+4*i}:{GN+4*i+3}], v{W+i}, s[28:31], 0 offen {OPT["tld"]}')
        def lde():
            a('v_lshrrev_b32 v8, 9, v8')
            if 'g' in OPT['exp']: a('v_lshrrev_b32 v8, 2, v8'); a('v_add_u32 v8, s78, v8')
            if 'e' in OPT['exp']: a('v_and_b32 v8, 63, v8')
            a(f'buffer_load_dwordx4 v[8:9], s[32:35], 0 idxen offen {OPT["eld"]} lds')
        shl=lambda t,b:[a(f'v_lshlrev_b32 v{DD[t]+4*b+i}, 16, v{G+16*t+4*i+b}') for i in range(4)]
        mf=lambda t,b:a(f'v_mfma_f32_16x16x32_bf16 v[{DD[t]+4*b}:{DD[t]+4*b+3}], v[{A+4*t}:{A+4*t+3}], v[{BO+4*b}:{BO+4*b+3}], v[{DD[t]+4*b}:{DD[t]+4*b+3}]')
        ex=lambda t,b:[a(f'v_exp_f32 v{EE+4*i+b}, v{DD[t]+4*b+i}') for i in range(4)]
        if OPT['prio']:
            if OPT['prio']==1: a('s_setprio 3'); a('s_cmp_ge_u32 s63, 4'); a(f's_cbranch_scc1 K2_W10_{k}')
            a('s_setprio 2'); a('s_cmp_ge_u32 s63, 3'); a(f's_cbranch_scc1 K2_W10_{k}')
            a('s_setprio 1')
        a('s_cmp_ge_u32 s59, 2'); a(f's_cbranch_scc1 K2_W10_{k}')
        if OPT['prio']: a('s_setprio 0')
        a('s_waitcnt vmcnt(0)')
        a.label(f'K2_W10_{k}')
        a(f's_waitcnt vmcnt({NL})')
        for t in range(2): a(f'ds_read_b64 v[{A+4*t}:{A+4*t+1}], v11 offset:{EB+1024*k+512*t}')
        if k==1: a('v_add_u32 v2, 384, v2'); a('v_add_u32 v10, 384, v10')
        a(f'ds_read2_b32 v[{SS+6}:{SS+7}], v4 offset0:{32*k} offset1:{32*k+16}')
        a(f'ds_read2_b32 v[{SS+4}:{SS+5}], v3 offset0:{32*k+32} offset1:{32*k+48}')
        a(f'ds_read_b128 v[{W}:{W+3}], v2 offset:{128*kn}'); a(f'ds_read_b128 v[{W+4}:{W+7}], v2 offset:{128*kn+64}')
        a(f'ds_read_b32 v8, v10 offset:{128*kn}')
        a(f's_mov_b32 m0, s{36+kn}')
        a('s_cmp_lt_u32 s63, 3')
        for b in range(4): shl(0,b)
        shl(1,0)
        a('s_waitcnt lgkmcnt(5)')
        for b in range(4):
            mf(0,b)
            if b<3: shl(1,b+1)
        a('s_waitcnt lgkmcnt(3)')
        for u in range(2): a(f'v_and_or_b32 v{SS+6+u}, v{SS+6+u}, s51, v6')
        for u in range(2): a(f'v_and_or_b32 v{SS+4+u}, v{SS+4+u}, s51, v5')
        for b in range(4):
            mf(1,b); ex(0,b)
        for u in range(2): a(f'ds_read_b64_tr_b16 v[{SS+2*u}:{SS+2*u+1}], v{SS+6+u}')
        for u in range(2): a(f'ds_read_b64 v[{A+4*u+2}:{A+4*u+3}], v{SS+4+u}')
        a('s_waitcnt lgkmcnt(4)')
        for t in range(2):
            if t==1:
                for b in range(4):
                    ex(1,b)
                    if b%2==1: grp(lambda: ld(4+b//2))
            for p in range(8): a(f'v_pk_add_f32 v[{EE+2*p}:{EE+2*p+1}], v[{EE+2*p}:{EE+2*p+1}], s[54:55]')
            for p in range(16):
                a(f'v_rcp_f32 v{EE+p}, v{EE+p}')
                if t==0 and p%4==3: grp(lambda: ld(p//4))
                if t==1 and p in (3,9): grp(lambda: ld(6+p//9))
                if t==1 and p==15: grp(lde)
            for p in range(8): a(f'v_pk_mul_f32 v[{EE+2*p}:{EE+2*p+1}], v[{EE+2*p}:{EE+2*p+1}], v[{G+16*t+2*p}:{G+16*t+2*p+1}]')
            if t==1: a('s_waitcnt lgkmcnt(2)')
            for b in range(4):
                m=D0+4*b+2*t
                a(f'v_cvt_pk_bf16_f32 v{m}, v{EE+b}, v{EE+4+b}'); a(f'v_cvt_pk_bf16_f32 v{m+1}, v{EE+8+b}, v{EE+12+b}')
                if t==1 and b>0: a(f'v_mfma_f32_16x16x32_bf16 v[{ACC+4*b-4}:{ACC+4*b-1}], v[{SS}:{SS+3}], v[{D0+4*b-4}:{D0+4*b-1}], v[{ACC+4*b-4}:{ACC+4*b-1}]')
        a('s_sub_u32 s59, s59, 1'); a('s_sub_u32 s63, s63, 1')
        a(f'v_mfma_f32_16x16x32_bf16 v[{ACC+12}:{ACC+15}], v[{SS}:{SS+3}], v[{D0+12}:{D0+15}], v[{ACC+12}:{ACC+15}]')
        if k==2:
            for r in (3,4): a(f'v_add_u32 v{r}, 384, v{r}')
        a('s_cmp_eq_u32 s63, 0')
        if k<2: a('s_cbranch_scc1 K2_NEXT')
        else: a('s_cbranch_scc0 K2_LOOP')
    for k in range(3): body(k)
    a.label('K2_NEXT')
    a.nop(8)
    a('s_cmp_lt_u32 s62, 5'); a('s_cbranch_scc1 K2_SLOW')
    a('s_cmp_eq_u64 s[56:57], 0'); a('s_cbranch_scc1 K2_FINAL')
    a('s_mov_b32 s62, 0')
    a('s_ff1_i32_b64 s60, s[56:57]'); a('s_bitset0_b64 s[56:57], s60'); a('s_and_b32 s61, s60, 7'); a('s_lshl_b32 s61, s61, 3'); a('s_lshr_b32 s60, s60, 3'); a('s_add_u32 s60, s60, s61'); a(f's_mul_i32 s61, s60, {CE}')
    a.label('K2_SLOW')
    a('s_waitcnt vmcnt(0) lgkmcnt(0)')
    srd(a,68,10,11,E*4); srd(a,72,8,9,E*4)
    a('s_mul_i32 s64, s62, 500'); a('s_add_u32 s64, s64, s61'); a('s_lshl_b32 s65, s64, 2')
    a(f'v_lshlrev_b32 v{T}, 4, v7')
    a(f'buffer_load_dwordx4 v[{MR}:{MR+3}], v{T}, s[68:71], s65 offen'); a(f'buffer_load_dwordx4 v[{MR+4}:{MR+7}], v{T}, s[68:71], s65 offen offset:1024')
    a(f'buffer_load_dwordx4 v[{MR+8}:{MR+11}], v{T}, s[72:75], s65 offen'); a(f'buffer_load_dwordx4 v[{MR+12}:{MR+15}], v{T}, s[72:75], s65 offen offset:1024')
    a('s_mov_b32 s58, 0'); a('s_add_u32 s62, s62, 1'); a('s_mul_i32 s66, s40, 10')
    a('s_waitcnt vmcnt(0)')
    for r in range(8):
        idx=256*(r//4)+(r%4)
        a(f'v_lshlrev_b32 v{T+1}, 2, v7'); a(f'v_add_u32 v{T+1}, {idx}, v{T+1}')
        a(f'v_mov_b32 v{T+2}, 500'); a(f'v_cmp_lt_u32 s[76:77], v{T+1}, v{T+2}')
        a(f'v_subrev_u32 v{T+2}, s66, v{MR+r}'); a(f'v_cmp_gt_u32 vcc, 10, v{T+2}')
        a('s_and_b64 vcc, vcc, s[76:77]')
        a(f'v_lshlrev_b32 v{T+3}, 16, v{MR+8+r}')
        a(f'v_add_lshl_u32 v{T+4}, v{T+1}, s64, 9'); a(f'v_lshl_add_u32 v{T+4}, v{T+2}, 5, v{T+4}')
        a(f'v_mbcnt_lo_u32_b32 v{T+5}, vcc_lo, 0'); a(f'v_mbcnt_hi_u32_b32 v{T+5}, vcc_hi, v{T+5}')
        a(f'v_add_lshl_u32 v{T+5}, v{T+5}, s58, 2'); a(f'v_add_u32 v{T+5}, s48, v{T+5}')
        a('s_bcnt1_i32_b64 s67, vcc'); a('s_add_u32 s58, s58, s67')
        a('s_mov_b64 exec, vcc')
        a(f'ds_write_b32 v{T+5}, v{T+3} offset:512'); a(f'ds_write_b32 v{T+5}, v{T+4} offset:{512+ARR}')
        a('s_mov_b64 exec, -1')
    a('s_branch K2_PROC')
    a.label('K2_FINAL')
    a('s_waitcnt vmcnt(0)')
    stamp(a,6)
    a('v_lshrrev_b32 v15, 4, v7'); a('v_mul_u32_u24 v2, 1088, v15'); a('v_lshrrev_b32 v3, 2, v1'); a('v_add3_u32 v2, v2, v3, s48')
    for b in range(4):
        for i in range(4): a(f'ds_write_b32 v2, v{ACC+4*b+i} offset:{512+272*i+64*b}')
    a('v_mul_u32_u24 v4, 272, v15'); a('v_add3_u32 v4, v4, v1, s48')
    for j in range(3): a(f'ds_read_b128 v[{D0+4*j}:{D0+4*j+3}], v4 offset:{512+1088*j}')
    a('v_lshlrev_b32 v6, 8, v15'); a('v_lshrrev_b32 v3, 1, v1'); a('v_add_u32 v6, v6, v3')
    a('s_mul_i32 s44, s40, 2560'); a('s_add_u32 s44, s44, s45')
    srd_off(a,24,18,19,'s44',2560-128)
    a('s_waitcnt lgkmcnt(0)')
    for p in range(6): a(f'v_pk_mul_f32 v[{D1+2*p}:{D1+2*p+1}], v[{D0+2*p}:{D0+2*p+1}], s[52:53]')
    for i in range(12): a(f'v_exp_f32 v{D1+i}, v{D1+i}')
    for p in range(6): a(f'v_pk_add_f32 v[{D1+2*p}:{D1+2*p+1}], v[{D1+2*p}:{D1+2*p+1}], s[54:55]')
    for i in range(12): a(f'v_rcp_f32 v{D1+i}, v{D1+i}')
    for p in range(6): a(f'v_pk_mul_f32 v[{D0+2*p}:{D0+2*p+1}], v[{D0+2*p}:{D0+2*p+1}], v[{D1+2*p}:{D1+2*p+1}]')
    for p in range(6): a(f'v_cvt_pk_bf16_f32 v{EE+p}, v{D0+2*p}, v{D0+2*p+1}')
    for j in range(3): a(f'buffer_store_dwordx2 v[{EE+2*j}:{EE+2*j+1}], v6, s[24:27], 0 offen offset:{1024*j}')
    if gen1.STAMP:
        a('s_waitcnt vmcnt(0)'); stamp(a,7,True)
        a('s_lshl_b32 s79, s2, 3'); a('s_add_u32 s79, s79, s42'); stamp_out(a,8,'s79',OFF_ST,30)
    a.label('K2_END')
    a('s_endpgm')
    return a
def mk(path):
    build([('prep_kernel',k1(),CH+160,512,K1_LDS+2048),(NAME+'_kernel',k2(),256,512,K2_LDS)],path)
if __name__=='__main__':
    for arg in sys.argv[2:]:
        if arg=='stamp': gen1.STAMP=True
        else:
            k,v=arg.split('='); OPT[k]=eval(v)
    mk(sys.argv[1])
```

```python
import sys, struct
from asmlib import Asm
import gen1
from gen1 import srd, srd_off, f2u, build, NAME, stamp, stamp_out, OFF_ST
N=10000;E=160000;NBK=1000;CH=64;CE=2500;CAP=15
THALF=N*256
OFF_META=4*THALF
WS_END=OFF_META+NBK*4096
OFF_CT=WS_END+(1<<17)
XL=8*4736
NLOG2E=f2u(-1.4426950408889634)
TINY=f2u(2.0**-100)
OPT=dict(st='',skipq=False,pref=False,exp='',eld='',mld='',xld='',tld='',mq=2,early=True,prio=2,same=0,np=2)
NG=79
K1_LDS=XL+32768
NW1=CH+320+1
def wimg_addrs(a,vrow,vpiece,vdst,vt):
    a(f'v_lshrrev_b32 v{vdst}, 4, v{vrow}'); a(f'v_mul_u32_u24 v{vdst}, 4736, v{vdst}')
    a(f'v_and_b32 v{vt}, 15, v{vrow}'); a(f'v_mul_u32_u24 v{vt}, 288, v{vt}'); a(f'v_add_u32 v{vdst}, v{vdst}, v{vt}')
    a(f'v_bfe_u32 v{vt}, v{vrow}, 3, 1'); a(f'v_lshl_add_u32 v{vdst}, v{vt}, 7, v{vdst}'); a(f'v_lshl_add_u32 v{vdst}, v{vpiece}, 4, v{vdst}')
def tr_addr(a,vq,vc,vdst,vt):
    a(f'v_lshrrev_b32 v{vdst}, 1, v{vq}'); a(f'v_mul_u32_u24 v{vdst}, 4736, v{vdst}')
    a(f'v_and_b32 v{vt}, 1, v{vq}'); a(f'v_mul_u32_u24 v{vt}, 2432, v{vt}'); a(f'v_add_u32 v{vdst}, v{vdst}, v{vt}')
    a(f'v_lshrrev_b32 v{vt}, 2, v{vc}'); a(f'v_mul_u32_u24 v{vt}, 288, v{vt}'); a(f'v_add_u32 v{vdst}, v{vdst}, v{vt}')
    a(f'v_and_b32 v{vt}, 3, v{vc}'); a(f'v_lshl_add_u32 v{vdst}, v{vt}, 3, v{vdst}')
def gemm_stream(a,vtr,XF,slots,dres,base=0):
    hs=[(s,mm) for s in range(4) for mm in range(2)]
    def rd(h):
        s,mm=hs[h]; sl=slots[h%len(slots)]
        for b in range(4):
            for u in range(2):
                r=sl+4*b+2*u
                a(f'ds_read_b64_tr_b16 v[{r}:{r+1}], v{vtr} offset:{base+s*9472+u*1152+mm*128+b*32}')
    rd(0)
    for h in range(8):
        if h+1<8: rd(h+1); a('s_waitcnt lgkmcnt(8)')
        else: a('s_waitcnt lgkmcnt(0)')
        s,mm=hs[h]; sl=slots[h%len(slots)]
        for b in range(4):
            d=dres(mm,b); c='0' if s==0 else f'v[{d}:{d+3}]'
            a(f'v_mfma_f32_16x16x32_bf16 v[{d}:{d+3}], v[{XF+4*s}:{XF+4*s+3}], v[{sl+4*b}:{sl+4*b+3}], {c}')
def fin(a,wpw_shift,base):
    if gen1.STAMP:
        stamp(a,5); a('s_waitcnt vmcnt(0)'); stamp(a,6); stamp(a,7,True)
        a('v_lshrrev_b32 v70, 6, v0'); a('v_readfirstlane_b32 s78, v70')
        a(f's_lshl_b32 s79, s2, {wpw_shift}'); a('s_add_u32 s79, s79, s78'); stamp_out(a,8,'s79',base,70)
def k1():
    a=Asm(); ST=OPT['st']; NP=OPT['np']; NW1=CH+160*NP+(NP-1)
    stamp(a,0,True); stamp(a,1)
    a('s_load_dwordx16 s[4:19], s[0:1], 0')
    a('s_load_dwordx2 s[20:21], s[0:1], 72')
    if OPT.get('dbg'): a('s_memrealtime s[90:91]')
    a(f's_cmp_ge_u32 s2, {NW1}'); a('s_cbranch_scc1 K1_END')
    if NP==2: a(f's_cmp_eq_u32 s2, {NW1-1}'); a('s_cbranch_scc1 K1_CT')
    a(f's_cmp_lt_u32 s2, {CH}'); a('s_cbranch_scc1 K1_SORT')
    a(f's_sub_u32 s3, s2, {CH}')
    a('s_and_b32 s40, s3, 7'); a(f's_lshr_b32 s41, s3, {3+NP}'); a('s_lshl_b32 s41, s41, 3'); a('s_add_u32 s40, s40, s41')
    a('s_bfe_u32 s42, s3, 0x10003'); a('s_bfe_u32 s43, s3, 0x10004' if NP==2 else 's_mov_b32 s43, 0')
    a(f's_cmp_ge_u32 s40, {NG}'); a('s_cbranch_scc1 K1_END')
    a('v_and_b32 v1, 7, v0'); a('v_lshrrev_b32 v2, 3, v0')
    a('v_lshlrev_b32 v3, 8, v2'); a('v_lshl_add_u32 v3, v1, 4, v3'); a('v_add_u32 v4, 16384, v3')
    a('v_lshrrev_b32 v5, 6, v0'); a('v_readfirstlane_b32 s48, v5')
    a('v_and_b32 v6, 63, v0'); a('v_and_b32 v7, 15, v6'); a('v_lshrrev_b32 v5, 4, v6')
    a('s_lshl_b32 s49, s40, 3'); a('s_add_u32 s49, s49, s48'); a('s_lshl_b32 s50, s49, 12')
    a('v_lshlrev_b32 v24, 2, v5'); a('v_xor_b32 v24, v24, v7'); a('v_lshlrev_b32 v24, 4, v24'); a('v_lshl_add_u32 v24, v5, 8, v24')
    a('s_lshl_b32 s51, s48, 12'); a(f's_add_u32 s51, s51, {XL}'); a('s_mov_b32 m0, s51')
    a('s_lshl_b32 s45, s42, 7')
    a('s_waitcnt lgkmcnt(0)')
    a('s_cmp_eq_u32 s43, 0'); a('s_cselect_b32 s44, 32768, 0'); a('s_cselect_b32 s46, s14, s12'); a('s_cselect_b32 s47, s15, s13')
    srd_off(a,28,16,17,'s44',32768); srd(a,32,46,47,32768); srd(a,36,4,5,N*256)
    a('buffer_load_dwordx4 v[8:11], v3, s[28:31], s45 offen'); a('buffer_load_dwordx4 v[12:15], v4, s[28:31], s45 offen')
    a('buffer_load_dwordx4 v[16:19], v3, s[32:35], s45 offen'); a('buffer_load_dwordx4 v[20:23], v4, s[32:35], s45 offen')
    XF=28
    for s in range(4): a(f'buffer_load_dwordx4 v24, s[36:39], s50 offen offset:{1024*s} lds')
    if OPT['pref']:
        srd(a,60,6,7,E*32)
        a(f's_mul_i32 s64, s3, {32768//NP}'); a(f'v_lshlrev_b32 v108, {7-NP}, v0')
        a(f'buffer_load_dword v109, v108, s[60:63], s64 offen')
    np_=1 if OPT['pref'] else 0
    wimg_addrs(a,2,1,25,26); tr_addr(a,5,7,26,27)
    a(f's_mov_b32 s52, {NLOG2E}'); a(f's_mov_b32 s53, {NLOG2E}'); a(f's_mov_b32 s57, {TINY}')
    a('s_mov_b32 s58, 0x80008000'); a('s_mov_b32 s54, 0x07060100'); a('s_mov_b32 s55, 0x07060302'); a('s_mov_b32 s59, 0x80000000')
    a('s_lshl_b32 s56, s43, 1'); a('s_add_u32 s56, s56, s42'); a(f's_mul_i32 s56, s56, {THALF}'); srd_off(a,24,20,21,'s56',THALF)
    a('v_and_b32 v27, 3, v7'); a('v_lshlrev_b32 v24, 8, v7'); a('v_lshl_add_u32 v24, v27, 6, v24'); a('v_lshl_add_u32 v24, v5, 4, v24'); a('v_add_u32 v24, s51, v24')
    for s in range(1,4): a(f'v_xor_b32 v{43+s}, {64*s}, v24')
    a(f's_waitcnt vmcnt({7+np_})'); a('ds_write_b128 v25, v[8:11]')
    a(f's_waitcnt vmcnt({6+np_})'); a(f'ds_write_b128 v25, v[12:15] offset:{4*4736}')
    a(f's_waitcnt vmcnt({5+np_})'); a('ds_write_b128 v25, v[16:19] offset:128')
    a(f's_waitcnt vmcnt({4+np_})'); a(f'ds_write_b128 v25, v[20:23] offset:{4*4736+128}')
    stamp(a,2)
    a('s_waitcnt lgkmcnt(0)'); a('s_barrier')
    a(f's_waitcnt vmcnt({np_})')
    stamp(a,3)
    for s in range(4): a(f'ds_read_b128 v[{XF+4*s}:{XF+4*s+3}], v{24 if s==0 else 43+s}')
    D0=44
    dd=lambda mm,b: D0+(mm*4+b)*4
    gemm_stream(a,26,XF,[76,8],dd) if False else gemm_stream(a,26,XF,[76,92],dd)
    stamp(a,4)
    a('v_lshlrev_b32 v9, 10, v5'); a('v_lshl_add_u32 v9, v7, 4, v9')
    for b in range(4):
        d=dd(0,b)
        a(f'v_pk_mul_f32 v[{d}:{d+1}], v[{d}:{d+1}], s[52:53]'); a(f'v_pk_mul_f32 v[{d+2}:{d+3}], v[{d+2}:{d+3}], s[52:53]')
    for i in range(4):
        o=12+(i%2)*12
        for bp in range(2):
            a(f'v_cvt_pk_bf16_f32 v{o+4+bp}, v{dd(0,2*bp)+i}, v{dd(0,2*bp+1)+i}')
        for b in range(4): a(f'v_max_f32 v{o+8+b}, |v{dd(1,b)+i}|, s57')
        for bp in range(2): a(f'v_xor_b32 v{o+6+bp}, s58, v{o+4+bp}')
        for b in range(4):
            a(f'v_sub_u32_sdwa v{o+8+b}, v{o+8+b}, sext(v{o+6+b//2}) dst_sel:DWORD dst_unused:UNUSED_PAD src0_sel:DWORD src1_sel:WORD_{b%2}')
        for b in range(4): a(f'v_perm_b32 v{o+b}, v{o+8+b}, v{o+4+b//2}, s{54+b%2}')
        for b in range(4): a(f'v_and_or_b32 v{o+b}, v{dd(1,b)+i}, s59, v{o+b}')
        a(f'buffer_store_dwordx4 v[{o}:{o+3}], v9, s[24:27], s50 offen offset:{256*i} {ST} {OPT.get("stt","")}')
    fin(a,3,OFF_ST+(1<<20))
    a('s_endpgm')
    a.label('K1_SORT')
    a(f's_mul_i32 s40, s2, {CE*4}')
    a('v_mul_u32_u24 v1, 20, v0')
    a('v_mov_b32 v20, 0'); a('v_mov_b32 v21, 0'); a('v_lshlrev_b32 v2, 3, v0')
    a('ds_write_b64 v2, v[20:21] offset:0')
    a('s_waitcnt lgkmcnt(0)')
    srd(a,28,10,11,E*4); srd(a,32,8,9,E*4); srd(a,24,20,21,WS_END)
    a('buffer_load_dwordx4 v[8:11], v1, s[28:31], s40 offen'); a('buffer_load_dword v12, v1, s[28:31], s40 offen offset:16')
    a('buffer_load_dwordx4 v[14:17], v1, s[32:35], s40 offen'); a('buffer_load_dword v18, v1, s[32:35], s40 offen offset:16')
    if OPT.get('dbg'):
        a('v_mov_b32 v3, s90'); a('v_mov_b32 v4, 0'); a('s_lshl_b32 s92, s2, 2'); a(f's_add_u32 s92, s92, {3*THALF}'); a('buffer_store_dword v3, v4, s[24:27], s92 offen'); a('s_waitcnt vmcnt(0)')
    a('v_mov_b32 v3, 1'); a('v_mul_u32_u24 v4, 80, v0')
    a('s_barrier')
    a(f'v_cmp_gt_u32 vcc, {CE//5}, v0'); a('s_and_saveexec_b64 s[42:43], vcc')
    stamp(a,2)
    a('s_waitcnt vmcnt(2)')
    stamp(a,3)
    for j in range(5):
        a(f'v_mul_u32_u24 v{24+j}, 52429, v{8+j}'); a(f'v_lshrrev_b32 v{24+j}, 19, v{24+j}')
        a(f'v_lshlrev_b32 v{30+j}, 2, v{24+j}')
        a(f'ds_add_rtn_u32 v{36+j}, v{30+j}, v3')
    a('s_waitcnt vmcnt(0)')
    for j in range(5):
        a(f'v_mul_u32_u24 v{30+j}, 10, v{24+j}'); a(f'v_sub_u32 v{8+j}, v{8+j}, v{30+j}')
        a(f'v_lshl_or_b32 v{8+j}, v{14+j}, 16, v{8+j}')
        a(f'v_add3_u32 v{8+j}, v{8+j}, v4, {16*j}')
        a(f'v_lshlrev_b32 v{24+j}, 6, v{24+j}')
    for j in range(5):
        a(f's_waitcnt lgkmcnt({4})' if j>0 else 's_waitcnt lgkmcnt(4)')
        a(f'v_min_u32 v{36+j}, {CAP-1}, v{36+j}'); a(f'v_lshl_add_u32 v{36+j}, v{36+j}, 2, v{24+j}')
        a(f'ds_write_b32 v{36+j}, v{8+j} offset:{4096+4}')
    a('s_mov_b64 exec, s[42:43]')
    a('v_lshlrev_b32 v1, 6, v0'); a('v_lshlrev_b32 v6, 2, v0'); a('v_lshlrev_b32 v7, 12, v0')
    a('s_and_b32 s44, s2, 7'); a('s_lshl_b32 s44, s44, 3'); a('s_lshr_b32 s45, s2, 3'); a('s_add_u32 s44, s44, s45')
    a('s_lshl_b32 s44, s44, 4'); a(f's_add_u32 s44, s44, {OFF_META}'); a(f's_add_u32 s45, s44, {512*4096}')
    a('s_waitcnt lgkmcnt(0)'); a('s_barrier')
    stamp(a,4)
    for h in range(2):
        a(f'ds_read_b32 v{60+h}, v6 offset:{2048*h}')
        for q in range(2): a(f'ds_read_b128 v[{40+8*h+4*q}:{43+8*h+4*q}], v1 offset:{4096+32768*h+16*q}')
    for h in range(2):
        a(f's_waitcnt lgkmcnt({3-3*h})')
        a(f'v_mov_b32 v{40+8*h}, v{60+h}')
        a(f'v_cmp_lt_u32 vcc, 3, v{60+h}')
        a(f'buffer_store_dwordx4 v[{40+8*h}:{43+8*h}], v7, s[24:27], s{44+h} offen {ST}')
        a('s_mov_b64 exec, vcc')
        a(f'buffer_store_dwordx4 v[{44+8*h}:{47+8*h}], v7, s[24:27], s{44+h} offen offset:1024 {ST}')
        a('s_mov_b64 exec, -1')
    for h in range(2):
        a(f'v_cmp_lt_u32 vcc, 7, v{60+h}'); a('s_and_saveexec_b64 s[42:43], vcc'); a(f's_cbranch_execz K1_SK{h}')
        for q in range(2,4): a(f'ds_read_b128 v[{16+8*h+4*q}:{19+8*h+4*q}], v1 offset:{4096+32768*h+16*q}')
        a('s_waitcnt lgkmcnt(0)')
        for q in range(2,4): a(f'buffer_store_dwordx4 v[{16+8*h+4*q}:{19+8*h+4*q}], v7, s[24:27], s{44+h} offen offset:{1024*q} {ST}')
        a.label(f'K1_SK{h}')
        a('s_mov_b64 exec, s[42:43]')
    fin(a,3,OFF_ST+(1<<20))
    a('s_endpgm')
    a.label('K1_CT')
    a('v_and_b32 v1, 15, v0'); a('v_bfe_u32 v2, v0, 4, 2'); a('v_lshrrev_b32 v3, 6, v0')
    a('v_lshl_add_u32 v1, v3, 4, v1'); a('v_lshlrev_b32 v1, 1, v1'); a('v_lshl_add_u32 v1, v2, 10, v1'); a('v_lshlrev_b32 v2, 3, v0')
    a(f's_mov_b32 s52, {NLOG2E}')
    a('s_waitcnt lgkmcnt(0)')
    srd_off(a,28,16,17,65536,4096); srd_off(a,24,20,21,OFF_CT,4096)
    for j in range(4): a(f'buffer_load_ushort v{4+j}, v1, s[28:31], 0 offen offset:{256*j}')
    a('s_waitcnt vmcnt(0)')
    for j in range(4): a(f'v_lshlrev_b32 v{4+j}, 16, v{4+j}'); a(f'v_mul_f32 v{4+j}, s52, v{4+j}')
    a('v_cvt_pk_bf16_f32 v8, v4, v5'); a('v_cvt_pk_bf16_f32 v9, v6, v7')
    a('buffer_store_dwordx2 v[8:9], v2, s[24:27], 0 offen')
    a.label('K1_END')
    a('s_endpgm')
    return a

LCAP=1088; ARR=LCAP*4
EB=512+2*ARR
WREG=EB+3072
K2_LDS=8*WREG
NL=9
def k2():
    a=Asm()
    stamp(a,0,True); stamp(a,1)
    a('s_load_dwordx16 s[4:19], s[0:1], 0')
    a('s_load_dwordx2 s[20:21], s[0:1], 72')
    if OPT['prio']==2: a('s_setprio 3')
    if OPT['same']:
        a(f's_cmp_ge_u32 s2, {NBK//4}'); a('s_cbranch_scc1 K2_END')
        a('v_lshrrev_b32 v7, 6, v0'); a('v_readfirstlane_b32 s42, v7')
        a('v_and_b32 v7, 63, v0')
        if OPT['same']==1: a('s_and_b32 s41, s42, 1'); a('s_lshr_b32 s40, s42, 1')
        else: a('s_lshr_b32 s41, s42, 2'); a('s_and_b32 s40, s42, 3')
        a('s_lshl_b32 s43, s2, 2'); a('s_add_u32 s40, s40, s43')
    else:
        a('s_lshr_b32 s40, s2, 3'); a('s_lshl_b32 s40, s40, 2'); a('s_and_b32 s41, s2, 3'); a('s_add_u32 s40, s40, s41')
        a('s_bfe_u32 s41, s2, 0x10002')
        a(f's_cmp_ge_u32 s40, {NBK//8}'); a('s_cbranch_scc1 K2_END')
        a('v_lshrrev_b32 v7, 6, v0'); a('v_readfirstlane_b32 s42, v7')
        a('v_and_b32 v7, 63, v0')
        a('s_lshl_b32 s40, s40, 3'); a('s_add_u32 s40, s40, s42')
    BO=16; ACC=32; SS=48; D0=56; D1=72; EE=88; AF=104; XR=120; BUF=[136,168,200]; MR=136
    a(f's_lshl_b32 s43, s40, 12'); a(f's_add_u32 s43, s43, {OFF_META}')
    a('v_lshlrev_b32 v15, 4, v7'); a('v_lshlrev_b32 v52, 3, v7')
    a('v_and_b32 v1, 15, v7'); a('v_lshrrev_b32 v55, 4, v7')
    a('v_lshlrev_b32 v54, 10, v55'); a('v_lshl_add_u32 v54, v1, 4, v54')
    a('s_lshl_b32 s45, s41, 7')
    a(f's_mul_i32 s48, s42, {WREG}')
    a(f's_mul_i32 s46, s41, {THALF}'); a('s_mul_i32 s44, s40, 2560'); a('s_add_u32 s47, s46, s44'); a(f's_add_u32 s47, s47, {2*THALF}')
    a('s_lshl_b32 s60, s41, 11')
    a('v_lshrrev_b32 v4, 2, v7'); a('v_and_b32 v6, 3, v7'); a('v_lshlrev_b32 v5, 2, v6'); a('v_sub_u32 v5, v4, v5')
    a('v_lshlrev_b32 v2, 4, v5'); a('v_mov_b32 v8, 0x3f80'); a('v_mov_b32 v9, 0'); a('v_lshlrev_b64 v[8:9], v2, v[8:9]')
    a('v_cmp_gt_u32 vcc, 4, v5'); a('v_cndmask_b32 v8, 0, v8, vcc'); a('v_cndmask_b32 v9, 0, v9, vcc')
    a('v_lshl_add_u32 v2, v7, 3, s48'); a('ds_write_b64 v2, v[8:9]')
    a('s_waitcnt lgkmcnt(0)')
    srd(a,24,20,21,WS_END)
    MQ=OPT['mq']
    for j in range(MQ): a(f'buffer_load_dwordx4 v[{MR+4*j}:{MR+4*j+3}], v15, s[24:27], s43 offen offset:{1024*j} {OPT["mld"]}')
    srd_off(a,64,20,21,'s47',2560); srd_off(a,68,20,21,OFF_CT,4096)
    srd_off(a,28,20,21,'s46',THALF)
    a('s_mov_b32 s32, s6'); a('s_and_b32 s33, s7, 0xffff'); a('s_or_b32 s33, s33, 0x200000'); a(f's_mov_b32 s34, {E}'); a('s_mov_b32 s35, 0x20000')
    for i in range(4): a(f'buffer_load_dwordx4 v[{D0+4*i}:{D0+4*i+3}], v54, s[64:67], 0 offen offset:{256*i}')
    for b in range(4): a(f'buffer_load_dwordx2 v[{BO+4*b}:{BO+4*b+1}], v52, s[68:71], s60 offen offset:{512*b}')
    a('v_lshl_add_u32 v12, v55, 4, s48'); a('v_add_u32 v12, 512, v12')
    a('v_lshl_add_u32 v13, v1, 2, s48'); a(f'v_add_u32 v13, {512+ARR}, v13')
    a('v_lshl_add_u32 v14, v4, 2, s48'); a(f'v_add_u32 v14, {512+ARR}, v14')
    a('v_lshl_add_u32 v5, v55, 3, s48')
    a(f'v_lshl_add_u32 v11, v1, 5, v5')
    a('v_lshl_add_u32 v6, v6, 3, s48')
    a('v_and_b32 v9, 1, v7'); a('v_lshlrev_b32 v9, 4, v9')
    a('v_lshrrev_b32 v15, 1, v7'); a('v_lshl_add_u32 v15, v15, 2, s48'); a(f'v_add_u32 v15, {512+ARR}, v15')
    a('v_lshlrev_b32 v1, 4, v1')
    a(f'v_and_b32 v{XR}, 7, v7'); a(f'v_lshrrev_b32 v{XR+1}, 3, v7'); a(f'v_lshl_add_u32 v{XR}, v{XR}, 3, v{XR+1}')
    a(f'v_mul_u32_u24 v{XR}, {CE*512}, v{XR}')
    a(f's_mov_b32 s53, {NLOG2E}'); a(f's_mov_b32 s52, {NLOG2E}'); a('s_mov_b32 s54, 1.0'); a('s_mov_b32 s55, 1.0'); a('s_mov_b32 s62, 5')
    if 'g' in OPT['exp']: a('s_and_b32 s78, s2, 3'); a('s_mul_i32 s78, s78, 40000')
    a('s_mov_b32 s50, 0x0c070600'); a('s_mov_b32 s51, 0x1e0'); a('s_mov_b32 s49, 0')
    for k in range(3): a(f's_add_u32 s{36+k}, s48, {EB+1024*k}')
    a('s_waitcnt vmcnt(8)')
    stamp(a,2)
    T=152
    a(f'v_cmp_lt_u32 s[56:57], {CAP}, v{MR}')
    a(f'v_cndmask_b32 v{MR}, v{MR}, 0, s[56:57]')
    a(f'v_mov_b32 v{T}, v{MR}')
    for sh in (1,2,4,8): a(f'v_add_u32_dpp v{T}, v{T}, v{T} row_shr:{sh} row_mask:0xf bank_mask:0xf bound_ctrl:0')
    a(f'v_add_u32_dpp v{T}, v{T}, v{T} row_bcast:15 row_mask:0xa bank_mask:0xf')
    a(f'v_add_u32_dpp v{T}, v{T}, v{T} row_bcast:31 row_mask:0xc bank_mask:0xf')
    a(f'v_readlane_b32 s58, v{T}, 63')
    a(f'v_sub_u32 v{T}, v{T}, v{MR}'); a(f'v_lshl_add_u32 v{T}, v{T}, 2, s48')
    for s in range(CAP):
        a(f'v_cmpx_lt_u32 vcc, {s}, v{MR}')
        if s>=4: a('s_cbranch_execz K2_CDONE')
        if MQ<4 and s==4*MQ-1:
            a(f'v_lshlrev_b32 v{T+3}, 4, v7')
            for j in range(MQ,4): a(f'buffer_load_dwordx4 v[{MR+4*j}:{MR+4*j+3}], v{T+3}, s[24:27], s43 offen offset:{1024*j}')
            a('s_waitcnt vmcnt(0)')
        a(f'v_mad_u32_u16 v{T+1+s%2}, v{MR+1+s}, 32, v{XR}')
        a(f'ds_write_b32 v{T}, v{MR+1+s} offset:{512+4*s}'); a(f'ds_write_b32 v{T}, v{T+1+s%2} offset:{512+ARR+4*s}')
    a.label('K2_CDONE')
    a('s_mov_b64 exec, -1')
    a.label('K2_PROC')
    a(f'v_add_lshl_u32 v{T}, v7, s58, 2'); a(f'v_add_u32 v{T}, s48, v{T}'); a(f'v_mov_b32 v{T+1}, 0'); a(f'v_mov_b32 v{T+2}, 0x1e0')
    for j in range(2):
        a(f'ds_write_b32 v{T}, v{T+1} offset:{512+256*j}'); a(f'ds_write_b32 v{T}, v{T+2} offset:{512+ARR+256*j}')
    a('s_add_u32 s63, s58, 31'); a('s_lshr_b32 s63, s63, 5')
    a('s_max_u32 s59, s63, 2')
    a('v_mov_b32 v2, v12'); a('v_mov_b32 v3, v13'); a('v_mov_b32 v4, v14'); a('v_mov_b32 v10, v15')
    def issue(k,W=XR):
        G=BUF[k]
        a(f'ds_read_b128 v[{W}:{W+3}], v2 offset:{128*k}'); a(f'ds_read_b128 v[{W+4}:{W+7}], v2 offset:{128*k+64}')
        a(f'ds_read_b32 v8, v10 offset:{128*k}')
        a(f's_mov_b32 m0, s{36+k}')
        a('s_waitcnt lgkmcnt(1)')
        for i in range(8):
            a(f'v_perm_b32 v{W+i}, v{W+i}, v1, s50')
            if 't' in OPT['exp']: a(f'v_and_b32 v{W+i}, 0x3fff, v{W+i}')
            a(f'buffer_load_dwordx4 v[{G+4*i}:{G+4*i+3}], v{W+i}, s[28:31], 0 offen {OPT["tld"]}')
        a('s_waitcnt lgkmcnt(0)')
        a(f'v_lshrrev_b32 v8, 9, v8')
        if 'g' in OPT['exp']: a('v_lshrrev_b32 v8, 2, v8'); a('v_add_u32 v8, s78, v8')
        if 'e' in OPT['exp']: a('v_and_b32 v8, 63, v8')
        a(f'buffer_load_dwordx4 v[8:9], s[32:35], 0 idxen offen {OPT["eld"]} lds')
    def compute(k):
        G=BUF[k]; A=AF; DD=[D0,D1]
        a(f'ds_read2_b32 v[{SS+4}:{SS+5}], v3 offset0:{32*k} offset1:{32*k+16}')
        a(f'ds_read2_b32 v[{SS+6}:{SS+7}], v4 offset0:{32*k} offset1:{32*k+16}')
        for t in range(2): a(f'ds_read_b64 v[{A+4*t}:{A+4*t+1}], v11 offset:{EB+1024*k+512*t}')
        for t in range(2):
            for b in range(4):
                for i in range(4): a(f'v_lshlrev_b32 v{DD[t]+4*b+i}, 16, v{G+16*t+4*i+b}')
            if t==0:
                a('s_waitcnt lgkmcnt(2)')
                for u in range(2): a(f'v_and_or_b32 v{SS+4+u}, v{SS+4+u}, s51, v5')
                for u in range(2): a(f'ds_read_b64 v[{A+4*u+2}:{A+4*u+3}], v{SS+4+u}')
                for u in range(2): a(f'v_and_or_b32 v{SS+6+u}, v{SS+6+u}, s51, v6')
                for u in range(2): a(f'ds_read_b64_tr_b16 v[{SS+2*u}:{SS+2*u+1}], v{SS+6+u}')
        a('s_waitcnt lgkmcnt(2)')
        for t in range(2):
            for b in range(4):
                d=DD[t]+4*b
                a(f'v_mfma_f32_16x16x32_bf16 v[{d}:{d+3}], v[{A+4*t}:{A+4*t+3}], v[{BO+4*b}:{BO+4*b+3}], v[{d}:{d+3}]')
        for t in range(2):
            for b in range(4):
                for i in range(4): a(f'v_exp_f32 v{EE+4*i+b}, v{DD[t]+4*b+i}')
            for p in range(8): a(f'v_pk_add_f32 v[{EE+2*p}:{EE+2*p+1}], v[{EE+2*p}:{EE+2*p+1}], s[54:55]')
            for p in range(16): a(f'v_rcp_f32 v{EE+p}, v{EE+p}')
            for p in range(8): a(f'v_pk_mul_f32 v[{EE+2*p}:{EE+2*p+1}], v[{EE+2*p}:{EE+2*p+1}], v[{G+16*t+2*p}:{G+16*t+2*p+1}]')
            for b in range(4):
                m=D0+4*b+2*t
                a(f'v_cvt_pk_bf16_f32 v{m}, v{EE+b}, v{EE+4+b}'); a(f'v_cvt_pk_bf16_f32 v{m+1}, v{EE+8+b}, v{EE+12+b}')
        a('s_waitcnt lgkmcnt(0)')
        for b in range(4):
            a(f'v_mfma_f32_16x16x32_bf16 v[{ACC+4*b}:{ACC+4*b+3}], v[{SS}:{SS+3}], v[{D0+4*b}:{D0+4*b+3}], v[{ACC+4*b}:{ACC+4*b+3}]')
    stamp(a,3)
    issue(0)
    stamp(a,4)
    issue(1)
    a('s_cmp_lg_u32 s49, 0'); a('s_cbranch_scc1 K2_I2')
    a('s_mov_b32 s49, 1'); a('s_mov_b32 s47, 0x05040100')
    a(f's_waitcnt vmcnt({2*NL})')
    for b in range(4):
        for p in range(2): a(f'v_perm_b32 v{BO+4*b+2+p}, v{D0+8*p+4+b}, v{D0+8*p+b}, s47')
        for i in range(4): a(f'v_mov_b32 v{ACC+4*b+i}, v{D0+4*i+b}')
    a.label('K2_I2')
    a(f'ds_read2_b32 v[{SS+4}:{SS+5}], v3 offset0:0 offset1:16'); a('s_waitcnt lgkmcnt(0)')
    for u in range(2): a(f'v_and_or_b32 v{SS+4+u}, v{SS+4+u}, s51, v5')
    for u in range(2): a(f'ds_read_b64 v[{AF+4*u+2}:{AF+4*u+3}], v{SS+4+u}')
    stamp(a,5)
    a('s_cmp_eq_u32 s63, 0'); a('s_cbranch_scc1 K2_NEXT')
    a.label('K2_LOOP')
    def body(k):
        G=BUF[k]; A=AF; DD=[D0,D1]; kn=(k+2)%3; GN=BUF[kn]; W=XR
        skip=[0]
        def grp(f):
            l=f'K2_S{k}_{skip[0]}'; skip[0]+=1
            a(f's_cbranch_scc1 {l}'); f(); a.label(l)
        def ld(i):
            a(f'v_perm_b32 v{W+i}, v{W+i}, v1, s50')
            if 't' in OPT['exp']: a(f'v_and_b32 v{W+i}, 0x3fff, v{W+i}')
            a(f'buffer_load_dwordx4 v[{GN+4*i}:{GN+4*i+3}], v{W+i}, s[28:31], 0 offen {OPT["tld"]}')
        def lde():
            a('v_lshrrev_b32 v8, 9, v8')
            if 'g' in OPT['exp']: a('v_lshrrev_b32 v8, 2, v8'); a('v_add_u32 v8, s78, v8')
            if 'e' in OPT['exp']: a('v_and_b32 v8, 63, v8')
            a(f'buffer_load_dwordx4 v[8:9], s[32:35], 0 idxen offen {OPT["eld"]} lds')
        shl=lambda t,b:[a(f'v_lshlrev_b32 v{DD[t]+4*b+i}, 16, v{G+16*t+4*i+b}') for i in range(4)]
        mf=lambda t,b:a(f'v_mfma_f32_16x16x32_bf16 v[{DD[t]+4*b}:{DD[t]+4*b+3}], v[{A+4*t}:{A+4*t+3}], v[{BO+4*b}:{BO+4*b+3}], v[{DD[t]+4*b}:{DD[t]+4*b+3}]')
        ex=lambda t,b:[a(f'v_exp_f32 v{EE+4*i+b}, v{DD[t]+4*b+i}') for i in range(4)]
        if OPT['prio']:
            if OPT['prio']==1: a('s_setprio 3'); a('s_cmp_ge_u32 s63, 4'); a(f's_cbranch_scc1 K2_W10_{k}')
            a('s_setprio 2'); a('s_cmp_ge_u32 s63, 3'); a(f's_cbranch_scc1 K2_W10_{k}')
            a('s_setprio 1')
        a('s_cmp_ge_u32 s59, 2'); a(f's_cbranch_scc1 K2_W10_{k}')
        if OPT['prio']: a('s_setprio 0')
        a('s_waitcnt vmcnt(0)')
        a.label(f'K2_W10_{k}')
        a(f's_waitcnt vmcnt({NL})')
        for t in range(2): a(f'ds_read_b64 v[{A+4*t}:{A+4*t+1}], v11 offset:{EB+1024*k+512*t}')
        if k==1: a('v_add_u32 v2, 384, v2'); a('v_add_u32 v10, 384, v10')
        a(f'ds_read2_b32 v[{SS+6}:{SS+7}], v4 offset0:{32*k} offset1:{32*k+16}')
        a(f'ds_read2_b32 v[{SS+4}:{SS+5}], v3 offset0:{32*k+32} offset1:{32*k+48}')
        a(f'ds_read_b128 v[{W}:{W+3}], v2 offset:{128*kn}'); a(f'ds_read_b128 v[{W+4}:{W+7}], v2 offset:{128*kn+64}')
        a(f'ds_read_b32 v8, v10 offset:{128*kn}')
        a(f's_mov_b32 m0, s{36+kn}')
        a('s_cmp_lt_u32 s63, 3')
        for b in range(4): shl(0,b)
        shl(1,0)
        a('s_waitcnt lgkmcnt(5)')
        for b in range(4):
            mf(0,b)
            if b<3: shl(1,b+1)
        a('s_waitcnt lgkmcnt(3)')
        for u in range(2): a(f'v_and_or_b32 v{SS+6+u}, v{SS+6+u}, s51, v6')
        for u in range(2): a(f'v_and_or_b32 v{SS+4+u}, v{SS+4+u}, s51, v5')
        for b in range(4):
            mf(1,b); ex(0,b)
        for u in range(2): a(f'ds_read_b64_tr_b16 v[{SS+2*u}:{SS+2*u+1}], v{SS+6+u}')
        for u in range(2): a(f'ds_read_b64 v[{A+4*u+2}:{A+4*u+3}], v{SS+4+u}')
        a('s_waitcnt lgkmcnt(4)')
        for t in range(2):
            if t==1:
                for b in range(4):
                    ex(1,b)
                    if b%2==1: grp(lambda: ld(4+b//2))
            for p in range(8): a(f'v_pk_add_f32 v[{EE+2*p}:{EE+2*p+1}], v[{EE+2*p}:{EE+2*p+1}], s[54:55]')
            for p in range(16):
                a(f'v_rcp_f32 v{EE+p}, v{EE+p}')
                if t==0 and p%4==3: grp(lambda: ld(p//4))
                if t==1 and p in (3,9): grp(lambda: ld(6+p//9))
                if t==1 and p==15: grp(lde)
            for p in range(8): a(f'v_pk_mul_f32 v[{EE+2*p}:{EE+2*p+1}], v[{EE+2*p}:{EE+2*p+1}], v[{G+16*t+2*p}:{G+16*t+2*p+1}]')
            if t==1: a('s_waitcnt lgkmcnt(2)')
            for b in range(4):
                m=D0+4*b+2*t
                a(f'v_cvt_pk_bf16_f32 v{m}, v{EE+b}, v{EE+4+b}'); a(f'v_cvt_pk_bf16_f32 v{m+1}, v{EE+8+b}, v{EE+12+b}')
                if t==1 and b>0: a(f'v_mfma_f32_16x16x32_bf16 v[{ACC+4*b-4}:{ACC+4*b-1}], v[{SS}:{SS+3}], v[{D0+4*b-4}:{D0+4*b-1}], v[{ACC+4*b-4}:{ACC+4*b-1}]')
        a('s_sub_u32 s59, s59, 1'); a('s_sub_u32 s63, s63, 1')
        a(f'v_mfma_f32_16x16x32_bf16 v[{ACC+12}:{ACC+15}], v[{SS}:{SS+3}], v[{D0+12}:{D0+15}], v[{ACC+12}:{ACC+15}]')
        if k==2:
            for r in (3,4): a(f'v_add_u32 v{r}, 384, v{r}')
        a('s_cmp_eq_u32 s63, 0')
        if k<2: a('s_cbranch_scc1 K2_NEXT')
        else: a('s_cbranch_scc0 K2_LOOP')
    for k in range(3): body(k)
    a.label('K2_NEXT')
    a.nop(8)
    a('s_cmp_lt_u32 s62, 5'); a('s_cbranch_scc1 K2_SLOW')
    a('s_cmp_eq_u64 s[56:57], 0'); a('s_cbranch_scc1 K2_FINAL')
    a('s_mov_b32 s62, 0')
    a('s_ff1_i32_b64 s60, s[56:57]'); a('s_bitset0_b64 s[56:57], s60'); a('s_and_b32 s61, s60, 7'); a('s_lshl_b32 s61, s61, 3'); a('s_lshr_b32 s60, s60, 3'); a('s_add_u32 s60, s60, s61'); a(f's_mul_i32 s61, s60, {CE}')
    a.label('K2_SLOW')
    a('s_waitcnt vmcnt(0) lgkmcnt(0)')
    srd(a,68,10,11,E*4); srd(a,72,8,9,E*4)
    a('s_mul_i32 s64, s62, 500'); a('s_add_u32 s64, s64, s61'); a('s_lshl_b32 s65, s64, 2')
    a(f'v_lshlrev_b32 v{T}, 4, v7')
    a(f'buffer_load_dwordx4 v[{MR}:{MR+3}], v{T}, s[68:71], s65 offen'); a(f'buffer_load_dwordx4 v[{MR+4}:{MR+7}], v{T}, s[68:71], s65 offen offset:1024')
    a(f'buffer_load_dwordx4 v[{MR+8}:{MR+11}], v{T}, s[72:75], s65 offen'); a(f'buffer_load_dwordx4 v[{MR+12}:{MR+15}], v{T}, s[72:75], s65 offen offset:1024')
    a('s_mov_b32 s58, 0'); a('s_add_u32 s62, s62, 1'); a('s_mul_i32 s66, s40, 10')
    a('s_waitcnt vmcnt(0)')
    for r in range(8):
        idx=256*(r//4)+(r%4)
        a(f'v_lshlrev_b32 v{T+1}, 2, v7'); a(f'v_add_u32 v{T+1}, {idx}, v{T+1}')
        a(f'v_mov_b32 v{T+2}, 500'); a(f'v_cmp_lt_u32 s[76:77], v{T+1}, v{T+2}')
        a(f'v_subrev_u32 v{T+2}, s66, v{MR+r}'); a(f'v_cmp_gt_u32 vcc, 10, v{T+2}')
        a('s_and_b64 vcc, vcc, s[76:77]')
        a(f'v_lshlrev_b32 v{T+3}, 16, v{MR+8+r}')
        a(f'v_add_lshl_u32 v{T+4}, v{T+1}, s64, 9'); a(f'v_lshl_add_u32 v{T+4}, v{T+2}, 5, v{T+4}')
        a(f'v_mbcnt_lo_u32_b32 v{T+5}, vcc_lo, 0'); a(f'v_mbcnt_hi_u32_b32 v{T+5}, vcc_hi, v{T+5}')
        a(f'v_add_lshl_u32 v{T+5}, v{T+5}, s58, 2'); a(f'v_add_u32 v{T+5}, s48, v{T+5}')
        a('s_bcnt1_i32_b64 s67, vcc'); a('s_add_u32 s58, s58, s67')
        a('s_mov_b64 exec, vcc')
        a(f'ds_write_b32 v{T+5}, v{T+3} offset:512'); a(f'ds_write_b32 v{T+5}, v{T+4} offset:{512+ARR}')
        a('s_mov_b64 exec, -1')
    a('s_branch K2_PROC')
    a.label('K2_FINAL')
    a('s_waitcnt vmcnt(0)')
    stamp(a,6)
    a('v_lshrrev_b32 v15, 4, v7'); a('v_mul_u32_u24 v2, 1088, v15'); a('v_lshrrev_b32 v3, 2, v1'); a('v_add3_u32 v2, v2, v3, s48')
    for b in range(4):
        for i in range(4): a(f'ds_write_b32 v2, v{ACC+4*b+i} offset:{512+272*i+64*b}')
    a('v_mul_u32_u24 v4, 272, v15'); a('v_add3_u32 v4, v4, v1, s48')
    for j in range(3): a(f'ds_read_b128 v[{D0+4*j}:{D0+4*j+3}], v4 offset:{512+1088*j}')
    a('v_lshlrev_b32 v6, 8, v15'); a('v_lshrrev_b32 v3, 1, v1'); a('v_add_u32 v6, v6, v3')
    a('s_mul_i32 s44, s40, 2560'); a('s_add_u32 s44, s44, s45')
    srd_off(a,24,18,19,'s44',2560-128)
    a('s_waitcnt lgkmcnt(0)')
    for p in range(6): a(f'v_pk_mul_f32 v[{D1+2*p}:{D1+2*p+1}], v[{D0+2*p}:{D0+2*p+1}], s[52:53]')
    for i in range(12): a(f'v_exp_f32 v{D1+i}, v{D1+i}')
    for p in range(6): a(f'v_pk_add_f32 v[{D1+2*p}:{D1+2*p+1}], v[{D1+2*p}:{D1+2*p+1}], s[54:55]')
    for i in range(12): a(f'v_rcp_f32 v{D1+i}, v{D1+i}')
    for p in range(6): a(f'v_pk_mul_f32 v[{D0+2*p}:{D0+2*p+1}], v[{D0+2*p}:{D0+2*p+1}], v[{D1+2*p}:{D1+2*p+1}]')
    for p in range(6): a(f'v_cvt_pk_bf16_f32 v{EE+p}, v{D0+2*p}, v{D0+2*p+1}')
    for j in range(3): a(f'buffer_store_dwordx2 v[{EE+2*j}:{EE+2*j+1}], v6, s[24:27], 0 offen offset:{1024*j}')
    if gen1.STAMP:
        a('s_waitcnt vmcnt(0)'); stamp(a,7,True)
        a('s_lshl_b32 s79, s2, 3'); a('s_add_u32 s79, s79, s42'); stamp_out(a,8,'s79',OFF_ST,30)
    a.label('K2_END')
    a('s_endpgm')
    return a
def mk(path):
    build([('prep_kernel',k1(),CH+160*OPT['np']+OPT['np']-1,512,K1_LDS),(NAME+'_kernel',k2(),256,512,K2_LDS)],path)
if __name__=='__main__':
    for arg in sys.argv[2:]:
        if arg=='stamp': gen1.STAMP=True
        else:
            k,v=arg.split('='); OPT[k]=eval(v)
    mk(sys.argv[1])
```

```python
import sys, gen1, gen3, gen4
from gen1 import build, NAME
OPT=gen4.OPT; gen3.OPT=OPT; OPT['np']=1
gen3.OFF_META=gen4.OFF_META; gen3.WS_END=gen4.WS_END
for arg in sys.argv[2:]:
    if arg=='stamp': gen1.STAMP=True
    else:
        k,v=arg.split('='); OPT[k]=eval(v)
build([('prep_kernel',gen4.k1(),gen4.CH+160,512,gen4.K1_LDS),(NAME+'_kernel',gen3.k2(),256,512,gen3.K2_LDS)],sys.argv[1])
```

```python
import sys, struct
from asmlib import Asm
import gen1
from gen1 import srd, srd_off, f2u, build, NAME, stamp, stamp_out, OFF_ST
N=10000;E=160000;NBK=1000;CH=64;CE=2500;CAP=15
THALF=N*256
OFF_META=2*THALF
WS_END=OFF_META+NBK*4096
NLOG2E=f2u(-1.4426950408889634)
TINY=f2u(2.0**-100)
OPT=dict(st='',skipq=False,pref=False,exp='',eld='',mld='',xld='',tld='',mq=2,early=True,prio=True)
NG=79
K1_LDS=81920+4096
def wimg_addrs(a,vrow,vpiece,vdst,vt):
    a(f'v_lshrrev_b32 v{vdst}, 4, v{vrow}'); a(f'v_mul_u32_u24 v{vdst}, 4736, v{vdst}')
    a(f'v_and_b32 v{vt}, 15, v{vrow}'); a(f'v_mul_u32_u24 v{vt}, 288, v{vt}'); a(f'v_add_u32 v{vdst}, v{vdst}, v{vt}')
    a(f'v_bfe_u32 v{vt}, v{vrow}, 3, 1'); a(f'v_lshl_add_u32 v{vdst}, v{vt}, 7, v{vdst}'); a(f'v_lshl_add_u32 v{vdst}, v{vpiece}, 4, v{vdst}')
def tr_addr(a,vq,vc,vdst,vt):
    a(f'v_lshrrev_b32 v{vdst}, 1, v{vq}'); a(f'v_mul_u32_u24 v{vdst}, 4736, v{vdst}')
    a(f'v_and_b32 v{vt}, 1, v{vq}'); a(f'v_mul_u32_u24 v{vt}, 2432, v{vt}'); a(f'v_add_u32 v{vdst}, v{vdst}, v{vt}')
    a(f'v_lshrrev_b32 v{vt}, 2, v{vc}'); a(f'v_mul_u32_u24 v{vt}, 288, v{vt}'); a(f'v_add_u32 v{vdst}, v{vdst}, v{vt}')
    a(f'v_and_b32 v{vt}, 3, v{vc}'); a(f'v_lshl_add_u32 v{vdst}, v{vt}, 3, v{vdst}')
def gemm_stream(a,vtr,XF,slots,dres,base=0):
    hs=[(s,mm) for s in range(4) for mm in range(2)]
    def rd(h):
        s,mm=hs[h]; sl=slots[h%len(slots)]
        for b in range(4):
            for u in range(2):
                r=sl+4*b+2*u
                a(f'ds_read_b64_tr_b16 v[{r}:{r+1}], v{vtr} offset:{base+s*9472+u*1152+mm*128+b*32}')
    rd(0)
    for h in range(8):
        if h+1<8: rd(h+1); a('s_waitcnt lgkmcnt(8)')
        else: a('s_waitcnt lgkmcnt(0)')
        s,mm=hs[h]; sl=slots[h%len(slots)]
        for b in range(4):
            d=dres(mm,b); c='0' if s==0 else f'v[{d}:{d+3}]'
            a(f'v_mfma_f32_16x16x32_bf16 v[{d}:{d+3}], v[{XF+4*s}:{XF+4*s+3}], v[{sl+4*b}:{sl+4*b+3}], {c}')
def fin(a,wpw_shift,base):
    if gen1.STAMP:
        stamp(a,5); a('s_waitcnt vmcnt(0)'); stamp(a,6); stamp(a,7,True)
        a('v_lshrrev_b32 v70, 6, v0'); a('v_readfirstlane_b32 s78, v70')
        a(f's_lshl_b32 s79, s2, {wpw_shift}'); a('s_add_u32 s79, s79, s78'); stamp_out(a,8,'s79',base,70)
def k1():
    a=Asm(); ST=OPT['st']
    stamp(a,0,True); stamp(a,1)
    a('s_load_dwordx16 s[4:19], s[0:1], 0')
    a('s_load_dwordx2 s[20:21], s[0:1], 72')
    a(f's_cmp_ge_u32 s2, {CH+160}'); a('s_cbranch_scc1 K1_END')
    a(f's_cmp_lt_u32 s2, {CH}'); a('s_cbranch_scc1 K1_SORT')
    a(f's_sub_u32 s3, s2, {CH}')
    a('s_and_b32 s40, s3, 7'); a('s_lshr_b32 s41, s3, 4'); a('s_lshl_b32 s41, s41, 3'); a('s_add_u32 s40, s40, s41')
    a('s_bfe_u32 s42, s3, 0x10003')
    a(f's_cmp_ge_u32 s40, {NG}'); a('s_cbranch_scc1 K1_END')
    a('v_and_b32 v1, 7, v0'); a('v_lshrrev_b32 v2, 3, v0')
    a('v_lshlrev_b32 v3, 8, v2'); a('v_lshl_add_u32 v3, v1, 4, v3'); a('v_add_u32 v4, 16384, v3')
    a('v_lshrrev_b32 v5, 6, v0'); a('v_readfirstlane_b32 s48, v5')
    a('v_and_b32 v6, 63, v0'); a('v_and_b32 v7, 15, v6'); a('v_lshrrev_b32 v5, 4, v6')
    a('s_lshl_b32 s49, s40, 3'); a('s_add_u32 s49, s49, s48'); a('s_lshl_b32 s50, s49, 12')
    a('v_lshlrev_b32 v24, 8, v7'); a('v_lshl_add_u32 v24, v5, 4, v24')
    a('s_lshl_b32 s45, s42, 7')
    a('s_waitcnt lgkmcnt(0)')
    srd_off(a,28,16,17,32768,32768); srd(a,32,14,15,32768); srd(a,36,4,5,N*256)
    a('buffer_load_dwordx4 v[8:11], v3, s[28:31], s45 offen'); a('buffer_load_dwordx4 v[12:15], v4, s[28:31], s45 offen')
    a('buffer_load_dwordx4 v[16:19], v3, s[32:35], s45 offen'); a('buffer_load_dwordx4 v[20:23], v4, s[32:35], s45 offen')
    XF=28
    for s in range(4): a(f'buffer_load_dwordx4 v[{XF+4*s}:{XF+4*s+3}], v24, s[36:39], s50 offen offset:{64*s}')
    if OPT['pref']:
        srd(a,60,6,7,E*32)
        a('s_mul_i32 s64, s3, 32768'); a('v_lshlrev_b32 v100, 4, v0')
        for j in range(4):
            a(f'buffer_load_dwordx4 v[{104+4*j}:{107+4*j}], v100, s[60:63], s64 offen'); a('s_add_u32 s64, s64, 8192')
    np_=4 if OPT['pref'] else 0
    wimg_addrs(a,2,1,25,26); tr_addr(a,5,7,26,27)
    a(f's_mov_b32 s52, {NLOG2E}'); a(f's_mov_b32 s53, {NLOG2E}'); a(f's_mov_b32 s57, {TINY}')
    a('s_mov_b32 s58, 0x80008000'); a('s_mov_b32 s54, 0x07060100'); a('s_mov_b32 s55, 0x07060302'); a('s_mov_b32 s59, 0x80000000')
    a(f's_mul_i32 s56, s42, {THALF}'); srd_off(a,24,20,21,'s56',THALF)
    a(f's_waitcnt vmcnt({7+np_})'); a('ds_write_b128 v25, v[8:11]')
    a(f's_waitcnt vmcnt({6+np_})'); a(f'ds_write_b128 v25, v[12:15] offset:{4*4736}')
    a(f's_waitcnt vmcnt({5+np_})'); a('ds_write_b128 v25, v[16:19] offset:128')
    a(f's_waitcnt vmcnt({4+np_})'); a(f'ds_write_b128 v25, v[20:23] offset:{4*4736+128}')
    stamp(a,2)
    a('s_waitcnt lgkmcnt(0)'); a('s_barrier')
    a(f's_waitcnt vmcnt({np_})')
    stamp(a,3)
    D0=44
    dd=lambda mm,b: D0+(mm*4+b)*4
    gemm_stream(a,26,XF,[76,8],dd) if False else gemm_stream(a,26,XF,[76,92],dd)
    stamp(a,4)
    a('v_lshlrev_b32 v9, 10, v5'); a('v_lshl_add_u32 v9, v7, 4, v9')
    for b in range(4):
        d=dd(0,b)
        a(f'v_pk_mul_f32 v[{d}:{d+1}], v[{d}:{d+1}], s[52:53]'); a(f'v_pk_mul_f32 v[{d+2}:{d+3}], v[{d+2}:{d+3}], s[52:53]')
    for i in range(4):
        o=12+(i%2)*12
        for bp in range(2):
            a(f'v_cvt_pk_bf16_f32 v{o+4+bp}, v{dd(0,2*bp)+i}, v{dd(0,2*bp+1)+i}')
        for b in range(4): a(f'v_max_f32 v{o+8+b}, |v{dd(1,b)+i}|, s57')
        for bp in range(2): a(f'v_xor_b32 v{o+6+bp}, s58, v{o+4+bp}')
        for b in range(4):
            a(f'v_sub_u32_sdwa v{o+8+b}, v{o+8+b}, sext(v{o+6+b//2}) dst_sel:DWORD dst_unused:UNUSED_PAD src0_sel:DWORD src1_sel:WORD_{b%2}')
        for b in range(4): a(f'v_perm_b32 v{o+b}, v{o+8+b}, v{o+4+b//2}, s{54+b%2}')
        for b in range(4): a(f'v_and_or_b32 v{o+b}, v{dd(1,b)+i}, s59, v{o+b}')
        a(f'buffer_store_dwordx4 v[{o}:{o+3}], v9, s[24:27], s50 offen offset:{256*i} {ST}')
    fin(a,3,OFF_ST+(1<<20))
    a('s_endpgm')
    a.label('K1_SORT')
    a(f's_mul_i32 s40, s2, {CE*4}')
    a('v_mul_u32_u24 v1, 20, v0')
    a('v_mov_b32 v20, 0'); a('v_mov_b32 v21, 0'); a('v_lshlrev_b32 v2, 3, v0')
    a('ds_write_b64 v2, v[20:21] offset:0')
    a('s_waitcnt lgkmcnt(0)')
    srd(a,28,10,11,E*4); srd(a,32,8,9,E*4); srd(a,24,20,21,WS_END)
    a('buffer_load_dwordx4 v[8:11], v1, s[28:31], s40 offen'); a('buffer_load_dword v12, v1, s[28:31], s40 offen offset:16')
    a('buffer_load_dwordx4 v[14:17], v1, s[32:35], s40 offen'); a('buffer_load_dword v18, v1, s[32:35], s40 offen offset:16')
    a('v_mov_b32 v3, 1'); a('v_mul_u32_u24 v4, 80, v0')
    a('s_barrier')
    a(f'v_cmp_gt_u32 vcc, {CE//5}, v0'); a('s_and_saveexec_b64 s[42:43], vcc')
    stamp(a,2)
    a('s_waitcnt vmcnt(2)')
    stamp(a,3)
    for j in range(5):
        a(f'v_mul_u32_u24 v{24+j}, 52429, v{8+j}'); a(f'v_lshrrev_b32 v{24+j}, 19, v{24+j}')
        a(f'v_lshlrev_b32 v{30+j}, 2, v{24+j}')
        a(f'ds_add_rtn_u32 v{36+j}, v{30+j}, v3')
    a('s_waitcnt vmcnt(0)')
    for j in range(5):
        a(f'v_mul_u32_u24 v{30+j}, 10, v{24+j}'); a(f'v_sub_u32 v{8+j}, v{8+j}, v{30+j}')
        a(f'v_lshl_or_b32 v{8+j}, v{14+j}, 16, v{8+j}')
        a(f'v_add3_u32 v{8+j}, v{8+j}, v4, {16*j}')
        a(f'v_mul_u32_u24 v{24+j}, 80, v{24+j}')
    for j in range(5):
        a(f's_waitcnt lgkmcnt({4})' if j>0 else 's_waitcnt lgkmcnt(4)')
        a(f'v_min_u32 v{36+j}, {CAP-1}, v{36+j}'); a(f'v_lshl_add_u32 v{36+j}, v{36+j}, 2, v{24+j}')
        a(f'ds_write_b32 v{36+j}, v{8+j} offset:{4096+4}')
    a('s_mov_b64 exec, s[42:43]')
    a('v_mul_u32_u24 v1, 80, v0'); a('v_lshlrev_b32 v6, 2, v0'); a('v_lshlrev_b32 v7, 12, v0')
    a('s_and_b32 s44, s2, 7'); a('s_lshl_b32 s44, s44, 3'); a('s_lshr_b32 s45, s2, 3'); a('s_add_u32 s44, s44, s45')
    a('s_lshl_b32 s44, s44, 4'); a(f's_add_u32 s44, s44, {OFF_META}'); a(f's_add_u32 s45, s44, {512*4096}')
    a('s_waitcnt lgkmcnt(0)'); a('s_barrier')
    stamp(a,4)
    for h in range(2):
        a(f'ds_read_b32 v{60+h}, v6 offset:{2048*h}')
        for q in range(2): a(f'ds_read_b128 v[{40+8*h+4*q}:{43+8*h+4*q}], v1 offset:{4096+40960*h+16*q}')
    for h in range(2):
        a(f's_waitcnt lgkmcnt({3-3*h})')
        a(f'v_mov_b32 v{40+8*h}, v{60+h}')
        a(f'v_cmp_lt_u32 vcc, 3, v{60+h}')
        a(f'buffer_store_dwordx4 v[{40+8*h}:{43+8*h}], v7, s[24:27], s{44+h} offen {ST}')
        a('s_mov_b64 exec, vcc')
        a(f'buffer_store_dwordx4 v[{44+8*h}:{47+8*h}], v7, s[24:27], s{44+h} offen offset:1024 {ST}')
        a('s_mov_b64 exec, -1')
    for h in range(2):
        a(f'v_cmp_lt_u32 vcc, 7, v{60+h}'); a('s_and_saveexec_b64 s[42:43], vcc'); a(f's_cbranch_execz K1_SK{h}')
        for q in range(2,4): a(f'ds_read_b128 v[{16+8*h+4*q}:{19+8*h+4*q}], v1 offset:{4096+40960*h+16*q}')
        a('s_waitcnt lgkmcnt(0)')
        for q in range(2,4): a(f'buffer_store_dwordx4 v[{16+8*h+4*q}:{19+8*h+4*q}], v7, s[24:27], s{44+h} offen offset:{1024*q} {ST}')
        a.label(f'K1_SK{h}')
        a('s_mov_b64 exec, s[42:43]')
    fin(a,3,OFF_ST+(1<<20))
    a.label('K1_END')
    a('s_endpgm')
    return a

LCAP=1088; ARR=LCAP*4
EB=512+2*ARR
WREG=EB+3072
XIMG=8*WREG; WIMG=XIMG+96*256; CIMG=WIMG+8*4736
K2_LDS=CIMG+16*160
NL=9
def k2():
    a=Asm()
    stamp(a,0,True); stamp(a,1)
    a('s_load_dwordx16 s[4:19], s[0:1], 0')
    a('s_load_dwordx2 s[20:21], s[0:1], 72')
    if OPT['prio']==2: a('s_setprio 3')
    a('s_lshr_b32 s40, s2, 3'); a('s_lshl_b32 s40, s40, 2'); a('s_and_b32 s41, s2, 3'); a('s_add_u32 s40, s40, s41')
    a('s_bfe_u32 s41, s2, 0x10002')
    a(f's_cmp_ge_u32 s40, {NBK//8}'); a('s_cbranch_scc1 K2_END')
    a('v_lshrrev_b32 v7, 6, v0'); a('v_readfirstlane_b32 s42, v7')
    a('v_and_b32 v7, 63, v0')
    a('s_mul_i32 s46, s40, 80')
    a('s_lshl_b32 s40, s40, 3'); a('s_add_u32 s40, s40, s42')
    BO=16; ACC=32; SS=48; D0=56; D1=72; EE=88; AF=104; XF=104; XR=120; BUF=[136,168,200]; MR=136; X=232
    a(f's_lshl_b32 s43, s40, 12'); a(f's_add_u32 s43, s43, {OFF_META}')
    a('v_lshlrev_b32 v15, 4, v7')
    a('v_and_b32 v52, 7, v0'); a('v_lshrrev_b32 v53, 3, v0')
    a('v_lshlrev_b32 v54, 8, v53'); a('v_lshl_add_u32 v54, v52, 4, v54')
    a('v_and_b32 v1, 15, v7'); a('v_lshrrev_b32 v55, 4, v7')
    a('s_mul_i32 s47, s42, 12'); a('s_add_u32 s46, s46, s47')
    a(f'v_lshlrev_b32 v{X+3}, 2, v55'); a(f'v_xor_b32 v{X+3}, v{X+3}, v1'); a(f'v_lshlrev_b32 v{X+3}, 4, v{X+3}')
    for j in range(3):
        a(f'v_add3_u32 v{X+j}, v55, s46, {4*j}'); a(f'v_min_u32 v{X+j}, {N-1}, v{X+j}'); a(f'v_lshl_add_u32 v{X+j}, v{X+j}, 8, v{X+3}')
    a('s_lshl_b32 s45, s41, 7')
    a(f's_mul_i32 s48, s42, {WREG}')
    a(f's_mul_i32 s36, s42, 3072'); a(f's_add_u32 s36, s36, {XIMG}')
    a('s_waitcnt lgkmcnt(0)')
    srd(a,24,20,21,WS_END)
    MQ=OPT['mq']
    for j in range(MQ): a(f'buffer_load_dwordx4 v[{MR+4*j}:{MR+4*j+3}], v15, s[24:27], s43 offen offset:{1024*j} {OPT["mld"]}')
    srd(a,64,16,17,272*256); srd(a,68,12,13,32768); srd(a,72,4,5,N*256)
    a(f's_mul_i32 s46, s41, {THALF}'); srd_off(a,28,20,21,'s46',THALF)
    a('s_mov_b32 s32, s6'); a('s_and_b32 s33, s7, 0xffff'); a('s_or_b32 s33, s33, 0x200000'); a(f's_mov_b32 s34, {E}'); a('s_mov_b32 s35, 0x20000')
    a('v_lshrrev_b32 v4, 2, v7'); a('v_and_b32 v6, 3, v7'); a('v_lshlrev_b32 v5, 2, v6'); a('v_sub_u32 v5, v4, v5')
    a('v_lshlrev_b32 v2, 4, v5'); a('v_mov_b32 v8, 0x3f80'); a('v_mov_b32 v9, 0'); a('v_lshlrev_b64 v[8:9], v2, v[8:9]')
    a('v_cmp_gt_u32 vcc, 4, v5'); a('v_cndmask_b32 v8, 0, v8, vcc'); a('v_cndmask_b32 v9, 0, v9, vcc')
    a('v_lshl_add_u32 v2, v7, 3, s48'); a('ds_write_b64 v2, v[8:9]')
    a('s_cmp_ge_u32 s42, 2'); a('s_cbranch_scc1 K2_NOC0')
    a('s_add_u32 s47, s45, 65536')
    a(f'buffer_load_dwordx4 v[{EE}:{EE+3}], v54, s[64:67], s47 offen')
    a.label('K2_NOC0')
    a('s_add_u32 s47, s45, 16384'); a('s_mov_b32 m0, s36')
    for j in range(2):
        a(f'buffer_load_dwordx4 v[{D0+8*j}:{D0+8*j+3}], v54, s[64:67], s{45+2*j} offen')
        a(f'buffer_load_dwordx4 v[{D0+8*j+4}:{D0+8*j+7}], v54, s[68:71], s{45+2*j} offen')
    for j in range(3):
        a(f'buffer_load_dwordx4 v{X+j}, s[72:75], 0 offen {OPT["xld"]} lds')
        if j<2: a('s_add_u32 m0, m0, 1024'); a('s_nop 0')
    a('v_lshl_add_u32 v12, v55, 4, s48'); a('v_add_u32 v12, 512, v12')
    a('v_lshl_add_u32 v13, v1, 2, s48'); a(f'v_add_u32 v13, {512+ARR}, v13')
    a('v_lshl_add_u32 v14, v4, 2, s48'); a(f'v_add_u32 v14, {512+ARR}, v14')
    a('v_lshl_add_u32 v5, v55, 3, s48')
    a(f'v_lshl_add_u32 v11, v1, 5, v5')
    a('v_lshl_add_u32 v6, v6, 3, s48')
    a('v_and_b32 v9, 1, v7'); a('v_lshlrev_b32 v9, 4, v9')
    wimg_addrs(a,53,52,54,15)
    a('v_mul_u32_u24 v53, 160, v53'); a('v_lshl_add_u32 v53, v52, 4, v53')
    tr_addr(a,55,1,52,15)
    a('s_mul_i32 s47, s42, 10'); a(f'v_add_u32 v{X+4}, s47, v1'); a(f'v_and_b32 v15, 3, v{X+4}')
    a(f'v_lshlrev_b32 v{X+4}, 8, v{X+4}'); a(f'v_lshl_add_u32 v{X+4}, v15, 6, v{X+4}'); a(f'v_lshl_add_u32 v{X+4}, v55, 4, v{X+4}'); a(f'v_add_u32 v{X+4}, {XIMG}, v{X+4}')
    for s in range(1,4): a(f'v_xor_b32 v{X+4+s}, {64*s}, v{X+4}')
    a('v_mul_u32_u24 v55, 160, v4'); a('v_and_b32 v15, 3, v7'); a('v_lshl_add_u32 v55, v15, 3, v55')
    a(f'v_add_u32 v53, {CIMG}, v53'); a(f'v_add_u32 v55, {CIMG}, v55'); a(f'v_add_u32 v52, {WIMG}, v52'); a(f'v_add_u32 v54, {WIMG}, v54')
    a('v_lshrrev_b32 v15, 1, v7'); a('v_lshl_add_u32 v15, v15, 2, s48'); a(f'v_add_u32 v15, {512+ARR}, v15')
    a('v_lshlrev_b32 v1, 4, v1')
    a(f'v_and_b32 v{XR}, 7, v7'); a(f'v_lshrrev_b32 v{XR+1}, 3, v7'); a(f'v_lshl_add_u32 v{XR}, v{XR}, 3, v{XR+1}')
    a(f'v_mul_u32_u24 v{XR}, {CE*512}, v{XR}')
    a(f's_mov_b32 s53, {NLOG2E}'); a(f's_mov_b32 s52, {NLOG2E}'); a('s_mov_b32 s54, 1.0'); a('s_mov_b32 s55, 1.0'); a('s_mov_b32 s62, 5')
    if 'g' in OPT['exp']: a('s_and_b32 s78, s2, 3'); a('s_mul_i32 s78, s78, 40000')
    a('s_mov_b32 s50, 0x0c070600'); a('s_mov_b32 s51, 0x1e0'); a('s_mov_b32 s49, 0')
    for k in range(3): a(f's_add_u32 s{36+k}, s48, {EB+1024*k}')
    a('s_waitcnt vmcnt(7)')
    stamp(a,2)
    T=152
    a(f'v_cmp_lt_u32 s[56:57], {CAP}, v{MR}')
    a(f'v_cndmask_b32 v{MR}, v{MR}, 0, s[56:57]')
    a(f'v_mov_b32 v{T}, v{MR}')
    for sh in (1,2,4,8): a(f'v_add_u32_dpp v{T}, v{T}, v{T} row_shr:{sh} row_mask:0xf bank_mask:0xf bound_ctrl:0')
    a(f'v_add_u32_dpp v{T}, v{T}, v{T} row_bcast:15 row_mask:0xa bank_mask:0xf')
    a(f'v_add_u32_dpp v{T}, v{T}, v{T} row_bcast:31 row_mask:0xc bank_mask:0xf')
    a(f'v_readlane_b32 s58, v{T}, 63')
    a(f'v_sub_u32 v{T}, v{T}, v{MR}'); a(f'v_lshl_add_u32 v{T}, v{T}, 2, s48')
    for s in range(CAP):
        a(f'v_cmpx_lt_u32 vcc, {s}, v{MR}')
        if s>=4: a('s_cbranch_execz K2_CDONE')
        if MQ<4 and s==4*MQ-1:
            a(f'v_lshlrev_b32 v{T+3}, 4, v7')
            for j in range(MQ,4): a(f'buffer_load_dwordx4 v[{MR+4*j}:{MR+4*j+3}], v{T+3}, s[24:27], s43 offen offset:{1024*j}')
            a('s_waitcnt vmcnt(0)')
        a(f'v_mad_u32_u16 v{T+1+s%2}, v{MR+1+s}, 32, v{XR}')
        a(f'ds_write_b32 v{T}, v{MR+1+s} offset:{512+4*s}'); a(f'ds_write_b32 v{T}, v{T+1+s%2} offset:{512+ARR+4*s}')
    a.label('K2_CDONE')
    a('s_mov_b64 exec, -1')
    a.label('K2_PROC')
    a(f'v_add_lshl_u32 v{T}, v7, s58, 2'); a(f'v_add_u32 v{T}, s48, v{T}'); a(f'v_mov_b32 v{T+1}, 0'); a(f'v_mov_b32 v{T+2}, 0x1e0')
    for j in range(2):
        a(f'ds_write_b32 v{T}, v{T+1} offset:{512+256*j}'); a(f'ds_write_b32 v{T}, v{T+2} offset:{512+ARR+256*j}')
    a('s_add_u32 s63, s58, 31'); a('s_lshr_b32 s63, s63, 5')
    a('s_max_u32 s59, s63, 2')
    a('v_mov_b32 v2, v12'); a('v_mov_b32 v3, v13'); a('v_mov_b32 v4, v14'); a('v_mov_b32 v10, v15')
    def issue(k,W=XR):
        G=BUF[k]
        a(f'ds_read_b128 v[{W}:{W+3}], v2 offset:{128*k}'); a(f'ds_read_b128 v[{W+4}:{W+7}], v2 offset:{128*k+64}')
        a(f'ds_read_b32 v8, v10 offset:{128*k}')
        a(f's_mov_b32 m0, s{36+k}')
        a('s_waitcnt lgkmcnt(1)')
        for i in range(8):
            a(f'v_perm_b32 v{W+i}, v{W+i}, v1, s50')
            if 't' in OPT['exp']: a(f'v_and_b32 v{W+i}, 0x3fff, v{W+i}')
            a(f'buffer_load_dwordx4 v[{G+4*i}:{G+4*i+3}], v{W+i}, s[28:31], 0 offen {OPT["tld"]}')
        a('s_waitcnt lgkmcnt(0)')
        a(f'v_lshrrev_b32 v8, 9, v8')
        if 'g' in OPT['exp']: a('v_lshrrev_b32 v8, 2, v8'); a('v_add_u32 v8, s78, v8')
        if 'e' in OPT['exp']: a('v_and_b32 v8, 63, v8')
        a(f'buffer_load_dwordx4 v[8:9], s[32:35], 0 idxen offen {OPT["eld"]} lds')
    def compute(k):
        G=BUF[k]; A=AF; DD=[D0,D1]
        a(f'ds_read2_b32 v[{SS+4}:{SS+5}], v3 offset0:{32*k} offset1:{32*k+16}')
        a(f'ds_read2_b32 v[{SS+6}:{SS+7}], v4 offset0:{32*k} offset1:{32*k+16}')
        for t in range(2): a(f'ds_read_b64 v[{A+4*t}:{A+4*t+1}], v11 offset:{EB+1024*k+512*t}')
        for t in range(2):
            for b in range(4):
                for i in range(4): a(f'v_lshlrev_b32 v{DD[t]+4*b+i}, 16, v{G+16*t+4*i+b}')
            if t==0:
                a('s_waitcnt lgkmcnt(2)')
                for u in range(2): a(f'v_and_or_b32 v{SS+4+u}, v{SS+4+u}, s51, v5')
                for u in range(2): a(f'ds_read_b64 v[{A+4*u+2}:{A+4*u+3}], v{SS+4+u}')
                for u in range(2): a(f'v_and_or_b32 v{SS+6+u}, v{SS+6+u}, s51, v6')
                for u in range(2): a(f'ds_read_b64_tr_b16 v[{SS+2*u}:{SS+2*u+1}], v{SS+6+u}')
        a('s_waitcnt lgkmcnt(2)')
        for t in range(2):
            for b in range(4):
                d=DD[t]+4*b
                a(f'v_mfma_f32_16x16x32_bf16 v[{d}:{d+3}], v[{A+4*t}:{A+4*t+3}], v[{BO+4*b}:{BO+4*b+3}], v[{d}:{d+3}]')
        for t in range(2):
            for b in range(4):
                for i in range(4): a(f'v_exp_f32 v{EE+4*i+b}, v{DD[t]+4*b+i}')
            for p in range(8): a(f'v_pk_add_f32 v[{EE+2*p}:{EE+2*p+1}], v[{EE+2*p}:{EE+2*p+1}], s[54:55]')
            for p in range(16): a(f'v_rcp_f32 v{EE+p}, v{EE+p}')
            for p in range(8): a(f'v_pk_mul_f32 v[{EE+2*p}:{EE+2*p+1}], v[{EE+2*p}:{EE+2*p+1}], v[{G+16*t+2*p}:{G+16*t+2*p+1}]')
            for b in range(4):
                m=D0+4*b+2*t
                a(f'v_cvt_pk_bf16_f32 v{m}, v{EE+b}, v{EE+4+b}'); a(f'v_cvt_pk_bf16_f32 v{m+1}, v{EE+8+b}, v{EE+12+b}')
        a('s_waitcnt lgkmcnt(0)')
        for b in range(4):
            a(f'v_mfma_f32_16x16x32_bf16 v[{ACC+4*b}:{ACC+4*b+3}], v[{SS}:{SS+3}], v[{D0+4*b}:{D0+4*b+3}], v[{ACC+4*b}:{ACC+4*b+3}]')
    a('s_cmp_lg_u32 s49, 0'); a('s_cbranch_scc1 K2_I1')
    stamp(a,3)
    a(f's_waitcnt vmcnt(0)')
    for j in range(2):
        a(f'ds_write_b128 v54, v[{D0+8*j}:{D0+8*j+3}] offset:{18944*j}'); a(f'ds_write_b128 v54, v[{D0+8*j+4}:{D0+8*j+7}] offset:{18944*j+128}')
    a('s_cmp_ge_u32 s42, 2'); a('s_cbranch_scc1 K2_NOC')
    a(f'ds_write_b128 v53, v[{EE}:{EE+3}]')
    a.label('K2_NOC')
    a('s_waitcnt lgkmcnt(0)'); a('s_barrier')
    stamp(a,4)
    a.label('K2_I1')
    issue(0)
    a('s_cmp_lg_u32 s49, 0'); a('s_cbranch_scc1 K2_I2')
    a('s_mov_b32 s49, 1')
    for s in range(4): a(f'ds_read_b128 v[{XF+4*s}:{XF+4*s+3}], v{X+4+s}')
    for b in range(4): a(f'ds_read_b64_tr_b16 v[{EE+2*b}:{EE+2*b+1}], v55 offset:{32*b}')
    gemm_stream(a,52,XF,[D0,D1],lambda mm,b:(XR if mm==0 else ACC)+4*b)
    for b in range(4):
        for p in range(2):
            r=EE+2*b+p
            a(f'v_lshlrev_b32 v{EE+8}, 16, v{r}'); a(f'v_and_b32 v{EE+9}, 0xffff0000, v{r}')
            a(f'v_pk_mul_f32 v[{EE+8}:{EE+9}], v[{EE+8}:{EE+9}], s[52:53]')
            a(f'v_cvt_pk_bf16_f32 v{BO+4*b+p}, v{EE+8}, v{EE+9}')
    for b in range(4):
        for p in range(2):
            r=XR+4*b+2*p
            a(f'v_pk_mul_f32 v[{r}:{r+1}], v[{r}:{r+1}], s[52:53]')
            a(f'v_cvt_pk_bf16_f32 v{BO+4*b+2+p}, v{r}, v{r+1}')
    a.settle()
    a.label('K2_I2')
    issue(1)
    a(f'ds_read2_b32 v[{SS+4}:{SS+5}], v3 offset0:0 offset1:16'); a('s_waitcnt lgkmcnt(0)')
    for u in range(2): a(f'v_and_or_b32 v{SS+4+u}, v{SS+4+u}, s51, v5')
    for u in range(2): a(f'ds_read_b64 v[{AF+4*u+2}:{AF+4*u+3}], v{SS+4+u}')
    stamp(a,5)
    a('s_cmp_eq_u32 s63, 0'); a('s_cbranch_scc1 K2_NEXT')
    a.label('K2_LOOP')
    def body(k,u=0,last=True):
        G=BUF[k]; A=AF; DD=[D0,D1]; kn=(k+2)%3; GN=BUF[kn]; W=XR
        skip=[0]
        def grp(f):
            l=f'K2_S{k}_{u}_{skip[0]}'; skip[0]+=1
            a(f's_cbranch_scc1 {l}'); f(); a.label(l)
        def ld(i):
            a(f'v_perm_b32 v{W+i}, v{W+i}, v1, s50')
            if 't' in OPT['exp']: a(f'v_and_b32 v{W+i}, 0x3fff, v{W+i}')
            a(f'buffer_load_dwordx4 v[{GN+4*i}:{GN+4*i+3}], v{W+i}, s[28:31], 0 offen {OPT["tld"]}')
        def lde():
            a('v_lshrrev_b32 v8, 9, v8')
            if 'g' in OPT['exp']: a('v_lshrrev_b32 v8, 2, v8'); a('v_add_u32 v8, s78, v8')
            if 'e' in OPT['exp']: a('v_and_b32 v8, 63, v8')
            a(f'buffer_load_dwordx4 v[8:9], s[32:35], 0 idxen offen {OPT["eld"]} lds')
        shl=lambda t,b:[a(f'v_lshlrev_b32 v{DD[t]+4*b+i}, 16, v{G+16*t+4*i+b}') for i in range(4)]
        mf=lambda t,b:a(f'v_mfma_f32_16x16x32_bf16 v[{DD[t]+4*b}:{DD[t]+4*b+3}], v[{A+4*t}:{A+4*t+3}], v[{BO+4*b}:{BO+4*b+3}], v[{DD[t]+4*b}:{DD[t]+4*b+3}]')
        ex=lambda t,b:[a(f'v_exp_f32 v{EE+4*i+b}, v{DD[t]+4*b+i}') for i in range(4)]
        if OPT['prio']:
            if OPT['prio']==1: a('s_setprio 3'); a('s_cmp_ge_u32 s63, 4'); a(f's_cbranch_scc1 K2_W10_{k}_{u}')
            a('s_setprio 2'); a('s_cmp_ge_u32 s63, 3'); a(f's_cbranch_scc1 K2_W10_{k}_{u}')
            a('s_setprio 1')
        a('s_cmp_ge_u32 s59, 2'); a(f's_cbranch_scc1 K2_W10_{k}_{u}')
        if OPT['prio']: a('s_setprio 0')
        a('s_waitcnt vmcnt(0)')
        a.label(f'K2_W10_{k}_{u}')
        a(f's_waitcnt vmcnt({NL})')
        for t in range(2): a(f'ds_read_b64 v[{A+4*t}:{A+4*t+1}], v11 offset:{EB+1024*k+512*t}')
        if k==1: a('v_add_u32 v2, 384, v2'); a('v_add_u32 v10, 384, v10')
        a(f'ds_read2_b32 v[{SS+6}:{SS+7}], v4 offset0:{32*k} offset1:{32*k+16}')
        a(f'ds_read2_b32 v[{SS+4}:{SS+5}], v3 offset0:{32*k+32} offset1:{32*k+48}')
        a(f'ds_read_b128 v[{W}:{W+3}], v2 offset:{128*kn}'); a(f'ds_read_b128 v[{W+4}:{W+7}], v2 offset:{128*kn+64}')
        a(f'ds_read_b32 v8, v10 offset:{128*kn}')
        a(f's_mov_b32 m0, s{36+kn}')
        a('s_cmp_lt_u32 s63, 3')
        for b in range(4): shl(0,b)
        shl(1,0)
        a('s_waitcnt lgkmcnt(5)')
        for b in range(4):
            mf(0,b)
            if b<3: shl(1,b+1)
        a('s_waitcnt lgkmcnt(3)')
        for uu in range(2): a(f'v_and_or_b32 v{SS+6+uu}, v{SS+6+uu}, s51, v6')
        for uu in range(2): a(f'v_and_or_b32 v{SS+4+uu}, v{SS+4+uu}, s51, v5')
        for b in range(4):
            mf(1,b); ex(0,b)
        for uu in range(2): a(f'ds_read_b64_tr_b16 v[{SS+2*uu}:{SS+2*uu+1}], v{SS+6+uu}')
        for uu in range(2): a(f'ds_read_b64 v[{A+4*uu+2}:{A+4*uu+3}], v{SS+4+uu}')
        a('s_waitcnt lgkmcnt(4)')
        for t in range(2):
            if t==1:
                for b in range(4):
                    ex(1,b)
                    if b%2==1: grp(lambda: ld(4+b//2))
            for p in range(8): a(f'v_pk_add_f32 v[{EE+2*p}:{EE+2*p+1}], v[{EE+2*p}:{EE+2*p+1}], s[54:55]')
            for p in range(16):
                a(f'v_rcp_f32 v{EE+p}, v{EE+p}')
                if t==0 and p%4==3: grp(lambda: ld(p//4))
                if t==1 and p in (3,9): grp(lambda: ld(6+p//9))
                if t==1 and p==15: grp(lde)
            for p in range(8): a(f'v_pk_mul_f32 v[{EE+2*p}:{EE+2*p+1}], v[{EE+2*p}:{EE+2*p+1}], v[{G+16*t+2*p}:{G+16*t+2*p+1}]')
            if t==1: a('s_waitcnt lgkmcnt(2)')
            for b in range(4):
                m=D0+4*b+2*t
                a(f'v_cvt_pk_bf16_f32 v{m}, v{EE+b}, v{EE+4+b}'); a(f'v_cvt_pk_bf16_f32 v{m+1}, v{EE+8+b}, v{EE+12+b}')
                if t==1 and b>0: a(f'v_mfma_f32_16x16x32_bf16 v[{ACC+4*b-4}:{ACC+4*b-1}], v[{SS}:{SS+3}], v[{D0+4*b-4}:{D0+4*b-1}], v[{ACC+4*b-4}:{ACC+4*b-1}]')
        a('s_sub_u32 s59, s59, 1'); a('s_sub_u32 s63, s63, 1')
        a(f'v_mfma_f32_16x16x32_bf16 v[{ACC+12}:{ACC+15}], v[{SS}:{SS+3}], v[{D0+12}:{D0+15}], v[{ACC+12}:{ACC+15}]')
        if k==2:
            for r in (3,4): a(f'v_add_u32 v{r}, 384, v{r}')
        a('s_cmp_eq_u32 s63, 0')
        if k<2 or not last: a('s_cbranch_scc1 K2_NEXT')
        else: a('s_cbranch_scc0 K2_LOOP')
    for u in range(OPT.get('unr',1)):
        for k in range(3): body(k,u,u==OPT.get('unr',1)-1)
    a.label('K2_NEXT')
    a.nop(8)
    a('s_cmp_lt_u32 s62, 5'); a('s_cbranch_scc1 K2_SLOW')
    a('s_cmp_eq_u64 s[56:57], 0'); a('s_cbranch_scc1 K2_FINAL')
    a('s_mov_b32 s62, 0')
    a('s_ff1_i32_b64 s60, s[56:57]'); a('s_bitset0_b64 s[56:57], s60'); a('s_and_b32 s61, s60, 7'); a('s_lshl_b32 s61, s61, 3'); a('s_lshr_b32 s60, s60, 3'); a('s_add_u32 s60, s60, s61'); a(f's_mul_i32 s61, s60, {CE}')
    a.label('K2_SLOW')
    a('s_waitcnt vmcnt(0) lgkmcnt(0)')
    srd(a,68,10,11,E*4); srd(a,72,8,9,E*4)
    a('s_mul_i32 s64, s62, 500'); a('s_add_u32 s64, s64, s61'); a('s_lshl_b32 s65, s64, 2')
    a(f'v_lshlrev_b32 v{T}, 4, v7')
    a(f'buffer_load_dwordx4 v[{MR}:{MR+3}], v{T}, s[68:71], s65 offen'); a(f'buffer_load_dwordx4 v[{MR+4}:{MR+7}], v{T}, s[68:71], s65 offen offset:1024')
    a(f'buffer_load_dwordx4 v[{MR+8}:{MR+11}], v{T}, s[72:75], s65 offen'); a(f'buffer_load_dwordx4 v[{MR+12}:{MR+15}], v{T}, s[72:75], s65 offen offset:1024')
    a('s_mov_b32 s58, 0'); a('s_add_u32 s62, s62, 1'); a('s_mul_i32 s66, s40, 10')
    a('s_waitcnt vmcnt(0)')
    for r in range(8):
        idx=256*(r//4)+(r%4)
        a(f'v_lshlrev_b32 v{T+1}, 2, v7'); a(f'v_add_u32 v{T+1}, {idx}, v{T+1}')
        a(f'v_mov_b32 v{T+2}, 500'); a(f'v_cmp_lt_u32 s[76:77], v{T+1}, v{T+2}')
        a(f'v_subrev_u32 v{T+2}, s66, v{MR+r}'); a(f'v_cmp_gt_u32 vcc, 10, v{T+2}')
        a('s_and_b64 vcc, vcc, s[76:77]')
        a(f'v_lshlrev_b32 v{T+3}, 16, v{MR+8+r}')
        a(f'v_add_lshl_u32 v{T+4}, v{T+1}, s64, 9'); a(f'v_lshl_add_u32 v{T+4}, v{T+2}, 5, v{T+4}')
        a(f'v_mbcnt_lo_u32_b32 v{T+5}, vcc_lo, 0'); a(f'v_mbcnt_hi_u32_b32 v{T+5}, vcc_hi, v{T+5}')
        a(f'v_add_lshl_u32 v{T+5}, v{T+5}, s58, 2'); a(f'v_add_u32 v{T+5}, s48, v{T+5}')
        a('s_bcnt1_i32_b64 s67, vcc'); a('s_add_u32 s58, s58, s67')
        a('s_mov_b64 exec, vcc')
        a(f'ds_write_b32 v{T+5}, v{T+3} offset:512'); a(f'ds_write_b32 v{T+5}, v{T+4} offset:{512+ARR}')
        a('s_mov_b64 exec, -1')
    a('s_branch K2_PROC')
    a.label('K2_FINAL')
    a('s_waitcnt vmcnt(0)')
    stamp(a,6)
    a('v_lshrrev_b32 v15, 4, v7'); a('v_mul_u32_u24 v2, 1088, v15'); a('v_lshrrev_b32 v3, 2, v1'); a('v_add3_u32 v2, v2, v3, s48')
    for b in range(4):
        for i in range(4): a(f'ds_write_b32 v2, v{ACC+4*b+i} offset:{512+272*i+64*b}')
    a('v_mul_u32_u24 v4, 272, v15'); a('v_add3_u32 v4, v4, v1, s48')
    for j in range(3): a(f'ds_read_b128 v[{D0+4*j}:{D0+4*j+3}], v4 offset:{512+1088*j}')
    a('v_lshlrev_b32 v6, 8, v15'); a('v_lshrrev_b32 v3, 1, v1'); a('v_add_u32 v6, v6, v3')
    a('s_mul_i32 s44, s40, 2560'); a('s_add_u32 s44, s44, s45')
    srd_off(a,24,18,19,'s44',2560-128)
    a('s_waitcnt lgkmcnt(0)')
    for p in range(6): a(f'v_pk_mul_f32 v[{D1+2*p}:{D1+2*p+1}], v[{D0+2*p}:{D0+2*p+1}], s[52:53]')
    for i in range(12): a(f'v_exp_f32 v{D1+i}, v{D1+i}')
    for p in range(6): a(f'v_pk_add_f32 v[{D1+2*p}:{D1+2*p+1}], v[{D1+2*p}:{D1+2*p+1}], s[54:55]')
    for i in range(12): a(f'v_rcp_f32 v{D1+i}, v{D1+i}')
    for p in range(6): a(f'v_pk_mul_f32 v[{D0+2*p}:{D0+2*p+1}], v[{D0+2*p}:{D0+2*p+1}], v[{D1+2*p}:{D1+2*p+1}]')
    for p in range(6): a(f'v_cvt_pk_bf16_f32 v{EE+p}, v{D0+2*p}, v{D0+2*p+1}')
    for j in range(3): a(f'buffer_store_dwordx2 v[{EE+2*j}:{EE+2*j+1}], v6, s[24:27], 0 offen offset:{1024*j}')
    if gen1.STAMP:
        a('s_waitcnt vmcnt(0)'); stamp(a,7,True)
        a('s_lshl_b32 s79, s2, 3'); a('s_add_u32 s79, s79, s42'); stamp_out(a,8,'s79',OFF_ST,30)
    a.label('K2_END')
    a('s_endpgm')
    return a
def mk(path):
    build([('prep_kernel',k1(),CH+160,512,K1_LDS+2048),(NAME+'_kernel',k2(),256,512,K2_LDS)],path)
if __name__=='__main__':
    for arg in sys.argv[2:]:
        if arg=='stamp': gen1.STAMP=True
        else:
            k,v=arg.split('='); OPT[k]=eval(v)
    mk(sys.argv[1])
```

```python
import sys, struct
from asmlib import Asm
import gen1
from gen1 import srd, srd_off, f2u, build, NAME, stamp, stamp_out, OFF_ST
N=10000;E=160000;NBK=1000;CH=64;CE=2500;CAP=15
THALF=N*256
OFF_META=2*THALF
WS_END=OFF_META+NBK*4096
NLOG2E=f2u(-1.4426950408889634)
TINY=f2u(2.0**-100)
OPT=dict(st='',skipq=False,pref=False,exp='',eld='',mld='',xld='',tld='',mq=2,early=True,prio=True)
NG=79
K1_LDS=81920+4096
def wimg_addrs(a,vrow,vpiece,vdst,vt):
    a(f'v_lshrrev_b32 v{vdst}, 4, v{vrow}'); a(f'v_mul_u32_u24 v{vdst}, 4736, v{vdst}')
    a(f'v_and_b32 v{vt}, 15, v{vrow}'); a(f'v_mul_u32_u24 v{vt}, 288, v{vt}'); a(f'v_add_u32 v{vdst}, v{vdst}, v{vt}')
    a(f'v_bfe_u32 v{vt}, v{vrow}, 3, 1'); a(f'v_lshl_add_u32 v{vdst}, v{vt}, 7, v{vdst}'); a(f'v_lshl_add_u32 v{vdst}, v{vpiece}, 4, v{vdst}')
def tr_addr(a,vq,vc,vdst,vt):
    a(f'v_lshrrev_b32 v{vdst}, 1, v{vq}'); a(f'v_mul_u32_u24 v{vdst}, 4736, v{vdst}')
    a(f'v_and_b32 v{vt}, 1, v{vq}'); a(f'v_mul_u32_u24 v{vt}, 2432, v{vt}'); a(f'v_add_u32 v{vdst}, v{vdst}, v{vt}')
    a(f'v_lshrrev_b32 v{vt}, 2, v{vc}'); a(f'v_mul_u32_u24 v{vt}, 288, v{vt}'); a(f'v_add_u32 v{vdst}, v{vdst}, v{vt}')
    a(f'v_and_b32 v{vt}, 3, v{vc}'); a(f'v_lshl_add_u32 v{vdst}, v{vt}, 3, v{vdst}')
def gemm_stream(a,vtr,XF,slots,dres,base=0):
    hs=[(s,mm) for s in range(4) for mm in range(2)]
    def rd(h):
        s,mm=hs[h]; sl=slots[h%len(slots)]
        for b in range(4):
            for u in range(2):
                r=sl+4*b+2*u
                a(f'ds_read_b64_tr_b16 v[{r}:{r+1}], v{vtr} offset:{base+s*9472+u*1152+mm*128+b*32}')
    rd(0)
    for h in range(8):
        if h+1<8: rd(h+1); a('s_waitcnt lgkmcnt(8)')
        else: a('s_waitcnt lgkmcnt(0)')
        s,mm=hs[h]; sl=slots[h%len(slots)]
        for b in range(4):
            d=dres(mm,b); c='0' if s==0 else f'v[{d}:{d+3}]'
            a(f'v_mfma_f32_16x16x32_bf16 v[{d}:{d+3}], v[{XF+4*s}:{XF+4*s+3}], v[{sl+4*b}:{sl+4*b+3}], {c}')
def fin(a,wpw_shift,base):
    if gen1.STAMP:
        stamp(a,5); a('s_waitcnt vmcnt(0)'); stamp(a,6); stamp(a,7,True)
        a('v_lshrrev_b32 v70, 6, v0'); a('v_readfirstlane_b32 s78, v70')
        a(f's_lshl_b32 s79, s2, {wpw_shift}'); a('s_add_u32 s79, s79, s78'); stamp_out(a,8,'s79',base,70)
def k1():
    a=Asm(); ST=OPT['st']
    stamp(a,0,True); stamp(a,1)
    a('s_load_dwordx16 s[4:19], s[0:1], 0')
    a('s_load_dwordx2 s[20:21], s[0:1], 72')
    a(f's_cmp_ge_u32 s2, {CH+160}'); a('s_cbranch_scc1 K1_END')
    a(f's_cmp_lt_u32 s2, {CH}'); a('s_cbranch_scc1 K1_SORT')
    a(f's_sub_u32 s3, s2, {CH}')
    a('s_and_b32 s40, s3, 7'); a('s_lshr_b32 s41, s3, 4'); a('s_lshl_b32 s41, s41, 3'); a('s_add_u32 s40, s40, s41')
    a('s_bfe_u32 s42, s3, 0x10003')
    a(f's_cmp_ge_u32 s40, {NG}'); a('s_cbranch_scc1 K1_END')
    a('v_and_b32 v1, 7, v0'); a('v_lshrrev_b32 v2, 3, v0')
    a('v_lshlrev_b32 v3, 8, v2'); a('v_lshl_add_u32 v3, v1, 4, v3'); a('v_add_u32 v4, 16384, v3')
    a('v_lshrrev_b32 v5, 6, v0'); a('v_readfirstlane_b32 s48, v5')
    a('v_and_b32 v6, 63, v0'); a('v_and_b32 v7, 15, v6'); a('v_lshrrev_b32 v5, 4, v6')
    a('s_lshl_b32 s49, s40, 3'); a('s_add_u32 s49, s49, s48'); a('s_lshl_b32 s50, s49, 12')
    a('v_lshlrev_b32 v24, 8, v7'); a('v_lshl_add_u32 v24, v5, 4, v24')
    a('s_lshl_b32 s45, s42, 7')
    a('s_waitcnt lgkmcnt(0)')
    srd_off(a,28,16,17,32768,32768); srd(a,32,14,15,32768); srd(a,36,4,5,N*256)
    a('buffer_load_dwordx4 v[8:11], v3, s[28:31], s45 offen'); a('buffer_load_dwordx4 v[12:15], v4, s[28:31], s45 offen')
    a('buffer_load_dwordx4 v[16:19], v3, s[32:35], s45 offen'); a('buffer_load_dwordx4 v[20:23], v4, s[32:35], s45 offen')
    XF=28
    for s in range(4): a(f'buffer_load_dwordx4 v[{XF+4*s}:{XF+4*s+3}], v24, s[36:39], s50 offen offset:{64*s}')
    if OPT['pref']:
        srd(a,60,6,7,E*32)
        a('s_mul_i32 s64, s3, 32768'); a('v_lshlrev_b32 v100, 4, v0')
        for j in range(4):
            a(f'buffer_load_dwordx4 v[{104+4*j}:{107+4*j}], v100, s[60:63], s64 offen'); a('s_add_u32 s64, s64, 8192')
    np_=4 if OPT['pref'] else 0
    wimg_addrs(a,2,1,25,26); tr_addr(a,5,7,26,27)
    a(f's_mov_b32 s52, {NLOG2E}'); a(f's_mov_b32 s53, {NLOG2E}'); a(f's_mov_b32 s57, {TINY}')
    a('s_mov_b32 s58, 0x80008000'); a('s_mov_b32 s54, 0x07060100'); a('s_mov_b32 s55, 0x07060302'); a('s_mov_b32 s59, 0x80000000')
    a(f's_mul_i32 s56, s42, {THALF}'); srd_off(a,24,20,21,'s56',THALF)
    a(f's_waitcnt vmcnt({7+np_})'); a('ds_write_b128 v25, v[8:11]')
    a(f's_waitcnt vmcnt({6+np_})'); a(f'ds_write_b128 v25, v[12:15] offset:{4*4736}')
    a(f's_waitcnt vmcnt({5+np_})'); a('ds_write_b128 v25, v[16:19] offset:128')
    a(f's_waitcnt vmcnt({4+np_})'); a(f'ds_write_b128 v25, v[20:23] offset:{4*4736+128}')
    stamp(a,2)
    a('s_waitcnt lgkmcnt(0)'); a('s_barrier')
    a(f's_waitcnt vmcnt({np_})')
    stamp(a,3)
    D0=44
    dd=lambda mm,b: D0+(mm*4+b)*4
    gemm_stream(a,26,XF,[76,8],dd) if False else gemm_stream(a,26,XF,[76,92],dd)
    stamp(a,4)
    a('v_lshlrev_b32 v9, 10, v5'); a('v_lshl_add_u32 v9, v7, 4, v9')
    for b in range(4):
        d=dd(0,b)
        a(f'v_pk_mul_f32 v[{d}:{d+1}], v[{d}:{d+1}], s[52:53]'); a(f'v_pk_mul_f32 v[{d+2}:{d+3}], v[{d+2}:{d+3}], s[52:53]')
    for i in range(4):
        o=12+(i%2)*12
        for bp in range(2):
            a(f'v_cvt_pk_bf16_f32 v{o+4+bp}, v{dd(0,2*bp)+i}, v{dd(0,2*bp+1)+i}')
        for b in range(4): a(f'v_max_f32 v{o+8+b}, |v{dd(1,b)+i}|, s57')
        for bp in range(2): a(f'v_xor_b32 v{o+6+bp}, s58, v{o+4+bp}')
        for b in range(4):
            a(f'v_sub_u32_sdwa v{o+8+b}, v{o+8+b}, sext(v{o+6+b//2}) dst_sel:DWORD dst_unused:UNUSED_PAD src0_sel:DWORD src1_sel:WORD_{b%2}')
        for b in range(4): a(f'v_perm_b32 v{o+b}, v{o+8+b}, v{o+4+b//2}, s{54+b%2}')
        for b in range(4): a(f'v_and_or_b32 v{o+b}, v{dd(1,b)+i}, s59, v{o+b}')
        a(f'buffer_store_dwordx4 v[{o}:{o+3}], v9, s[24:27], s50 offen offset:{256*i} {ST}')
    fin(a,3,OFF_ST+(1<<20))
    a('s_endpgm')
    a.label('K1_SORT')
    a(f's_mul_i32 s40, s2, {CE*4}')
    a('v_mul_u32_u24 v1, 20, v0')
    a('v_mov_b32 v20, 0'); a('v_mov_b32 v21, 0'); a('v_lshlrev_b32 v2, 3, v0')
    a('ds_write_b64 v2, v[20:21] offset:0')
    a('s_waitcnt lgkmcnt(0)')
    srd(a,28,10,11,E*4); srd(a,32,8,9,E*4); srd(a,24,20,21,WS_END)
    a('buffer_load_dwordx4 v[8:11], v1, s[28:31], s40 offen'); a('buffer_load_dword v12, v1, s[28:31], s40 offen offset:16')
    a('buffer_load_dwordx4 v[14:17], v1, s[32:35], s40 offen'); a('buffer_load_dword v18, v1, s[32:35], s40 offen offset:16')
    a('v_mov_b32 v3, 1'); a('v_mul_u32_u24 v4, 80, v0')
    a('s_barrier')
    a(f'v_cmp_gt_u32 vcc, {CE//5}, v0'); a('s_and_saveexec_b64 s[42:43], vcc')
    stamp(a,2)
    a('s_waitcnt vmcnt(2)')
    stamp(a,3)
    for j in range(5):
        a(f'v_mul_u32_u24 v{24+j}, 52429, v{8+j}'); a(f'v_lshrrev_b32 v{24+j}, 19, v{24+j}')
        a(f'v_lshlrev_b32 v{30+j}, 2, v{24+j}')
        a(f'ds_add_rtn_u32 v{36+j}, v{30+j}, v3')
    a('s_waitcnt vmcnt(0)')
    for j in range(5):
        a(f'v_mul_u32_u24 v{30+j}, 10, v{24+j}'); a(f'v_sub_u32 v{8+j}, v{8+j}, v{30+j}')
        a(f'v_lshl_or_b32 v{8+j}, v{14+j}, 16, v{8+j}')
        a(f'v_add3_u32 v{8+j}, v{8+j}, v4, {16*j}')
        a(f'v_mul_u32_u24 v{24+j}, 80, v{24+j}')
    for j in range(5):
        a(f's_waitcnt lgkmcnt({4})' if j>0 else 's_waitcnt lgkmcnt(4)')
        a(f'v_min_u32 v{36+j}, {CAP-1}, v{36+j}'); a(f'v_lshl_add_u32 v{36+j}, v{36+j}, 2, v{24+j}')
        a(f'ds_write_b32 v{36+j}, v{8+j} offset:{4096+4}')
    a('s_mov_b64 exec, s[42:43]')
    a('v_mul_u32_u24 v1, 80, v0'); a('v_lshlrev_b32 v6, 2, v0'); a('v_lshlrev_b32 v7, 12, v0')
    a('s_and_b32 s44, s2, 7'); a('s_lshl_b32 s44, s44, 3'); a('s_lshr_b32 s45, s2, 3'); a('s_add_u32 s44, s44, s45')
    a('s_lshl_b32 s44, s44, 4'); a(f's_add_u32 s44, s44, {OFF_META}'); a(f's_add_u32 s45, s44, {512*4096}')
    a('s_waitcnt lgkmcnt(0)'); a('s_barrier')
    stamp(a,4)
    for h in range(2):
        a(f'ds_read_b32 v{60+h}, v6 offset:{2048*h}')
        for q in range(2): a(f'ds_read_b128 v[{40+8*h+4*q}:{43+8*h+4*q}], v1 offset:{4096+40960*h+16*q}')
    for h in range(2):
        a(f's_waitcnt lgkmcnt({3-3*h})')
        a(f'v_mov_b32 v{40+8*h}, v{60+h}')
        a(f'v_cmp_lt_u32 vcc, 3, v{60+h}')
        a(f'buffer_store_dwordx4 v[{40+8*h}:{43+8*h}], v7, s[24:27], s{44+h} offen {ST}')
        a('s_mov_b64 exec, vcc')
        a(f'buffer_store_dwordx4 v[{44+8*h}:{47+8*h}], v7, s[24:27], s{44+h} offen offset:1024 {ST}')
        a('s_mov_b64 exec, -1')
    for h in range(2):
        a(f'v_cmp_lt_u32 vcc, 7, v{60+h}'); a('s_and_saveexec_b64 s[42:43], vcc'); a(f's_cbranch_execz K1_SK{h}')
        for q in range(2,4): a(f'ds_read_b128 v[{16+8*h+4*q}:{19+8*h+4*q}], v1 offset:{4096+40960*h+16*q}')
        a('s_waitcnt lgkmcnt(0)')
        for q in range(2,4): a(f'buffer_store_dwordx4 v[{16+8*h+4*q}:{19+8*h+4*q}], v7, s[24:27], s{44+h} offen offset:{1024*q} {ST}')
        a.label(f'K1_SK{h}')
        a('s_mov_b64 exec, s[42:43]')
    fin(a,3,OFF_ST+(1<<20))
    a.label('K1_END')
    a('s_endpgm')
    return a

LCAP=1088; ARR=LCAP*4
EB=512+2*ARR
WREG=EB+3072
XIMG=8*WREG; WIMG=XIMG+96*256; CIMG=WIMG+8*4736
K2_LDS=CIMG+16*160
NL=9
def k2():
    a=Asm()
    stamp(a,0,True); stamp(a,1)
    a('s_load_dwordx16 s[4:19], s[0:1], 0')
    a('s_load_dwordx2 s[20:21], s[0:1], 72')
    if OPT.get('dbg'): a('s_memrealtime s[90:91]'); a('s_load_dwordx2 s[22:23], s[0:1], 64')
    if OPT['prio']==2: a('s_setprio 3')
    a('s_lshr_b32 s40, s2, 3'); a('s_lshl_b32 s40, s40, 2'); a('s_and_b32 s41, s2, 3'); a('s_add_u32 s40, s40, s41')
    a('s_bfe_u32 s41, s2, 0x10002')
    a(f's_cmp_ge_u32 s40, {NBK//8}'); a('s_cbranch_scc1 K2_END')
    a('v_lshrrev_b32 v7, 6, v0'); a('v_readfirstlane_b32 s42, v7')
    a('v_and_b32 v7, 63, v0')
    a('s_mul_i32 s46, s40, 80')
    a('s_lshl_b32 s40, s40, 3'); a('s_add_u32 s40, s40, s42')
    BO=16; ACC=32; SS=48; D0=56; D1=72; EE=88; AF=104; XF=104; XR=120; BUF=[136,168,200]; MR=136; X=232
    a(f's_lshl_b32 s43, s40, 12'); a(f's_add_u32 s43, s43, {OFF_META}')
    a('v_lshlrev_b32 v15, 4, v7')
    a('v_and_b32 v52, 7, v0'); a('v_lshrrev_b32 v53, 3, v0')
    a('v_lshlrev_b32 v54, 8, v53'); a('v_lshl_add_u32 v54, v52, 4, v54')
    a('v_and_b32 v1, 15, v7'); a('v_lshrrev_b32 v55, 4, v7')
    a('s_mul_i32 s47, s42, 12'); a('s_add_u32 s46, s46, s47')
    a(f'v_lshlrev_b32 v{X+3}, 2, v55'); a(f'v_xor_b32 v{X+3}, v{X+3}, v1'); a(f'v_lshlrev_b32 v{X+3}, 4, v{X+3}')
    for j in range(3):
        a(f'v_add3_u32 v{X+j}, v55, s46, {4*j}'); a(f'v_min_u32 v{X+j}, {N-1}, v{X+j}'); a(f'v_lshl_add_u32 v{X+j}, v{X+j}, 8, v{X+3}')
    a('s_lshl_b32 s45, s41, 7')
    a(f's_mul_i32 s48, s42, {WREG}')
    a(f's_mul_i32 s36, s42, 3072'); a(f's_add_u32 s36, s36, {XIMG}')
    a('s_waitcnt lgkmcnt(0)')
    srd(a,24,20,21,WS_END)
    MQ=OPT['mq']
    for j in range(MQ): a(f'buffer_load_dwordx4 v[{MR+4*j}:{MR+4*j+3}], v15, s[24:27], s43 offen offset:{1024*j} {OPT["mld"]}')
    srd(a,64,16,17,272*256); srd(a,68,12,13,32768); srd(a,72,4,5,N*256)
    a(f's_mul_i32 s46, s41, {THALF}'); srd_off(a,28,20,21,'s46',THALF)
    a('s_mov_b32 s32, s6'); a('s_and_b32 s33, s7, 0xffff'); a('s_or_b32 s33, s33, 0x200000'); a(f's_mov_b32 s34, {E}'); a('s_mov_b32 s35, 0x20000')
    a('v_lshrrev_b32 v4, 2, v7'); a('v_and_b32 v6, 3, v7'); a('v_lshlrev_b32 v5, 2, v6'); a('v_sub_u32 v5, v4, v5')
    a('v_lshlrev_b32 v2, 4, v5'); a('v_mov_b32 v8, 0x3f80'); a('v_mov_b32 v9, 0'); a('v_lshlrev_b64 v[8:9], v2, v[8:9]')
    a('v_cmp_gt_u32 vcc, 4, v5'); a('v_cndmask_b32 v8, 0, v8, vcc'); a('v_cndmask_b32 v9, 0, v9, vcc')
    a('v_lshl_add_u32 v2, v7, 3, s48'); a('ds_write_b64 v2, v[8:9]')
    a('s_cmp_ge_u32 s42, 2'); a('s_cbranch_scc1 K2_NOC0')
    a('s_add_u32 s47, s45, 65536')
    a(f'buffer_load_dwordx4 v[{EE}:{EE+3}], v54, s[64:67], s47 offen')
    a.label('K2_NOC0')
    a('s_add_u32 s47, s45, 16384'); a('s_mov_b32 m0, s36')
    for j in range(2):
        a(f'buffer_load_dwordx4 v[{D0+8*j}:{D0+8*j+3}], v54, s[64:67], s{45+2*j} offen')
        a(f'buffer_load_dwordx4 v[{D0+8*j+4}:{D0+8*j+7}], v54, s[68:71], s{45+2*j} offen')
    for j in range(3):
        a(f'buffer_load_dwordx4 v{X+j}, s[72:75], 0 offen {OPT["xld"]} lds')
        if j<2: a('s_add_u32 m0, m0, 1024'); a('s_nop 0')
    a('v_lshl_add_u32 v12, v55, 4, s48'); a('v_add_u32 v12, 512, v12')
    a('v_lshl_add_u32 v13, v1, 2, s48'); a(f'v_add_u32 v13, {512+ARR}, v13')
    a('v_lshl_add_u32 v14, v4, 2, s48'); a(f'v_add_u32 v14, {512+ARR}, v14')
    a('v_lshl_add_u32 v5, v55, 3, s48')
    a(f'v_lshl_add_u32 v11, v1, 5, v5')
    a('v_lshl_add_u32 v6, v6, 3, s48')
    a('v_and_b32 v9, 1, v7'); a('v_lshlrev_b32 v9, 4, v9')
    wimg_addrs(a,53,52,54,15)
    a('v_mul_u32_u24 v53, 160, v53'); a('v_lshl_add_u32 v53, v52, 4, v53')
    tr_addr(a,55,1,52,15)
    a('s_mul_i32 s47, s42, 10'); a(f'v_add_u32 v{X+4}, s47, v1'); a(f'v_and_b32 v15, 3, v{X+4}')
    a(f'v_lshlrev_b32 v{X+4}, 8, v{X+4}'); a(f'v_lshl_add_u32 v{X+4}, v15, 6, v{X+4}'); a(f'v_lshl_add_u32 v{X+4}, v55, 4, v{X+4}'); a(f'v_add_u32 v{X+4}, {XIMG}, v{X+4}')
    for s in range(1,4): a(f'v_xor_b32 v{X+4+s}, {64*s}, v{X+4}')
    a('v_mul_u32_u24 v55, 160, v4'); a('v_and_b32 v15, 3, v7'); a('v_lshl_add_u32 v55, v15, 3, v55')
    a(f'v_add_u32 v53, {CIMG}, v53'); a(f'v_add_u32 v55, {CIMG}, v55'); a(f'v_add_u32 v52, {WIMG}, v52'); a(f'v_add_u32 v54, {WIMG}, v54')
    a('v_lshrrev_b32 v15, 1, v7'); a('v_lshl_add_u32 v15, v15, 2, s48'); a(f'v_add_u32 v15, {512+ARR}, v15')
    a('v_lshlrev_b32 v1, 4, v1')
    a(f'v_and_b32 v{XR}, 7, v7'); a(f'v_lshrrev_b32 v{XR+1}, 3, v7'); a(f'v_lshl_add_u32 v{XR}, v{XR}, 3, v{XR+1}')
    a(f'v_mul_u32_u24 v{XR}, {CE*512}, v{XR}')
    a(f's_mov_b32 s53, {NLOG2E}'); a(f's_mov_b32 s52, {NLOG2E}'); a('s_mov_b32 s54, 1.0'); a('s_mov_b32 s55, 1.0'); a('s_mov_b32 s62, 5')
    if 'g' in OPT['exp']: a('s_and_b32 s78, s2, 3'); a('s_mul_i32 s78, s78, 40000')
    a('s_mov_b32 s50, 0x0c070600'); a('s_mov_b32 s51, 0x1e0'); a('s_mov_b32 s49, 0')
    for k in range(3): a(f's_add_u32 s{36+k}, s48, {EB+1024*k}')
    a('s_waitcnt vmcnt(7)')
    stamp(a,2)
    T=152
    a(f'v_cmp_lt_u32 s[56:57], {CAP}, v{MR}')
    a(f'v_cndmask_b32 v{MR}, v{MR}, 0, s[56:57]')
    a(f'v_mov_b32 v{T}, v{MR}')
    for sh in (1,2,4,8): a(f'v_add_u32_dpp v{T}, v{T}, v{T} row_shr:{sh} row_mask:0xf bank_mask:0xf bound_ctrl:0')
    a(f'v_add_u32_dpp v{T}, v{T}, v{T} row_bcast:15 row_mask:0xa bank_mask:0xf')
    a(f'v_add_u32_dpp v{T}, v{T}, v{T} row_bcast:31 row_mask:0xc bank_mask:0xf')
    a(f'v_readlane_b32 s58, v{T}, 63')
    a(f'v_sub_u32 v{T}, v{T}, v{MR}'); a(f'v_lshl_add_u32 v{T}, v{T}, 2, s48')
    for s in range(CAP):
        a(f'v_cmpx_lt_u32 vcc, {s}, v{MR}')
        if s>=4: a('s_cbranch_execz K2_CDONE')
        if MQ<4 and s==4*MQ-1:
            a(f'v_lshlrev_b32 v{T+3}, 4, v7')
            for j in range(MQ,4): a(f'buffer_load_dwordx4 v[{MR+4*j}:{MR+4*j+3}], v{T+3}, s[24:27], s43 offen offset:{1024*j}')
            a('s_waitcnt vmcnt(0)')
        a(f'v_mad_u32_u16 v{T+1+s%2}, v{MR+1+s}, 32, v{XR}')
        a(f'ds_write_b32 v{T}, v{MR+1+s} offset:{512+4*s}'); a(f'ds_write_b32 v{T}, v{T+1+s%2} offset:{512+ARR+4*s}')
    a.label('K2_CDONE')
    a('s_mov_b64 exec, -1')
    a.label('K2_PROC')
    a(f'v_add_lshl_u32 v{T}, v7, s58, 2'); a(f'v_add_u32 v{T}, s48, v{T}'); a(f'v_mov_b32 v{T+1}, 0'); a(f'v_mov_b32 v{T+2}, 0x1e0')
    for j in range(2):
        a(f'ds_write_b32 v{T}, v{T+1} offset:{512+256*j}'); a(f'ds_write_b32 v{T}, v{T+2} offset:{512+ARR+256*j}')
    a('s_add_u32 s63, s58, 31'); a('s_lshr_b32 s63, s63, 5')
    a('s_max_u32 s59, s63, 2')
    a('v_mov_b32 v2, v12'); a('v_mov_b32 v3, v13'); a('v_mov_b32 v4, v14'); a('v_mov_b32 v10, v15')
    def issue(k,W=XR):
        G=BUF[k]
        a(f'ds_read_b128 v[{W}:{W+3}], v2 offset:{128*k}'); a(f'ds_read_b128 v[{W+4}:{W+7}], v2 offset:{128*k+64}')
        a(f'ds_read_b32 v8, v10 offset:{128*k}')
        a(f's_mov_b32 m0, s{36+k}')
        a('s_waitcnt lgkmcnt(1)')
        for i in range(8):
            a(f'v_perm_b32 v{W+i}, v{W+i}, v1, s50')
            if 't' in OPT['exp']: a(f'v_and_b32 v{W+i}, 0x3fff, v{W+i}')
            a(f'buffer_load_dwordx4 v[{G+4*i}:{G+4*i+3}], v{W+i}, s[28:31], 0 offen {OPT["tld"]}')
        a('s_waitcnt lgkmcnt(0)')
        a(f'v_lshrrev_b32 v8, 9, v8')
        if 'g' in OPT['exp']: a('v_lshrrev_b32 v8, 2, v8'); a('v_add_u32 v8, s78, v8')
        if 'e' in OPT['exp']: a('v_and_b32 v8, 63, v8')
        a(f'buffer_load_dwordx4 v[8:9], s[32:35], 0 idxen offen {OPT["eld"]} lds')
    def compute(k):
        G=BUF[k]; A=AF; DD=[D0,D1]
        a(f'ds_read2_b32 v[{SS+4}:{SS+5}], v3 offset0:{32*k} offset1:{32*k+16}')
        a(f'ds_read2_b32 v[{SS+6}:{SS+7}], v4 offset0:{32*k} offset1:{32*k+16}')
        for t in range(2): a(f'ds_read_b64 v[{A+4*t}:{A+4*t+1}], v11 offset:{EB+1024*k+512*t}')
        for t in range(2):
            for b in range(4):
                for i in range(4): a(f'v_lshlrev_b32 v{DD[t]+4*b+i}, 16, v{G+16*t+4*i+b}')
            if t==0:
                a('s_waitcnt lgkmcnt(2)')
                for u in range(2): a(f'v_and_or_b32 v{SS+4+u}, v{SS+4+u}, s51, v5')
                for u in range(2): a(f'ds_read_b64 v[{A+4*u+2}:{A+4*u+3}], v{SS+4+u}')
                for u in range(2): a(f'v_and_or_b32 v{SS+6+u}, v{SS+6+u}, s51, v6')
                for u in range(2): a(f'ds_read_b64_tr_b16 v[{SS+2*u}:{SS+2*u+1}], v{SS+6+u}')
        a('s_waitcnt lgkmcnt(2)')
        for t in range(2):
            for b in range(4):
                d=DD[t]+4*b
                a(f'v_mfma_f32_16x16x32_bf16 v[{d}:{d+3}], v[{A+4*t}:{A+4*t+3}], v[{BO+4*b}:{BO+4*b+3}], v[{d}:{d+3}]')
        for t in range(2):
            for b in range(4):
                for i in range(4): a(f'v_exp_f32 v{EE+4*i+b}, v{DD[t]+4*b+i}')
            for p in range(8): a(f'v_pk_add_f32 v[{EE+2*p}:{EE+2*p+1}], v[{EE+2*p}:{EE+2*p+1}], s[54:55]')
            for p in range(16): a(f'v_rcp_f32 v{EE+p}, v{EE+p}')
            for p in range(8): a(f'v_pk_mul_f32 v[{EE+2*p}:{EE+2*p+1}], v[{EE+2*p}:{EE+2*p+1}], v[{G+16*t+2*p}:{G+16*t+2*p+1}]')
            for b in range(4):
                m=D0+4*b+2*t
                a(f'v_cvt_pk_bf16_f32 v{m}, v{EE+b}, v{EE+4+b}'); a(f'v_cvt_pk_bf16_f32 v{m+1}, v{EE+8+b}, v{EE+12+b}')
        a('s_waitcnt lgkmcnt(0)')
        for b in range(4):
            a(f'v_mfma_f32_16x16x32_bf16 v[{ACC+4*b}:{ACC+4*b+3}], v[{SS}:{SS+3}], v[{D0+4*b}:{D0+4*b+3}], v[{ACC+4*b}:{ACC+4*b+3}]')
    a('s_cmp_lg_u32 s49, 0'); a('s_cbranch_scc1 K2_I1')
    stamp(a,3)
    a(f's_waitcnt vmcnt(0)')
    for j in range(2):
        a(f'ds_write_b128 v54, v[{D0+8*j}:{D0+8*j+3}] offset:{18944*j}'); a(f'ds_write_b128 v54, v[{D0+8*j+4}:{D0+8*j+7}] offset:{18944*j+128}')
    a('s_cmp_ge_u32 s42, 2'); a('s_cbranch_scc1 K2_NOC')
    a(f'ds_write_b128 v53, v[{EE}:{EE+3}]')
    a.label('K2_NOC')
    a('s_waitcnt lgkmcnt(0)'); a('s_barrier')
    stamp(a,4)
    a.label('K2_I1')
    issue(0)
    a('s_cmp_lg_u32 s49, 0'); a('s_cbranch_scc1 K2_I2')
    a('s_mov_b32 s49, 1')
    for s in range(4): a(f'ds_read_b128 v[{XF+4*s}:{XF+4*s+3}], v{X+4+s}')
    for b in range(4): a(f'ds_read_b64_tr_b16 v[{EE+2*b}:{EE+2*b+1}], v55 offset:{32*b}')
    gemm_stream(a,52,XF,[D0,D1],lambda mm,b:(XR if mm==0 else ACC)+4*b)
    for b in range(4):
        for p in range(2):
            r=EE+2*b+p
            a(f'v_lshlrev_b32 v{EE+8}, 16, v{r}'); a(f'v_and_b32 v{EE+9}, 0xffff0000, v{r}')
            a(f'v_pk_mul_f32 v[{EE+8}:{EE+9}], v[{EE+8}:{EE+9}], s[52:53]')
            a(f'v_cvt_pk_bf16_f32 v{BO+4*b+p}, v{EE+8}, v{EE+9}')
    for b in range(4):
        for p in range(2):
            r=XR+4*b+2*p
            a(f'v_pk_mul_f32 v[{r}:{r+1}], v[{r}:{r+1}], s[52:53]')
            a(f'v_cvt_pk_bf16_f32 v{BO+4*b+2+p}, v{r}, v{r+1}')
    a.settle()
    a.label('K2_I2')
    issue(1)
    a(f'ds_read2_b32 v[{SS+4}:{SS+5}], v3 offset0:0 offset1:16'); a('s_waitcnt lgkmcnt(0)')
    for u in range(2): a(f'v_and_or_b32 v{SS+4+u}, v{SS+4+u}, s51, v5')
    for u in range(2): a(f'ds_read_b64 v[{AF+4*u+2}:{AF+4*u+3}], v{SS+4+u}')
    stamp(a,5)
    a('s_cmp_eq_u32 s63, 0'); a('s_cbranch_scc1 K2_NEXT')
    a.label('K2_LOOP')
    def body(k,u=0,last=True):
        G=BUF[k]; A=AF; DD=[D0,D1]; kn=(k+2)%3; GN=BUF[kn]; W=XR
        skip=[0]
        def grp(f):
            l=f'K2_S{k}_{u}_{skip[0]}'; skip[0]+=1
            a(f's_cbranch_scc1 {l}'); f(); a.label(l)
        def ld(i):
            a(f'v_perm_b32 v{W+i}, v{W+i}, v1, s50')
            if 't' in OPT['exp']: a(f'v_and_b32 v{W+i}, 0x3fff, v{W+i}')
            a(f'buffer_load_dwordx4 v[{GN+4*i}:{GN+4*i+3}], v{W+i}, s[28:31], 0 offen {OPT["tld"]}')
        def lde():
            a('v_lshrrev_b32 v8, 9, v8')
            if 'g' in OPT['exp']: a('v_lshrrev_b32 v8, 2, v8'); a('v_add_u32 v8, s78, v8')
            if 'e' in OPT['exp']: a('v_and_b32 v8, 63, v8')
            a(f'buffer_load_dwordx4 v[8:9], s[32:35], 0 idxen offen {OPT["eld"]} lds')
        shl=lambda t,b:[a(f'v_lshlrev_b32 v{DD[t]+4*b+i}, 16, v{G+16*t+4*i+b}') for i in range(4)]
        mf=lambda t,b:a(f'v_mfma_f32_16x16x32_bf16 v[{DD[t]+4*b}:{DD[t]+4*b+3}], v[{A+4*t}:{A+4*t+3}], v[{BO+4*b}:{BO+4*b+3}], v[{DD[t]+4*b}:{DD[t]+4*b+3}]')
        ex=lambda t,b:[a(f'v_exp_f32 v{EE+4*i+b}, v{DD[t]+4*b+i}') for i in range(4)]
        if OPT['prio']:
            if OPT['prio']==1: a('s_setprio 3'); a('s_cmp_ge_u32 s63, 4'); a(f's_cbranch_scc1 K2_W10_{k}_{u}')
            a('s_setprio 2'); a('s_cmp_ge_u32 s63, 3'); a(f's_cbranch_scc1 K2_W10_{k}_{u}')
            a('s_setprio 1')
        a('s_cmp_ge_u32 s59, 2'); a(f's_cbranch_scc1 K2_W10_{k}_{u}')
        if OPT['prio']: a('s_setprio 0')
        a('s_waitcnt vmcnt(0)')
        a.label(f'K2_W10_{k}_{u}')
        a(f's_waitcnt vmcnt({NL})')
        for t in range(2): a(f'ds_read_b64 v[{A+4*t}:{A+4*t+1}], v11 offset:{EB+1024*k+512*t}')
        if k==1: a('v_add_u32 v2, 384, v2'); a('v_add_u32 v10, 384, v10')
        a(f'ds_read2_b32 v[{SS+6}:{SS+7}], v4 offset0:{32*k} offset1:{32*k+16}')
        a(f'ds_read2_b32 v[{SS+4}:{SS+5}], v3 offset0:{32*k+32} offset1:{32*k+48}')
        a(f'ds_read_b128 v[{W}:{W+3}], v2 offset:{128*kn}'); a(f'ds_read_b128 v[{W+4}:{W+7}], v2 offset:{128*kn+64}')
        a(f'ds_read_b32 v8, v10 offset:{128*kn}')
        a(f's_mov_b32 m0, s{36+kn}')
        a('s_cmp_lt_u32 s63, 3')
        for b in range(4): shl(0,b)
        shl(1,0)
        a('s_waitcnt lgkmcnt(5)')
        for b in range(4):
            mf(0,b)
            if b<3: shl(1,b+1)
        a('s_waitcnt lgkmcnt(3)')
        for uu in range(2): a(f'v_and_or_b32 v{SS+6+uu}, v{SS+6+uu}, s51, v6')
        for uu in range(2): a(f'v_and_or_b32 v{SS+4+uu}, v{SS+4+uu}, s51, v5')
        for b in range(4):
            mf(1,b); ex(0,b)
        for uu in range(2): a(f'ds_read_b64_tr_b16 v[{SS+2*uu}:{SS+2*uu+1}], v{SS+6+uu}')
        for uu in range(2): a(f'ds_read_b64 v[{A+4*uu+2}:{A+4*uu+3}], v{SS+4+uu}')
        a('s_waitcnt lgkmcnt(4)')
        for t in range(2):
            if t==1:
                for b in range(4):
                    ex(1,b)
                    if b%2==1: grp(lambda: ld(4+b//2))
            for p in range(8): a(f'v_pk_add_f32 v[{EE+2*p}:{EE+2*p+1}], v[{EE+2*p}:{EE+2*p+1}], s[54:55]')
            for p in range(16):
                a(f'v_rcp_f32 v{EE+p}, v{EE+p}')
                if t==0 and p%4==3: grp(lambda: ld(p//4))
                if t==1 and p in (3,9): grp(lambda: ld(6+p//9))
                if t==1 and p==15: grp(lde)
            for p in range(8): a(f'v_pk_mul_f32 v[{EE+2*p}:{EE+2*p+1}], v[{EE+2*p}:{EE+2*p+1}], v[{G+16*t+2*p}:{G+16*t+2*p+1}]')
            if t==1: a('s_waitcnt lgkmcnt(2)')
            for b in range(4):
                m=D0+4*b+2*t
                a(f'v_cvt_pk_bf16_f32 v{m}, v{EE+b}, v{EE+4+b}'); a(f'v_cvt_pk_bf16_f32 v{m+1}, v{EE+8+b}, v{EE+12+b}')
                if t==1 and b>0: a(f'v_mfma_f32_16x16x32_bf16 v[{ACC+4*b-4}:{ACC+4*b-1}], v[{SS}:{SS+3}], v[{D0+4*b-4}:{D0+4*b-1}], v[{ACC+4*b-4}:{ACC+4*b-1}]')
        a('s_sub_u32 s59, s59, 1'); a('s_sub_u32 s63, s63, 1')
        a(f'v_mfma_f32_16x16x32_bf16 v[{ACC+12}:{ACC+15}], v[{SS}:{SS+3}], v[{D0+12}:{D0+15}], v[{ACC+12}:{ACC+15}]')
        if k==2:
            for r in (3,4): a(f'v_add_u32 v{r}, 384, v{r}')
        a('s_cmp_eq_u32 s63, 0')
        if k<2 or not last: a('s_cbranch_scc1 K2_NEXT')
        else: a('s_cbranch_scc0 K2_LOOP')
    for u in range(OPT.get('unr',1)):
        for k in range(3): body(k,u,u==OPT.get('unr',1)-1)
    a.label('K2_NEXT')
    a.nop(8)
    a('s_cmp_lt_u32 s62, 5'); a('s_cbranch_scc1 K2_SLOW')
    a('s_cmp_eq_u64 s[56:57], 0'); a('s_cbranch_scc1 K2_FINAL')
    a('s_mov_b32 s62, 0')
    a('s_ff1_i32_b64 s60, s[56:57]'); a('s_bitset0_b64 s[56:57], s60'); a('s_and_b32 s61, s60, 7'); a('s_lshl_b32 s61, s61, 3'); a('s_lshr_b32 s60, s60, 3'); a('s_add_u32 s60, s60, s61'); a(f's_mul_i32 s61, s60, {CE}')
    a.label('K2_SLOW')
    a('s_waitcnt vmcnt(0) lgkmcnt(0)')
    srd(a,68,10,11,E*4); srd(a,72,8,9,E*4)
    a('s_mul_i32 s64, s62, 500'); a('s_add_u32 s64, s64, s61'); a('s_lshl_b32 s65, s64, 2')
    a(f'v_lshlrev_b32 v{T}, 4, v7')
    a(f'buffer_load_dwordx4 v[{MR}:{MR+3}], v{T}, s[68:71], s65 offen'); a(f'buffer_load_dwordx4 v[{MR+4}:{MR+7}], v{T}, s[68:71], s65 offen offset:1024')
    a(f'buffer_load_dwordx4 v[{MR+8}:{MR+11}], v{T}, s[72:75], s65 offen'); a(f'buffer_load_dwordx4 v[{MR+12}:{MR+15}], v{T}, s[72:75], s65 offen offset:1024')
    a('s_mov_b32 s58, 0'); a('s_add_u32 s62, s62, 1'); a('s_mul_i32 s66, s40, 10')
    a('s_waitcnt vmcnt(0)')
    for r in range(8):
        idx=256*(r//4)+(r%4)
        a(f'v_lshlrev_b32 v{T+1}, 2, v7'); a(f'v_add_u32 v{T+1}, {idx}, v{T+1}')
        a(f'v_mov_b32 v{T+2}, 500'); a(f'v_cmp_lt_u32 s[76:77], v{T+1}, v{T+2}')
        a(f'v_subrev_u32 v{T+2}, s66, v{MR+r}'); a(f'v_cmp_gt_u32 vcc, 10, v{T+2}')
        a('s_and_b64 vcc, vcc, s[76:77]')
        a(f'v_lshlrev_b32 v{T+3}, 16, v{MR+8+r}')
        a(f'v_add_lshl_u32 v{T+4}, v{T+1}, s64, 9'); a(f'v_lshl_add_u32 v{T+4}, v{T+2}, 5, v{T+4}')
        a(f'v_mbcnt_lo_u32_b32 v{T+5}, vcc_lo, 0'); a(f'v_mbcnt_hi_u32_b32 v{T+5}, vcc_hi, v{T+5}')
        a(f'v_add_lshl_u32 v{T+5}, v{T+5}, s58, 2'); a(f'v_add_u32 v{T+5}, s48, v{T+5}')
        a('s_bcnt1_i32_b64 s67, vcc'); a('s_add_u32 s58, s58, s67')
        a('s_mov_b64 exec, vcc')
        a(f'ds_write_b32 v{T+5}, v{T+3} offset:512'); a(f'ds_write_b32 v{T+5}, v{T+4} offset:{512+ARR}')
        a('s_mov_b64 exec, -1')
    a('s_branch K2_PROC')
    a.label('K2_FINAL')
    a('s_waitcnt vmcnt(0)')
    stamp(a,6)
    a('v_lshrrev_b32 v15, 4, v7'); a('v_mul_u32_u24 v2, 1088, v15'); a('v_lshrrev_b32 v3, 2, v1'); a('v_add3_u32 v2, v2, v3, s48')
    for b in range(4):
        for i in range(4): a(f'ds_write_b32 v2, v{ACC+4*b+i} offset:{512+272*i+64*b}')
    a('v_mul_u32_u24 v4, 272, v15'); a('v_add3_u32 v4, v4, v1, s48')
    for j in range(3): a(f'ds_read_b128 v[{D0+4*j}:{D0+4*j+3}], v4 offset:{512+1088*j}')
    a('v_lshlrev_b32 v6, 8, v15'); a('v_lshrrev_b32 v3, 1, v1'); a('v_add_u32 v6, v6, v3')
    a('s_mul_i32 s44, s40, 2560'); a('s_add_u32 s44, s44, s45')
    srd_off(a,24,18,19,'s44',2560-128)
    a('s_waitcnt lgkmcnt(0)')
    for p in range(6): a(f'v_pk_mul_f32 v[{D1+2*p}:{D1+2*p+1}], v[{D0+2*p}:{D0+2*p+1}], s[52:53]')
    for i in range(12): a(f'v_exp_f32 v{D1+i}, v{D1+i}')
    for p in range(6): a(f'v_pk_add_f32 v[{D1+2*p}:{D1+2*p+1}], v[{D1+2*p}:{D1+2*p+1}], s[54:55]')
    for i in range(12): a(f'v_rcp_f32 v{D1+i}, v{D1+i}')
    for p in range(6): a(f'v_pk_mul_f32 v[{D0+2*p}:{D0+2*p+1}], v[{D0+2*p}:{D0+2*p+1}], v[{D1+2*p}:{D1+2*p+1}]')
    for p in range(6): a(f'v_cvt_pk_bf16_f32 v{EE+p}, v{D0+2*p}, v{D0+2*p+1}')
    for j in range(3): a(f'buffer_store_dwordx2 v[{EE+2*j}:{EE+2*j+1}], v6, s[24:27], 0 offen offset:{1024*j}')
    if OPT.get('dbg'):
        a('s_waitcnt vmcnt(0)'); a('s_memrealtime s[92:93]'); srd(a,24,20,21,WS_END); srd(a,28,22,23,256)
        a('s_mov_b64 exec, 1'); a('v_mov_b32 v4, 0'); a(f's_mov_b32 s94, {3*THALF}')
        a('buffer_load_dword v3, v4, s[24:27], s94 offen'); a('s_waitcnt vmcnt(0) lgkmcnt(0)')
        a('v_sub_u32 v5, s92, v3'); a('v_sub_u32 v6, s90, v3'); a('v_sub_u32 v7, 0x100000, v6')
        a('buffer_atomic_umax v5, v4, s[28:31], 0 offen'); a('buffer_atomic_umax v6, v4, s[28:31], 0 offen offset:4'); a('buffer_atomic_umax v7, v4, s[28:31], 0 offen offset:8')
    if gen1.STAMP:
        a('s_waitcnt vmcnt(0)'); stamp(a,7,True)
        a('s_lshl_b32 s79, s2, 3'); a('s_add_u32 s79, s79, s42'); stamp_out(a,8,'s79',OFF_ST,30)
    a.label('K2_END')
    a('s_endpgm')
    return a
def mk(path):
    build([('prep_kernel',k1(),CH+160,512,K1_LDS+2048),(NAME+'_kernel',k2(),256,512,K2_LDS)],path)
if __name__=='__main__':
    for arg in sys.argv[2:]:
        if arg=='stamp': gen1.STAMP=True
        else:
            k,v=arg.split('='); OPT[k]=eval(v)
    mk(sys.argv[1])
```

```python
import sys, gen1, gen3, gen4
from gen1 import build, NAME, srd, OFF_ST
from asmlib import Asm
OPT=gen4.OPT; gen3.OPT=OPT; OPT['np']=1
gen3.OFF_META=gen4.OFF_META; gen3.WS_END=gen4.WS_END
for arg in sys.argv[2:]:
    if arg=='stamp': gen1.STAMP=True
    else:
        k,v=arg.split('='); OPT[k]=eval(v)
def k3():
    a=Asm()
    a('s_load_dwordx4 s[20:23], s[0:1], 64')
    a('s_cmp_ge_u32 s2, 1'); a('s_cbranch_scc1 K3_END')
    a('s_waitcnt lgkmcnt(0)')
    srd(a,24,22,23,0x10000000); srd(a,28,20,21,256)
    a('v_lshlrev_b32 v1, 6, v0'); a('v_mov_b32 v2, 0')
    def red(base,nw,outs,tag):
        for i in range(8): a(f'v_mov_b32 v{20+i}, 0')
        a(f's_mov_b32 s40, {base}'); a(f's_mov_b32 s41, {nw//64}')
        a.label(f'K3_L{tag}')
        a('buffer_load_dwordx4 v[8:11], v1, s[24:27], s40 offen'); a('buffer_load_dwordx4 v[12:15], v1, s[24:27], s40 offen offset:16')
        a('s_waitcnt vmcnt(0)')
        a('v_not_b32 v8, v8'); a('v_max_u32 v20, v20, v8'); a('v_max_u32 v27, v27, v15')
        for i in range(2,7): a(f'v_sub_u32 v{8+i}, v{8+i}, v9'); a(f'v_add_u32 v{20+i}, v{20+i}, v{8+i}')
        a('s_add_u32 s40, s40, 4096'); a('s_sub_u32 s41, s41, 1'); a('s_cmp_lg_u32 s41, 0'); a(f's_cbranch_scc1 K3_L{tag}')
        for i,slot in outs:
            a(f'buffer_atomic_{"umax" if i in (0,7) else "add"} v{20+i}, v2, s[28:31], 0 offen offset:{4*slot}')
        a('s_waitcnt vmcnt(0)')
    red(OFF_ST+(1<<20),512,[(0,0),(7,1),(2,5),(3,6),(5,7)],0)
    red(OFF_ST+(1<<20)+512*64,1024,[(0,0),(7,2),(2,8),(3,9),(5,10)],1)
    red(OFF_ST,1984,[(0,3),(7,4),(2,11),(4,12),(5,13),(6,14)],2)
    a.label('K3_END'); a('s_endpgm')
    return a
ks=[('prep_kernel',gen4.k1(),gen4.CH+160+OPT.get('pw',0),512,gen4.K1_LDS),(NAME+'_kernel',gen3.k2(),256,512,gen3.K2_LDS)]
if OPT.get('k3'): ks.append(('red_kernel',k3(),1,64,0))
build(ks,sys.argv[1])
```

```python
import sys, struct
from asmlib import Asm
import gen1
from gen1 import srd, srd_off, f2u, build, NAME, stamp, stamp_out, OFF_ST
N=10000;E=160000;NBK=1000;CH=64;CE=2500;CAP=15
THALF=N*256
OFF_META=2*THALF
WS_END=OFF_META+NBK*4096
NLOG2E=f2u(-1.4426950408889634)
TINY=f2u(2.0**-100)
OPT=dict(st='',skipq=False,pref=False,exp='',eld='',mld='',xld='',tld='',mq=2,early=True,prio=True)
NG=79
K1_LDS=81920+4096
def wimg_addrs(a,vrow,vpiece,vdst,vt):
    a(f'v_lshrrev_b32 v{vdst}, 4, v{vrow}'); a(f'v_mul_u32_u24 v{vdst}, 4736, v{vdst}')
    a(f'v_and_b32 v{vt}, 15, v{vrow}'); a(f'v_mul_u32_u24 v{vt}, 288, v{vt}'); a(f'v_add_u32 v{vdst}, v{vdst}, v{vt}')
    a(f'v_bfe_u32 v{vt}, v{vrow}, 3, 1'); a(f'v_lshl_add_u32 v{vdst}, v{vt}, 7, v{vdst}'); a(f'v_lshl_add_u32 v{vdst}, v{vpiece}, 4, v{vdst}')
def tr_addr(a,vq,vc,vdst,vt):
    a(f'v_lshrrev_b32 v{vdst}, 1, v{vq}'); a(f'v_mul_u32_u24 v{vdst}, 4736, v{vdst}')
    a(f'v_and_b32 v{vt}, 1, v{vq}'); a(f'v_mul_u32_u24 v{vt}, 2432, v{vt}'); a(f'v_add_u32 v{vdst}, v{vdst}, v{vt}')
    a(f'v_lshrrev_b32 v{vt}, 2, v{vc}'); a(f'v_mul_u32_u24 v{vt}, 288, v{vt}'); a(f'v_add_u32 v{vdst}, v{vdst}, v{vt}')
    a(f'v_and_b32 v{vt}, 3, v{vc}'); a(f'v_lshl_add_u32 v{vdst}, v{vt}, 3, v{vdst}')
def gemm_stream(a,vtr,XF,slots,dres,base=0):
    hs=[(s,mm) for s in range(4) for mm in range(2)]
    def rd(h):
        s,mm=hs[h]; sl=slots[h%len(slots)]
        for b in range(4):
            for u in range(2):
                r=sl+4*b+2*u
                a(f'ds_read_b64_tr_b16 v[{r}:{r+1}], v{vtr} offset:{base+s*9472+u*1152+mm*128+b*32}')
    rd(0)
    for h in range(8):
        if h+1<8: rd(h+1); a('s_waitcnt lgkmcnt(8)')
        else: a('s_waitcnt lgkmcnt(0)')
        s,mm=hs[h]; sl=slots[h%len(slots)]
        for b in range(4):
            d=dres(mm,b); c='0' if s==0 else f'v[{d}:{d+3}]'
            a(f'v_mfma_f32_16x16x32_bf16 v[{d}:{d+3}], v[{XF+4*s}:{XF+4*s+3}], v[{sl+4*b}:{sl+4*b+3}], {c}')
def fin(a,wpw_shift,base):
    if gen1.STAMP:
        stamp(a,5); a('s_waitcnt vmcnt(0)'); stamp(a,6); stamp(a,7,True)
        a('v_lshrrev_b32 v70, 6, v0'); a('v_readfirstlane_b32 s78, v70')
        a(f's_lshl_b32 s79, s2, {wpw_shift}'); a('s_add_u32 s79, s79, s78'); stamp_out(a,8,'s79',base,70)
def k1():
    a=Asm(); ST=OPT['st']
    stamp(a,0,True); stamp(a,1)
    a('s_load_dwordx16 s[4:19], s[0:1], 0')
    a('s_load_dwordx2 s[20:21], s[0:1], 72')
    a(f's_cmp_ge_u32 s2, {CH+160}'); a('s_cbranch_scc1 K1_END')
    a(f's_cmp_lt_u32 s2, {CH}'); a('s_cbranch_scc1 K1_SORT')
    a(f's_sub_u32 s3, s2, {CH}')
    a('s_and_b32 s40, s3, 7'); a('s_lshr_b32 s41, s3, 4'); a('s_lshl_b32 s41, s41, 3'); a('s_add_u32 s40, s40, s41')
    a('s_bfe_u32 s42, s3, 0x10003')
    a(f's_cmp_ge_u32 s40, {NG}'); a('s_cbranch_scc1 K1_END')
    a('v_and_b32 v1, 7, v0'); a('v_lshrrev_b32 v2, 3, v0')
    a('v_lshlrev_b32 v3, 8, v2'); a('v_lshl_add_u32 v3, v1, 4, v3'); a('v_add_u32 v4, 16384, v3')
    a('v_lshrrev_b32 v5, 6, v0'); a('v_readfirstlane_b32 s48, v5')
    a('v_and_b32 v6, 63, v0'); a('v_and_b32 v7, 15, v6'); a('v_lshrrev_b32 v5, 4, v6')
    a('s_lshl_b32 s49, s40, 3'); a('s_add_u32 s49, s49, s48'); a('s_lshl_b32 s50, s49, 12')
    a('v_lshlrev_b32 v24, 8, v7'); a('v_lshl_add_u32 v24, v5, 4, v24')
    a('s_lshl_b32 s45, s42, 7')
    a('s_waitcnt lgkmcnt(0)')
    srd_off(a,28,16,17,32768,32768); srd(a,32,14,15,32768); srd(a,36,4,5,N*256)
    a('buffer_load_dwordx4 v[8:11], v3, s[28:31], s45 offen'); a('buffer_load_dwordx4 v[12:15], v4, s[28:31], s45 offen')
    a('buffer_load_dwordx4 v[16:19], v3, s[32:35], s45 offen'); a('buffer_load_dwordx4 v[20:23], v4, s[32:35], s45 offen')
    XF=28
    for s in range(4): a(f'buffer_load_dwordx4 v[{XF+4*s}:{XF+4*s+3}], v24, s[36:39], s50 offen offset:{64*s}')
    if OPT['pref']:
        srd(a,60,6,7,E*32)
        a('s_mul_i32 s64, s3, 32768'); a('v_lshlrev_b32 v100, 4, v0')
        for j in range(4):
            a(f'buffer_load_dwordx4 v[{104+4*j}:{107+4*j}], v100, s[60:63], s64 offen'); a('s_add_u32 s64, s64, 8192')
    np_=4 if OPT['pref'] else 0
    wimg_addrs(a,2,1,25,26); tr_addr(a,5,7,26,27)
    a(f's_mov_b32 s52, {NLOG2E}'); a(f's_mov_b32 s53, {NLOG2E}'); a(f's_mov_b32 s57, {TINY}')
    a('s_mov_b32 s58, 0x80008000'); a('s_mov_b32 s54, 0x07060100'); a('s_mov_b32 s55, 0x07060302'); a('s_mov_b32 s59, 0x80000000')
    a(f's_mul_i32 s56, s42, {THALF}'); srd_off(a,24,20,21,'s56',THALF)
    a(f's_waitcnt vmcnt({7+np_})'); a('ds_write_b128 v25, v[8:11]')
    a(f's_waitcnt vmcnt({6+np_})'); a(f'ds_write_b128 v25, v[12:15] offset:{4*4736}')
    a(f's_waitcnt vmcnt({5+np_})'); a('ds_write_b128 v25, v[16:19] offset:128')
    a(f's_waitcnt vmcnt({4+np_})'); a(f'ds_write_b128 v25, v[20:23] offset:{4*4736+128}')
    stamp(a,2)
    a('s_waitcnt lgkmcnt(0)'); a('s_barrier')
    a(f's_waitcnt vmcnt({np_})')
    stamp(a,3)
    D0=44
    dd=lambda mm,b: D0+(mm*4+b)*4
    gemm_stream(a,26,XF,[76,8],dd) if False else gemm_stream(a,26,XF,[76,92],dd)
    stamp(a,4)
    a('v_lshlrev_b32 v9, 10, v5'); a('v_lshl_add_u32 v9, v7, 4, v9')
    for b in range(4):
        d=dd(0,b)
        a(f'v_pk_mul_f32 v[{d}:{d+1}], v[{d}:{d+1}], s[52:53]'); a(f'v_pk_mul_f32 v[{d+2}:{d+3}], v[{d+2}:{d+3}], s[52:53]')
    for i in range(4):
        o=12+(i%2)*12
        for bp in range(2):
            a(f'v_cvt_pk_bf16_f32 v{o+4+bp}, v{dd(0,2*bp)+i}, v{dd(0,2*bp+1)+i}')
        for b in range(4): a(f'v_max_f32 v{o+8+b}, |v{dd(1,b)+i}|, s57')
        for bp in range(2): a(f'v_xor_b32 v{o+6+bp}, s58, v{o+4+bp}')
        for b in range(4):
            a(f'v_sub_u32_sdwa v{o+8+b}, v{o+8+b}, sext(v{o+6+b//2}) dst_sel:DWORD dst_unused:UNUSED_PAD src0_sel:DWORD src1_sel:WORD_{b%2}')
        for b in range(4): a(f'v_perm_b32 v{o+b}, v{o+8+b}, v{o+4+b//2}, s{54+b%2}')
        for b in range(4): a(f'v_and_or_b32 v{o+b}, v{dd(1,b)+i}, s59, v{o+b}')
        a(f'buffer_store_dwordx4 v[{o}:{o+3}], v9, s[24:27], s50 offen offset:{256*i} {ST}')
    fin(a,3,OFF_ST+(1<<20))
    a('s_endpgm')
    a.label('K1_SORT')
    a(f's_mul_i32 s40, s2, {CE*4}')
    a('v_mul_u32_u24 v1, 20, v0')
    a('v_mov_b32 v20, 0'); a('v_mov_b32 v21, 0'); a('v_lshlrev_b32 v2, 3, v0')
    a('ds_write_b64 v2, v[20:21] offset:0')
    a('s_waitcnt lgkmcnt(0)')
    srd(a,28,10,11,E*4); srd(a,32,8,9,E*4); srd(a,24,20,21,WS_END)
    a('buffer_load_dwordx4 v[8:11], v1, s[28:31], s40 offen'); a('buffer_load_dword v12, v1, s[28:31], s40 offen offset:16')
    a('buffer_load_dwordx4 v[14:17], v1, s[32:35], s40 offen'); a('buffer_load_dword v18, v1, s[32:35], s40 offen offset:16')
    a('v_mov_b32 v3, 1'); a('v_mul_u32_u24 v4, 80, v0')
    a('s_barrier')
    a(f'v_cmp_gt_u32 vcc, {CE//5}, v0'); a('s_and_saveexec_b64 s[42:43], vcc')
    stamp(a,2)
    a('s_waitcnt vmcnt(2)')
    stamp(a,3)
    for j in range(5):
        a(f'v_mul_u32_u24 v{24+j}, 52429, v{8+j}'); a(f'v_lshrrev_b32 v{24+j}, 19, v{24+j}')
        a(f'v_lshlrev_b32 v{30+j}, 2, v{24+j}')
        a(f'ds_add_rtn_u32 v{36+j}, v{30+j}, v3')
    a('s_waitcnt vmcnt(0)')
    for j in range(5):
        a(f'v_mul_u32_u24 v{30+j}, 10, v{24+j}'); a(f'v_sub_u32 v{8+j}, v{8+j}, v{30+j}')
        a(f'v_lshl_or_b32 v{8+j}, v{14+j}, 16, v{8+j}')
        a(f'v_add3_u32 v{8+j}, v{8+j}, v4, {16*j}')
        a(f'v_mul_u32_u24 v{24+j}, 80, v{24+j}')
    for j in range(5):
        a(f's_waitcnt lgkmcnt({4})' if j>0 else 's_waitcnt lgkmcnt(4)')
        a(f'v_min_u32 v{36+j}, {CAP-1}, v{36+j}'); a(f'v_lshl_add_u32 v{36+j}, v{36+j}, 2, v{24+j}')
        a(f'ds_write_b32 v{36+j}, v{8+j} offset:{4096+4}')
    a('s_mov_b64 exec, s[42:43]')
    a('v_mul_u32_u24 v1, 80, v0'); a('v_lshlrev_b32 v6, 2, v0'); a('v_lshlrev_b32 v7, 12, v0')
    a('s_and_b32 s44, s2, 7'); a('s_lshl_b32 s44, s44, 3'); a('s_lshr_b32 s45, s2, 3'); a('s_add_u32 s44, s44, s45')
    a('s_lshl_b32 s44, s44, 4'); a(f's_add_u32 s44, s44, {OFF_META}'); a(f's_add_u32 s45, s44, {512*4096}')
    a('s_waitcnt lgkmcnt(0)'); a('s_barrier')
    stamp(a,4)
    for h in range(2):
        a(f'ds_read_b32 v{60+h}, v6 offset:{2048*h}')
        for q in range(2): a(f'ds_read_b128 v[{40+8*h+4*q}:{43+8*h+4*q}], v1 offset:{4096+40960*h+16*q}')
    for h in range(2):
        a(f's_waitcnt lgkmcnt({3-3*h})')
        a(f'v_mov_b32 v{40+8*h}, v{60+h}')
        a(f'v_cmp_lt_u32 vcc, 3, v{60+h}')
        a(f'buffer_store_dwordx4 v[{40+8*h}:{43+8*h}], v7, s[24:27], s{44+h} offen {ST}')
        a('s_mov_b64 exec, vcc')
        a(f'buffer_store_dwordx4 v[{44+8*h}:{47+8*h}], v7, s[24:27], s{44+h} offen offset:1024 {ST}')
        a('s_mov_b64 exec, -1')
    for h in range(2):
        a(f'v_cmp_lt_u32 vcc, 7, v{60+h}'); a('s_and_saveexec_b64 s[42:43], vcc'); a(f's_cbranch_execz K1_SK{h}')
        for q in range(2,4): a(f'ds_read_b128 v[{16+8*h+4*q}:{19+8*h+4*q}], v1 offset:{4096+40960*h+16*q}')
        a('s_waitcnt lgkmcnt(0)')
        for q in range(2,4): a(f'buffer_store_dwordx4 v[{16+8*h+4*q}:{19+8*h+4*q}], v7, s[24:27], s{44+h} offen offset:{1024*q} {ST}')
        a.label(f'K1_SK{h}')
        a('s_mov_b64 exec, s[42:43]')
    fin(a,3,OFF_ST+(1<<20))
    a.label('K1_END')
    a('s_endpgm')
    return a

LCAP=1088; ARR=LCAP*4
EB=512+2*ARR
WREG=EB+3072
XIMG=8*WREG; WIMG=XIMG+96*256; CIMG=WIMG+8*4736
INFO=CIMG+16*160
K2_LDS=INFO+128
NL=9
def k2():
    a=Asm()
    stamp(a,0,True); stamp(a,1)
    a('s_load_dwordx16 s[4:19], s[0:1], 0')
    a('s_load_dwordx2 s[20:21], s[0:1], 72')
    if OPT.get('dbg'): a('s_memrealtime s[90:91]'); a('s_load_dwordx2 s[22:23], s[0:1], 64')
    if OPT['prio']==2: a('s_setprio 3')
    a('s_lshr_b32 s40, s2, 3'); a('s_lshl_b32 s40, s40, 2'); a('s_and_b32 s41, s2, 3'); a('s_add_u32 s40, s40, s41')
    a('s_bfe_u32 s41, s2, 0x10002')
    a(f's_cmp_ge_u32 s40, {NBK//8}'); a('s_cbranch_scc1 K2_END')
    a('v_lshrrev_b32 v7, 6, v0'); a('v_readfirstlane_b32 s42, v7')
    a('v_and_b32 v7, 63, v0')
    a('s_mul_i32 s46, s40, 80')
    a('s_lshl_b32 s40, s40, 3'); a('s_add_u32 s40, s40, s42')
    BO=16; ACC=32; SS=48; D0=56; D1=72; EE=88; AF=104; XF=104; XR=120; BUF=[136,168,200]; MR=136; X=232
    a(f's_lshl_b32 s43, s40, 12'); a(f's_add_u32 s43, s43, {OFF_META}')
    a('v_lshlrev_b32 v15, 4, v7')
    a('v_and_b32 v52, 7, v0'); a('v_lshrrev_b32 v53, 3, v0')
    a('v_lshlrev_b32 v54, 8, v53'); a('v_lshl_add_u32 v54, v52, 4, v54')
    a('v_and_b32 v1, 15, v7'); a('v_lshrrev_b32 v55, 4, v7')
    a('s_mul_i32 s47, s42, 12'); a('s_add_u32 s46, s46, s47')
    a(f'v_lshlrev_b32 v{X+3}, 2, v55'); a(f'v_xor_b32 v{X+3}, v{X+3}, v1'); a(f'v_lshlrev_b32 v{X+3}, 4, v{X+3}')
    for j in range(3):
        a(f'v_add3_u32 v{X+j}, v55, s46, {4*j}'); a(f'v_min_u32 v{X+j}, {N-1}, v{X+j}'); a(f'v_lshl_add_u32 v{X+j}, v{X+j}, 8, v{X+3}')
    a('s_lshl_b32 s45, s41, 7')
    a(f's_mul_i32 s48, s42, {WREG}')
    a(f's_mul_i32 s36, s42, 3072'); a(f's_add_u32 s36, s36, {XIMG}')
    a('s_waitcnt lgkmcnt(0)')
    srd(a,24,20,21,WS_END)
    MQ=OPT['mq']
    for j in range(MQ): a(f'buffer_load_dwordx4 v[{MR+4*j}:{MR+4*j+3}], v15, s[24:27], s43 offen offset:{1024*j} {OPT["mld"]}')
    srd(a,64,16,17,272*256); srd(a,68,12,13,32768); srd(a,72,4,5,N*256)
    a(f's_mul_i32 s46, s41, {THALF}'); srd_off(a,28,20,21,'s46',THALF)
    a('s_mov_b32 s32, s6'); a('s_and_b32 s33, s7, 0xffff'); a('s_or_b32 s33, s33, 0x200000'); a(f's_mov_b32 s34, {E}'); a('s_mov_b32 s35, 0x20000')
    a('v_lshrrev_b32 v4, 2, v7'); a('v_and_b32 v6, 3, v7'); a('v_lshlrev_b32 v5, 2, v6'); a('v_sub_u32 v5, v4, v5')
    a('v_lshlrev_b32 v2, 4, v5'); a('v_mov_b32 v8, 0x3f80'); a('v_mov_b32 v9, 0'); a('v_lshlrev_b64 v[8:9], v2, v[8:9]')
    a('v_cmp_gt_u32 vcc, 4, v5'); a('v_cndmask_b32 v8, 0, v8, vcc'); a('v_cndmask_b32 v9, 0, v9, vcc')
    a('v_lshl_add_u32 v2, v7, 3, s48'); a('ds_write_b64 v2, v[8:9]')
    a('s_cmp_ge_u32 s42, 2'); a('s_cbranch_scc1 K2_NOC0')
    a('s_add_u32 s47, s45, 65536')
    a(f'buffer_load_dwordx4 v[{EE}:{EE+3}], v54, s[64:67], s47 offen')
    a.label('K2_NOC0')
    a('s_add_u32 s47, s45, 16384'); a('s_mov_b32 m0, s36')
    for j in range(2):
        a(f'buffer_load_dwordx4 v[{D0+8*j}:{D0+8*j+3}], v54, s[64:67], s{45+2*j} offen')
        a(f'buffer_load_dwordx4 v[{D0+8*j+4}:{D0+8*j+7}], v54, s[68:71], s{45+2*j} offen')
    for j in range(3):
        a(f'buffer_load_dwordx4 v{X+j}, s[72:75], 0 offen {OPT["xld"]} lds')
        if j<2: a('s_add_u32 m0, m0, 1024'); a('s_nop 0')
    if OPT.get('ns'):
        a('s_lshr_b32 s76, s2, 3'); a('s_lshl_b32 s76, s76, 3'); a('s_add_u32 s76, s76, s42'); a('s_mul_i32 s76, s76, 10240'); a('s_add_u32 s76, s76, s46')
        a('s_add_u32 s76, s20, s76'); a('s_addc_u32 s77, s21, 0')
        for j in range(OPT['ns']): a(f's_load_dword s22, s[76:77], {128*j}')
    a('v_lshl_add_u32 v12, v55, 4, s48'); a('v_add_u32 v12, 512, v12')
    a('v_lshl_add_u32 v13, v1, 2, s48'); a(f'v_add_u32 v13, {512+ARR}, v13')
    a('v_lshl_add_u32 v14, v4, 2, s48'); a(f'v_add_u32 v14, {512+ARR}, v14')
    a('v_lshl_add_u32 v5, v55, 3, s48')
    a(f'v_lshl_add_u32 v11, v1, 5, v5')
    a('v_lshl_add_u32 v6, v6, 3, s48')
    a('v_and_b32 v9, 1, v7'); a('v_lshlrev_b32 v9, 4, v9')
    wimg_addrs(a,53,52,54,15)
    a('v_mul_u32_u24 v53, 160, v53'); a('v_lshl_add_u32 v53, v52, 4, v53')
    tr_addr(a,55,1,52,15)
    a('s_mul_i32 s47, s42, 10'); a(f'v_add_u32 v{X+4}, s47, v1'); a(f'v_and_b32 v15, 3, v{X+4}')
    a(f'v_lshlrev_b32 v{X+4}, 8, v{X+4}'); a(f'v_lshl_add_u32 v{X+4}, v15, 6, v{X+4}'); a(f'v_lshl_add_u32 v{X+4}, v55, 4, v{X+4}'); a(f'v_add_u32 v{X+4}, {XIMG}, v{X+4}')
    for s in range(1,4): a(f'v_xor_b32 v{X+4+s}, {64*s}, v{X+4}')
    a('v_mul_u32_u24 v55, 160, v4'); a('v_and_b32 v15, 3, v7'); a('v_lshl_add_u32 v55, v15, 3, v55')
    a(f'v_add_u32 v53, {CIMG}, v53'); a(f'v_add_u32 v55, {CIMG}, v55'); a(f'v_add_u32 v52, {WIMG}, v52'); a(f'v_add_u32 v54, {WIMG}, v54')
    a('v_lshrrev_b32 v15, 1, v7'); a('v_lshl_add_u32 v15, v15, 2, s48'); a(f'v_add_u32 v15, {512+ARR}, v15')
    a('v_lshlrev_b32 v1, 4, v1')
    a(f'v_and_b32 v{XR}, 7, v7'); a(f'v_lshrrev_b32 v{XR+1}, 3, v7'); a(f'v_lshl_add_u32 v{XR}, v{XR}, 3, v{XR+1}')
    a(f'v_mul_u32_u24 v{XR}, {CE*512}, v{XR}')
    a(f's_mov_b32 s53, {NLOG2E}'); a(f's_mov_b32 s52, {NLOG2E}'); a('s_mov_b32 s54, 1.0'); a('s_mov_b32 s55, 1.0'); a('s_mov_b32 s62, 5')
    if 'g' in OPT['exp']: a('s_and_b32 s78, s2, 3'); a('s_mul_i32 s78, s78, 40000')
    a('s_mov_b32 s50, 0x0c070600'); a('s_mov_b32 s51, 0x1e0'); a('s_mov_b32 s49, 0')
    for k in range(3): a(f's_add_u32 s{36+k}, s48, {EB+1024*k}')
    a('s_waitcnt vmcnt(7)')
    stamp(a,2)
    T=152
    a(f'v_cmp_lt_u32 s[56:57], {CAP}, v{MR}')
    a(f'v_cndmask_b32 v{MR}, v{MR}, 0, s[56:57]')
    a(f'v_mov_b32 v{T}, v{MR}')
    for sh in (1,2,4,8): a(f'v_add_u32_dpp v{T}, v{T}, v{T} row_shr:{sh} row_mask:0xf bank_mask:0xf bound_ctrl:0')
    a(f'v_add_u32_dpp v{T}, v{T}, v{T} row_bcast:15 row_mask:0xa bank_mask:0xf')
    a(f'v_add_u32_dpp v{T}, v{T}, v{T} row_bcast:31 row_mask:0xc bank_mask:0xf')
    a(f'v_readlane_b32 s58, v{T}, 63')
    a(f'v_sub_u32 v{T}, v{T}, v{MR}'); a(f'v_lshl_add_u32 v{T}, v{T}, 2, s48')
    for s in range(CAP):
        a(f'v_cmpx_lt_u32 vcc, {s}, v{MR}')
        if s>=4: a('s_cbranch_execz K2_CDONE')
        if MQ<4 and s==4*MQ-1:
            a(f'v_lshlrev_b32 v{T+3}, 4, v7')
            for j in range(MQ,4): a(f'buffer_load_dwordx4 v[{MR+4*j}:{MR+4*j+3}], v{T+3}, s[24:27], s43 offen offset:{1024*j}')
            a('s_waitcnt vmcnt(0)')
        a(f'v_mad_u32_u16 v{T+1+s%2}, v{MR+1+s}, 32, v{XR}')
        a(f'ds_write_b32 v{T}, v{MR+1+s} offset:{512+4*s}'); a(f'ds_write_b32 v{T}, v{T+1+s%2} offset:{512+ARR+4*s}')
    a.label('K2_CDONE')
    a('s_mov_b64 exec, -1')
    a.label('K2_PROC')
    a(f'v_add_lshl_u32 v{T}, v7, s58, 2'); a(f'v_add_u32 v{T}, s48, v{T}'); a(f'v_mov_b32 v{T+1}, 0'); a(f'v_mov_b32 v{T+2}, 0x1e0')
    for j in range(2):
        a(f'ds_write_b32 v{T}, v{T+1} offset:{512+256*j}'); a(f'ds_write_b32 v{T}, v{T+2} offset:{512+ARR+256*j}')
    a('s_add_u32 s63, s58, 31'); a('s_lshr_b32 s63, s63, 5')
    a('s_max_u32 s59, s63, 2'); a('s_add_u32 s23, s58, 31'); a('s_and_b32 s23, s23, 16')
    a('v_mov_b32 v2, v12'); a('v_mov_b32 v3, v13'); a('v_mov_b32 v4, v14'); a('v_mov_b32 v10, v15')
    def issue(k,W=XR,part=None):
        G=BUF[k]; P=OPT.get('pre',0)
        if part!=1:
            a(f'ds_read_b32 v8, v10 offset:{128*k}')
            a(f'ds_read_b128 v[{W}:{W+3}], v2 offset:{128*k}'); a(f'ds_read_b128 v[{W+4}:{W+7}], v2 offset:{128*k+64}')
            a(f's_mov_b32 m0, s{36+k}')
            a('s_waitcnt lgkmcnt(2)')
            a(f'v_lshrrev_b32 v8, 9, v8')
            if 'g' in OPT['exp']: a('v_lshrrev_b32 v8, 2, v8'); a('v_add_u32 v8, s78, v8')
            if 'e' in OPT['exp']: a('v_and_b32 v8, 63, v8')
            a(f'buffer_load_dwordx4 v[8:9], s[32:35], 0 idxen offen {OPT["eld"]} lds')
            a('s_waitcnt lgkmcnt(0)')
        for i in (range(8) if part is None else range(P) if part==0 else range(P,8)):
            a(f'v_perm_b32 v{W+i}, v{W+i}, v1, s50')
            if 't' in OPT['exp']: a(f'v_and_b32 v{W+i}, 0x3fff, v{W+i}')
            a(f'buffer_load_dwordx4 v[{G+4*i}:{G+4*i+3}], v{W+i}, s[28:31], 0 offen {OPT["tld"]}')
    def compute(k):
        G=BUF[k]; A=AF; DD=[D0,D1]
        a(f'ds_read2_b32 v[{SS+4}:{SS+5}], v3 offset0:{32*k} offset1:{32*k+16}')
        a(f'ds_read2_b32 v[{SS+6}:{SS+7}], v4 offset0:{32*k} offset1:{32*k+16}')
        for t in range(2): a(f'ds_read_b64 v[{A+4*t}:{A+4*t+1}], v11 offset:{EB+1024*k+512*t}')
        for t in range(2):
            for b in range(4):
                for i in range(4): a(f'v_lshlrev_b32 v{DD[t]+4*b+i}, 16, v{G+16*t+4*i+b}')
            if t==0:
                a('s_waitcnt lgkmcnt(2)')
                for u in range(2): a(f'v_and_or_b32 v{SS+4+u}, v{SS+4+u}, s51, v5')
                for u in range(2): a(f'ds_read_b64 v[{A+4*u+2}:{A+4*u+3}], v{SS+4+u}')
                for u in range(2): a(f'v_and_or_b32 v{SS+6+u}, v{SS+6+u}, s51, v6')
                for u in range(2): a(f'ds_read_b64_tr_b16 v[{SS+2*u}:{SS+2*u+1}], v{SS+6+u}')
        a('s_waitcnt lgkmcnt(2)')
        for t in range(2):
            for b in range(4):
                d=DD[t]+4*b
                a(f'v_mfma_f32_16x16x32_bf16 v[{d}:{d+3}], v[{A+4*t}:{A+4*t+3}], v[{BO+4*b}:{BO+4*b+3}], v[{d}:{d+3}]')
        for t in range(2):
            for b in range(4):
                for i in range(4): a(f'v_exp_f32 v{EE+4*i+b}, v{DD[t]+4*b+i}')
            for p in range(8): a(f'v_pk_add_f32 v[{EE+2*p}:{EE+2*p+1}], v[{EE+2*p}:{EE+2*p+1}], s[54:55]')
            for p in range(16): a(f'v_rcp_f32 v{EE+p}, v{EE+p}')
            for p in range(8): a(f'v_pk_mul_f32 v[{EE+2*p}:{EE+2*p+1}], v[{EE+2*p}:{EE+2*p+1}], v[{G+16*t+2*p}:{G+16*t+2*p+1}]')
            for b in range(4):
                m=D0+4*b+2*t
                a(f'v_cvt_pk_bf16_f32 v{m}, v{EE+b}, v{EE+4+b}'); a(f'v_cvt_pk_bf16_f32 v{m+1}, v{EE+8+b}, v{EE+12+b}')
        a('s_waitcnt lgkmcnt(0)')
        for b in range(4):
            a(f'v_mfma_f32_16x16x32_bf16 v[{ACC+4*b}:{ACC+4*b+3}], v[{SS}:{SS+3}], v[{D0+4*b}:{D0+4*b+3}], v[{ACC+4*b}:{ACC+4*b+3}]')
    PRE='pre' in OPT
    BAL=OPT.get('bal')
    if BAL:
        a('s_cmp_lg_u32 s49, 0'); a('s_cbranch_scc1 K2_P0')
        a(f'v_mov_b32 v{T}, s58'); a(f'v_mov_b32 v{T+1}, s56'); a(f'v_mov_b32 v{T+2}, s57'); a(f'v_mov_b32 v{T+3}, 0')
        a('s_lshl_b32 s47, s42, 4'); a(f's_add_u32 s47, s47, {INFO}'); a(f'v_mov_b32 v{T+4}, s47')
        a(f'ds_write_b128 v{T+4}, v[{T}:{T+3}]')
        a('s_cmp_lt_u32 s42, 4'); a('s_cbranch_scc1 K2_P0')
        a('s_waitcnt vmcnt(0)'); a('s_branch K2_P1')
        a.label('K2_P0')
    if PRE: issue(0,part=0)
    a('s_cmp_lg_u32 s49, 0'); a('s_cbranch_scc1 K2_I1')
    a.label('K2_P1')
    stamp(a,3)
    a(f's_waitcnt vmcnt({OPT["pre"]+1 if PRE else 0})')
    for j in range(2):
        a(f'ds_write_b128 v54, v[{D0+8*j}:{D0+8*j+3}] offset:{18944*j}'); a(f'ds_write_b128 v54, v[{D0+8*j+4}:{D0+8*j+7}] offset:{18944*j+128}')
    a('s_cmp_ge_u32 s42, 2'); a('s_cbranch_scc1 K2_NOC')
    a(f'ds_write_b128 v53, v[{EE}:{EE+3}]')
    a.label('K2_NOC')
    a('s_waitcnt lgkmcnt(0)'); a('s_barrier')
    stamp(a,4)
    if BAL:
        a('s_cmp_lt_u32 s42, 4'); a('s_cbranch_scc1 K2_I1')
        a(f'v_and_b32 v{T+4}, 7, v7'); a(f'v_lshlrev_b32 v{T+5}, 4, v{T+4}'); a(f'v_add_u32 v{T+5}, {INFO}, v{T+5}')
        a(f'ds_read_b128 v[{T}:{T+3}], v{T+5}'); a('s_waitcnt lgkmcnt(0)')
        a(f'v_lshl_add_u32 v{T+4}, v{T}, 3, v{T+4}')
        for qp in ('[1,2,3,0]','[2,3,0,1]','[3,0,1,2]'):
            a(f'v_mov_b32_dpp v{T+5}, v{T+4} quad_perm:{qp} row_mask:0xf bank_mask:0xf')
            a(f'v_cmp_lt_u32 vcc, v{T+5}, v{T+4}'); a(f'v_addc_co_u32 v{T+3}, vcc, 0, v{T+3}, vcc')
        a('s_sub_u32 s47, s42, 4'); a(f'v_readlane_b32 s60, v{T+3}, s47'); a('s_sub_u32 s60, 3, s60')
        a(f'v_cmp_eq_u32 vcc, s60, v{T+3}'); a('s_and_b32 s60, vcc_lo, 0xf0'); a('s_ff1_i32_b32 s60, s60')
        a(f'v_readlane_b32 s58, v{T}, s60'); a(f'v_readlane_b32 s56, v{T+1}, s60'); a(f'v_readlane_b32 s57, v{T+2}, s60')
        a('s_sub_i32 s61, s60, s42'); a('s_add_i32 s40, s40, s61'); a(f's_mul_i32 s61, s61, {WREG}')
        for r in (36,37,38,48): a(f's_add_i32 s{r}, s{r}, s61')
        for r in (2,3,4,5,6,10,11,12,13,14,15): a(f'v_add_u32 v{r}, s61, v{r}')
        a('s_add_u32 s63, s58, 31'); a('s_lshr_b32 s63, s63, 5'); a('s_max_u32 s59, s63, 2'); a('s_add_u32 s23, s58, 31'); a('s_and_b32 s23, s23, 16')
        a('s_mul_i32 s47, s60, 10'); a(f'v_lshrrev_b32 v{T}, 4, v1'); a(f'v_add_u32 v{X+4}, s47, v{T}'); a(f'v_and_b32 v{T}, 3, v{X+4}')
        a(f'v_lshlrev_b32 v{X+4}, 8, v{X+4}'); a(f'v_lshl_add_u32 v{X+4}, v{T}, 6, v{X+4}'); a(f'v_and_b32 v{T}, 48, v7')
        a(f'v_add_u32 v{T}, {XIMG}, v{T}'); a(f'v_add_u32 v{X+4}, v{T}, v{X+4}')
        for s in range(1,4): a(f'v_xor_b32 v{X+4+s}, {64*s}, v{X+4}')
        issue(0,part=0)
    a.label('K2_I1')
    issue(0,part=1 if PRE else None)
    a('s_cmp_lg_u32 s49, 0'); a('s_cbranch_scc1 K2_I2')
    a('s_mov_b32 s49, 1')
    for s in range(4): a(f'ds_read_b128 v[{XF+4*s}:{XF+4*s+3}], v{X+4+s}')
    for b in range(4): a(f'ds_read_b64_tr_b16 v[{EE+2*b}:{EE+2*b+1}], v55 offset:{32*b}')
    gemm_stream(a,52,XF,[D0,D1],lambda mm,b:(XR if mm==0 else ACC)+4*b)
    for b in range(4):
        for p in range(2):
            r=EE+2*b+p
            a(f'v_lshlrev_b32 v{EE+8}, 16, v{r}'); a(f'v_and_b32 v{EE+9}, 0xffff0000, v{r}')
            a(f'v_pk_mul_f32 v[{EE+8}:{EE+9}], v[{EE+8}:{EE+9}], s[52:53]')
            a(f'v_cvt_pk_bf16_f32 v{BO+4*b+p}, v{EE+8}, v{EE+9}')
    for b in range(4):
        for p in range(2):
            r=XR+4*b+2*p
            a(f'v_pk_mul_f32 v[{r}:{r+1}], v[{r}:{r+1}], s[52:53]')
            a(f'v_cvt_pk_bf16_f32 v{BO+4*b+2+p}, v{r}, v{r+1}')
    a.settle()
    a.label('K2_I2')
    FB=OPT.get('fb',0)
    if not FB: issue(1)
    a(f'ds_read2_b32 v[{SS+4}:{SS+5}], v3 offset0:0 offset1:16'); a('s_waitcnt lgkmcnt(0)')
    for u in range(2): a(f'v_and_or_b32 v{SS+4+u}, v{SS+4+u}, s51, v5')
    for u in range(2): a(f'ds_read_b64 v[{AF+4*u+2}:{AF+4*u+3}], v{SS+4+u}')
    stamp(a,5)
    a('s_cmp_eq_u32 s63, 0'); a('s_cbranch_scc1 K2_NEXT')
    def body(k,u=0,last=True,first=False):
        G=BUF[k]; A=AF; DD=[D0,D1]; kn=1 if first else (k+2)%3; GN=BUF[kn]; W=XR
        skip=[0]
        def grp(f):
            l=f'K2_S{k}_{u}_{skip[0]}'; skip[0]+=1
            a(f's_cbranch_scc1 {l}'); f(); a.label(l)
        def ld(i):
            a(f'v_perm_b32 v{W+i}, v{W+i}, v1, s50')
            if 't' in OPT['exp']: a(f'v_and_b32 v{W+i}, 0x3fff, v{W+i}')
            a(f'buffer_load_dwordx4 v[{GN+4*i}:{GN+4*i+3}], v{W+i}, s[28:31], 0 offen {OPT["tld"]}')
        def lde():
            a('v_lshrrev_b32 v8, 9, v8')
            if 'g' in OPT['exp']: a('v_lshrrev_b32 v8, 2, v8'); a('v_add_u32 v8, s78, v8')
            if 'e' in OPT['exp']: a('v_and_b32 v8, 63, v8')
            a(f'buffer_load_dwordx4 v[8:9], s[32:35], 0 idxen offen {OPT["eld"]} lds')
        shl=lambda t,b:[a(f'v_lshlrev_b32 v{DD[t]+4*b+i}, 16, v{G+16*t+4*i+b}') for i in range(4)]
        mf=lambda t,b:a(f'v_mfma_f32_16x16x32_bf16 v[{DD[t]+4*b}:{DD[t]+4*b+3}], v[{A+4*t}:{A+4*t+3}], v[{BO+4*b}:{BO+4*b+3}], v[{DD[t]+4*b}:{DD[t]+4*b+3}]')
        ex=lambda t,b:[a(f'v_exp_f32 v{EE+4*i+b}, v{DD[t]+4*b+i}') for i in range(4)]
        if first: a('s_waitcnt vmcnt(0)')
        elif k==0 and u==0: a.label('K2_LOOP')
        elif k==1 and u==0: a.label('K2_B1')
        if OPT['prio'] and not first:
            if OPT['prio']==1: a('s_setprio 3'); a('s_cmp_ge_u32 s63, 4'); a(f's_cbranch_scc1 K2_W10_{k}_{u}')
            a('s_setprio 2'); a('s_cmp_ge_u32 s63, 3'); a(f's_cbranch_scc1 K2_W10_{k}_{u}')
            a('s_setprio 1')
        if not first:
            a(f's_cmp_ge_u32 s{63 if FB else 59}, 2'); a(f's_cbranch_scc1 K2_W10_{k}_{u}')
            if OPT['prio']: a('s_setprio 0')
            a('s_waitcnt vmcnt(0)')
            if OPT.get('half'): a('s_cmp_eq_u32 s23, 0'); a(f's_cbranch_scc1 K2_H{k}')
            a.label(f'K2_W10_{k}_{u}')
            a(f's_waitcnt vmcnt({NL})')
        for t in range(2): a(f'ds_read_b64 v[{A+4*t}:{A+4*t+1}], v11 offset:{EB+1024*k+512*t}')
        if k==1: a('v_add_u32 v2, 384, v2'); a('v_add_u32 v10, 384, v10')
        a(f'ds_read2_b32 v[{SS+6}:{SS+7}], v4 offset0:{32*k} offset1:{32*k+16}')
        a(f'ds_read2_b32 v[{SS+4}:{SS+5}], v3 offset0:{32*k+32} offset1:{32*k+48}')
        a(f'ds_read_b128 v[{W}:{W+3}], v2 offset:{128*kn}'); a(f'ds_read_b128 v[{W+4}:{W+7}], v2 offset:{128*kn+64}')
        a(f'ds_read_b32 v8, v10 offset:{128*kn}')
        a(f's_mov_b32 m0, s{36+kn}')
        a(f's_cmp_lt_u32 s63, {2 if first else 3}')
        for b in range(4): shl(0,b)
        shl(1,0)
        a('s_waitcnt lgkmcnt(5)')
        for b in range(4):
            mf(0,b)
            if b<3: shl(1,b+1)
        a('s_waitcnt lgkmcnt(3)')
        for uu in range(2): a(f'v_and_or_b32 v{SS+6+uu}, v{SS+6+uu}, s51, v6')
        for uu in range(2): a(f'v_and_or_b32 v{SS+4+uu}, v{SS+4+uu}, s51, v5')
        for b in range(4):
            mf(1,b); ex(0,b)
        for uu in range(2): a(f'ds_read_b64_tr_b16 v[{SS+2*uu}:{SS+2*uu+1}], v{SS+6+uu}')
        for uu in range(2): a(f'ds_read_b64 v[{A+4*uu+2}:{A+4*uu+3}], v{SS+4+uu}')
        a('s_waitcnt lgkmcnt(4)')
        for t in range(2):
            if t==1:
                for b in range(4):
                    ex(1,b)
                    if b%2==1: grp(lambda: ld(4+b//2))
            for p in range(8): a(f'v_pk_add_f32 v[{EE+2*p}:{EE+2*p+1}], v[{EE+2*p}:{EE+2*p+1}], s[54:55]')
            for p in range(16):
                a(f'v_rcp_f32 v{EE+p}, v{EE+p}')
                if t==0 and p==0 and OPT.get('ef'): grp(lde)
                if t==0 and p%4==3: grp(lambda: ld(p//4))
                if t==1 and p in (3,9): grp(lambda: ld(6+p//9))
                if t==1 and p==15 and not OPT.get('ef'): grp(lde)
            for p in range(8): a(f'v_pk_mul_f32 v[{EE+2*p}:{EE+2*p+1}], v[{EE+2*p}:{EE+2*p+1}], v[{G+16*t+2*p}:{G+16*t+2*p+1}]')
            if t==1: a('s_waitcnt lgkmcnt(2)')
            for b in range(4):
                m=D0+4*b+2*t
                a(f'v_cvt_pk_bf16_f32 v{m}, v{EE+b}, v{EE+4+b}'); a(f'v_cvt_pk_bf16_f32 v{m+1}, v{EE+8+b}, v{EE+12+b}')
                if t==1 and b>0: a(f'v_mfma_f32_16x16x32_bf16 v[{ACC+4*b-4}:{ACC+4*b-1}], v[{SS}:{SS+3}], v[{D0+4*b-4}:{D0+4*b-1}], v[{ACC+4*b-4}:{ACC+4*b-1}]')
        a('s_sub_u32 s59, s59, 1'); a('s_sub_u32 s63, s63, 1')
        a(f'v_mfma_f32_16x16x32_bf16 v[{ACC+12}:{ACC+15}], v[{SS}:{SS+3}], v[{D0+12}:{D0+15}], v[{ACC+12}:{ACC+15}]')
        if k==2:
            for r in (3,4): a(f'v_add_u32 v{r}, 384, v{r}')
        a('s_cmp_eq_u32 s63, 0')
        if k<2 or not last: a('s_cbranch_scc1 K2_NEXT')
        else: a('s_cbranch_scc0 K2_LOOP')
        if first:
            a('s_cmp_lt_u32 s63, 2'); a('s_cbranch_scc1 K2_B1')
            issue(2)
            a('s_branch K2_B1')
    if FB: body(0,9,first=True)
    for u in range(OPT.get('unr',1)):
        for k in range(3): body(k,u,u==OPT.get('unr',1)-1)
    if OPT.get('half'):
        a('s_branch K2_NEXT')
        for k in range(3):
            G=BUF[k]
            a.label(f'K2_H{k}')
            a(f'ds_read_b64 v[{AF}:{AF+1}], v11 offset:{EB+1024*k}')
            a(f'ds_read2_b32 v[{SS+6}:{SS+7}], v4 offset0:{32*k} offset1:{32*k+16}')
            for b in range(4):
                for i in range(4): a(f'v_lshlrev_b32 v{D1+4*b+i}, 16, v{G+4*i+b}')
            for p in range(8): a(f'v_mov_b32 v{G+16+p}, v{G+p}') if False else None
            a('s_waitcnt lgkmcnt(0)')
            for b in range(4):
                a(f'v_mfma_f32_16x16x32_bf16 v[{D1+4*b}:{D1+4*b+3}], v[{AF}:{AF+3}], v[{BO+4*b}:{BO+4*b+3}], v[{D1+4*b}:{D1+4*b+3}]')
                a(f'v_mov_b32 v{D0+4*b+2}, 0'); a(f'v_mov_b32 v{D0+4*b+3}, 0')
            for uu in range(2): a(f'v_and_or_b32 v{SS+6+uu}, v{SS+6+uu}, s51, v6')
            for uu in range(2): a(f'ds_read_b64_tr_b16 v[{SS+2*uu}:{SS+2*uu+1}], v{SS+6+uu}')
            for b in range(4):
                for i in range(4): a(f'v_exp_f32 v{EE+4*i+b}, v{D1+4*b+i}')
            for p in range(8): a(f'v_pk_add_f32 v[{EE+2*p}:{EE+2*p+1}], v[{EE+2*p}:{EE+2*p+1}], s[54:55]')
            for p in range(16): a(f'v_rcp_f32 v{EE+p}, v{EE+p}')
            for p in range(8): a(f'v_pk_mul_f32 v[{EE+2*p}:{EE+2*p+1}], v[{EE+2*p}:{EE+2*p+1}], v[{G+2*p}:{G+2*p+1}]')
            if k<2: a('s_branch K2_HE')
        a.label('K2_HE')
        a('s_waitcnt lgkmcnt(0)')
        for b in range(4):
            a(f'v_cvt_pk_bf16_f32 v{D0+4*b}, v{EE+b}, v{EE+4+b}'); a(f'v_cvt_pk_bf16_f32 v{D0+4*b+1}, v{EE+8+b}, v{EE+12+b}')
        for b in range(4):
            a(f'v_mfma_f32_16x16x32_bf16 v[{ACC+4*b}:{ACC+4*b+3}], v[{SS}:{SS+3}], v[{D0+4*b}:{D0+4*b+3}], v[{ACC+4*b}:{ACC+4*b+3}]')
    a.label('K2_NEXT')
    a.nop(8)
    a('s_cmp_lt_u32 s62, 5'); a('s_cbranch_scc1 K2_SLOW')
    a('s_cmp_eq_u64 s[56:57], 0'); a('s_cbranch_scc1 K2_FINAL')
    a('s_mov_b32 s62, 0')
    a('s_ff1_i32_b64 s60, s[56:57]'); a('s_bitset0_b64 s[56:57], s60'); a('s_and_b32 s61, s60, 7'); a('s_lshl_b32 s61, s61, 3'); a('s_lshr_b32 s60, s60, 3'); a('s_add_u32 s60, s60, s61'); a(f's_mul_i32 s61, s60, {CE}')
    a.label('K2_SLOW')
    a('s_waitcnt vmcnt(0) lgkmcnt(0)')
    srd(a,68,10,11,E*4); srd(a,72,8,9,E*4)
    a('s_mul_i32 s64, s62, 500'); a('s_add_u32 s64, s64, s61'); a('s_lshl_b32 s65, s64, 2')
    a(f'v_lshlrev_b32 v{T}, 4, v7')
    a(f'buffer_load_dwordx4 v[{MR}:{MR+3}], v{T}, s[68:71], s65 offen'); a(f'buffer_load_dwordx4 v[{MR+4}:{MR+7}], v{T}, s[68:71], s65 offen offset:1024')
    a(f'buffer_load_dwordx4 v[{MR+8}:{MR+11}], v{T}, s[72:75], s65 offen'); a(f'buffer_load_dwordx4 v[{MR+12}:{MR+15}], v{T}, s[72:75], s65 offen offset:1024')
    a('s_mov_b32 s58, 0'); a('s_add_u32 s62, s62, 1'); a('s_mul_i32 s66, s40, 10')
    a('s_waitcnt vmcnt(0)')
    for r in range(8):
        idx=256*(r//4)+(r%4)
        a(f'v_lshlrev_b32 v{T+1}, 2, v7'); a(f'v_add_u32 v{T+1}, {idx}, v{T+1}')
        a(f'v_mov_b32 v{T+2}, 500'); a(f'v_cmp_lt_u32 s[76:77], v{T+1}, v{T+2}')
        a(f'v_subrev_u32 v{T+2}, s66, v{MR+r}'); a(f'v_cmp_gt_u32 vcc, 10, v{T+2}')
        a('s_and_b64 vcc, vcc, s[76:77]')
        a(f'v_lshlrev_b32 v{T+3}, 16, v{MR+8+r}')
        a(f'v_add_lshl_u32 v{T+4}, v{T+1}, s64, 9'); a(f'v_lshl_add_u32 v{T+4}, v{T+2}, 5, v{T+4}')
        a(f'v_mbcnt_lo_u32_b32 v{T+5}, vcc_lo, 0'); a(f'v_mbcnt_hi_u32_b32 v{T+5}, vcc_hi, v{T+5}')
        a(f'v_add_lshl_u32 v{T+5}, v{T+5}, s58, 2'); a(f'v_add_u32 v{T+5}, s48, v{T+5}')
        a('s_bcnt1_i32_b64 s67, vcc'); a('s_add_u32 s58, s58, s67')
        a('s_mov_b64 exec, vcc')
        a(f'ds_write_b32 v{T+5}, v{T+3} offset:512'); a(f'ds_write_b32 v{T+5}, v{T+4} offset:{512+ARR}')
        a('s_mov_b64 exec, -1')
    a('s_branch K2_PROC')
    a.label('K2_FINAL')
    a('s_waitcnt vmcnt(0)')
    stamp(a,6)
    a('v_lshrrev_b32 v15, 4, v7'); a('v_mul_u32_u24 v2, 1088, v15'); a('v_lshrrev_b32 v3, 2, v1'); a('v_add3_u32 v2, v2, v3, s48')
    for b in range(4):
        for i in range(4): a(f'ds_write_b32 v2, v{ACC+4*b+i} offset:{512+272*i+64*b}')
    a('v_mul_u32_u24 v4, 272, v15'); a('v_add3_u32 v4, v4, v1, s48')
    for j in range(3): a(f'ds_read_b128 v[{D0+4*j}:{D0+4*j+3}], v4 offset:{512+1088*j}')
    a('v_lshlrev_b32 v6, 8, v15'); a('v_lshrrev_b32 v3, 1, v1'); a('v_add_u32 v6, v6, v3')
    a('s_mul_i32 s44, s40, 2560'); a('s_add_u32 s44, s44, s45')
    srd_off(a,24,18,19,'s44',2560-128)
    a('s_waitcnt lgkmcnt(0)')
    for p in range(6): a(f'v_pk_mul_f32 v[{D1+2*p}:{D1+2*p+1}], v[{D0+2*p}:{D0+2*p+1}], s[52:53]')
    for i in range(12): a(f'v_exp_f32 v{D1+i}, v{D1+i}')
    for p in range(6): a(f'v_pk_add_f32 v[{D1+2*p}:{D1+2*p+1}], v[{D1+2*p}:{D1+2*p+1}], s[54:55]')
    for i in range(12): a(f'v_rcp_f32 v{D1+i}, v{D1+i}')
    for p in range(6): a(f'v_pk_mul_f32 v[{D0+2*p}:{D0+2*p+1}], v[{D0+2*p}:{D0+2*p+1}], v[{D1+2*p}:{D1+2*p+1}]')
    for p in range(6): a(f'v_cvt_pk_bf16_f32 v{EE+p}, v{D0+2*p}, v{D0+2*p+1}')
    for j in range(3): a(f'buffer_store_dwordx2 v[{EE+2*j}:{EE+2*j+1}], v6, s[24:27], 0 offen offset:{1024*j}')
    if OPT.get('dbg'):
        a('s_waitcnt vmcnt(0)'); a('s_memrealtime s[92:93]'); srd(a,24,20,21,WS_END); srd(a,28,22,23,256)
        a('s_mov_b64 exec, 1'); a('v_mov_b32 v4, 0'); a(f's_mov_b32 s94, {3*THALF}')
        a('buffer_load_dword v3, v4, s[24:27], s94 offen'); a('s_waitcnt vmcnt(0) lgkmcnt(0)')
        a('v_sub_u32 v5, s92, v3'); a('v_sub_u32 v6, s90, v3'); a('v_sub_u32 v7, 0x100000, v6')
        a('buffer_atomic_umax v5, v4, s[28:31], 0 offen'); a('buffer_atomic_umax v6, v4, s[28:31], 0 offen offset:4'); a('buffer_atomic_umax v7, v4, s[28:31], 0 offen offset:8')
    if gen1.STAMP:
        a('s_waitcnt vmcnt(0)'); stamp(a,7,True)
        a('s_lshl_b32 s79, s2, 3'); a('s_add_u32 s79, s79, s42'); stamp_out(a,8,'s79',OFF_ST,30)
    a.label('K2_END')
    a('s_endpgm')
    return a
def mk(path):
    build([('prep_kernel',k1(),CH+160,512,K1_LDS+2048),(NAME+'_kernel',k2(),256,512,K2_LDS)],path)
if __name__=='__main__':
    for arg in sys.argv[2:]:
        if arg=='stamp': gen1.STAMP=True
        else:
            k,v=arg.split('='); OPT[k]=eval(v)
    mk(sys.argv[1])
```

```python
import sys, struct
from asmlib import Asm
import gen1
from gen1 import srd, srd_off, f2u, build, NAME, stamp, stamp_out, OFF_ST
N=10000;E=160000;NBK=1000;CH=64;CE=2500;CAP=15
THALF=N*256
OFF_META=4*THALF
WS_END=OFF_META+NBK*4096
OFF_CT=WS_END+(1<<17)
XL=8*4736
NLOG2E=f2u(-1.4426950408889634)
TINY=f2u(2.0**-100)
OPT=dict(st='',skipq=False,pref=False,exp='',eld='',mld='',xld='',tld='',mq=2,early=True,prio=2,same=0,np=2)
NG=79
K1_LDS=XL+32768
NW1=CH+320+1
def wimg_addrs(a,vrow,vpiece,vdst,vt):
    a(f'v_lshrrev_b32 v{vdst}, 4, v{vrow}'); a(f'v_mul_u32_u24 v{vdst}, 4736, v{vdst}')
    a(f'v_and_b32 v{vt}, 15, v{vrow}'); a(f'v_mul_u32_u24 v{vt}, 288, v{vt}'); a(f'v_add_u32 v{vdst}, v{vdst}, v{vt}')
    a(f'v_bfe_u32 v{vt}, v{vrow}, 3, 1'); a(f'v_lshl_add_u32 v{vdst}, v{vt}, 7, v{vdst}'); a(f'v_lshl_add_u32 v{vdst}, v{vpiece}, 4, v{vdst}')
def tr_addr(a,vq,vc,vdst,vt):
    a(f'v_lshrrev_b32 v{vdst}, 1, v{vq}'); a(f'v_mul_u32_u24 v{vdst}, 4736, v{vdst}')
    a(f'v_and_b32 v{vt}, 1, v{vq}'); a(f'v_mul_u32_u24 v{vt}, 2432, v{vt}'); a(f'v_add_u32 v{vdst}, v{vdst}, v{vt}')
    a(f'v_lshrrev_b32 v{vt}, 2, v{vc}'); a(f'v_mul_u32_u24 v{vt}, 288, v{vt}'); a(f'v_add_u32 v{vdst}, v{vdst}, v{vt}')
    a(f'v_and_b32 v{vt}, 3, v{vc}'); a(f'v_lshl_add_u32 v{vdst}, v{vt}, 3, v{vdst}')
def gemm_stream(a,vtr,XF,slots,dres,base=0):
    hs=[(s,mm) for s in range(4) for mm in range(2)]
    def rd(h):
        s,mm=hs[h]; sl=slots[h%len(slots)]
        for b in range(4):
            for u in range(2):
                r=sl+4*b+2*u
                a(f'ds_read_b64_tr_b16 v[{r}:{r+1}], v{vtr} offset:{base+s*9472+u*1152+mm*128+b*32}')
    rd(0)
    for h in range(8):
        if h+1<8: rd(h+1); a('s_waitcnt lgkmcnt(8)')
        else: a('s_waitcnt lgkmcnt(0)')
        s,mm=hs[h]; sl=slots[h%len(slots)]
        for b in range(4):
            d=dres(mm,b); c='0' if s==0 else f'v[{d}:{d+3}]'
            a(f'v_mfma_f32_16x16x32_bf16 v[{d}:{d+3}], v[{XF+4*s}:{XF+4*s+3}], v[{sl+4*b}:{sl+4*b+3}], {c}')
def fin(a,wpw_shift,base):
    if gen1.STAMP:
        stamp(a,5); a('s_waitcnt vmcnt(0)'); stamp(a,6); stamp(a,7,True)
        a('v_lshrrev_b32 v70, 6, v0'); a('v_readfirstlane_b32 s78, v70')
        a(f's_lshl_b32 s79, s2, {wpw_shift}'); a('s_add_u32 s79, s79, s78'); stamp_out(a,8,'s79',base,70)
def k1():
    a=Asm(); ST=OPT['st']; NP=OPT['np']; NW1=CH+160*NP+(NP-1)
    stamp(a,0,True); stamp(a,1)
    a('s_load_dwordx16 s[4:19], s[0:1], 0')
    a('s_load_dwordx2 s[20:21], s[0:1], 72')
    if OPT.get('dbg'): a('s_memrealtime s[90:91]')
    a(f's_cmp_ge_u32 s2, {NW1}'); a(f's_cbranch_scc1 {"K1_PF" if OPT.get("pw") else "K1_END"}')
    if NP==2: a(f's_cmp_eq_u32 s2, {NW1-1}'); a('s_cbranch_scc1 K1_CT')
    a(f's_cmp_lt_u32 s2, {CH}'); a('s_cbranch_scc1 K1_SORT')
    a(f's_sub_u32 s3, s2, {CH}')
    a('s_and_b32 s40, s3, 7'); a(f's_lshr_b32 s41, s3, {3+NP}'); a('s_lshl_b32 s41, s41, 3'); a('s_add_u32 s40, s40, s41')
    a('s_bfe_u32 s42, s3, 0x10003'); a('s_bfe_u32 s43, s3, 0x10004' if NP==2 else 's_mov_b32 s43, 0')
    a(f's_cmp_ge_u32 s40, {NG}'); a('s_cbranch_scc1 K1_END')
    a('v_and_b32 v1, 7, v0'); a('v_lshrrev_b32 v2, 3, v0')
    a('v_lshlrev_b32 v3, 8, v2'); a('v_lshl_add_u32 v3, v1, 4, v3'); a('v_add_u32 v4, 16384, v3')
    a('v_lshrrev_b32 v5, 6, v0'); a('v_readfirstlane_b32 s48, v5')
    a('v_and_b32 v6, 63, v0'); a('v_and_b32 v7, 15, v6'); a('v_lshrrev_b32 v5, 4, v6')
    a('s_lshl_b32 s49, s40, 3'); a('s_add_u32 s49, s49, s48'); a('s_lshl_b32 s50, s49, 12')
    a('v_lshlrev_b32 v24, 2, v5'); a('v_xor_b32 v24, v24, v7'); a('v_lshlrev_b32 v24, 4, v24'); a('v_lshl_add_u32 v24, v5, 8, v24')
    a('s_lshl_b32 s51, s48, 12'); a(f's_add_u32 s51, s51, {XL}'); a('s_mov_b32 m0, s51')
    a('s_lshl_b32 s45, s42, 7')
    a('s_waitcnt lgkmcnt(0)')
    a('s_cmp_eq_u32 s43, 0'); a('s_cselect_b32 s44, 32768, 0'); a('s_cselect_b32 s46, s14, s12'); a('s_cselect_b32 s47, s15, s13')
    srd_off(a,28,16,17,'s44',32768); srd(a,32,46,47,32768); srd(a,36,4,5,N*256)
    a('buffer_load_dwordx4 v[8:11], v3, s[28:31], s45 offen'); a('buffer_load_dwordx4 v[12:15], v4, s[28:31], s45 offen')
    a('buffer_load_dwordx4 v[16:19], v3, s[32:35], s45 offen'); a('buffer_load_dwordx4 v[20:23], v4, s[32:35], s45 offen')
    XF=28
    for s in range(4): a(f'buffer_load_dwordx4 v24, s[36:39], s50 offen offset:{1024*s} lds')
    if OPT['pref']:
        srd(a,60,6,7,E*32)
        a(f's_mul_i32 s64, s3, {32768//NP}'); a(f'v_lshlrev_b32 v108, {7-NP}, v0')
        a(f'buffer_load_dword v109, v108, s[60:63], s64 offen')
    np_=1 if OPT['pref'] else 0
    wimg_addrs(a,2,1,25,26); tr_addr(a,5,7,26,27)
    a(f's_mov_b32 s52, {NLOG2E}'); a(f's_mov_b32 s53, {NLOG2E}'); a(f's_mov_b32 s57, {TINY}')
    a('s_mov_b32 s58, 0x80008000'); a('s_mov_b32 s54, 0x07060100'); a('s_mov_b32 s55, 0x07060302'); a('s_mov_b32 s59, 0x80000000')
    a('s_lshl_b32 s56, s43, 1'); a('s_add_u32 s56, s56, s42'); a(f's_mul_i32 s56, s56, {THALF}'); srd_off(a,24,20,21,'s56',THALF)
    a('v_and_b32 v27, 3, v7'); a('v_lshlrev_b32 v24, 8, v7'); a('v_lshl_add_u32 v24, v27, 6, v24'); a('v_lshl_add_u32 v24, v5, 4, v24'); a('v_add_u32 v24, s51, v24')
    for s in range(1,4): a(f'v_xor_b32 v{43+s}, {64*s}, v24')
    a(f's_waitcnt vmcnt({7+np_})'); a('ds_write_b128 v25, v[8:11]')
    a(f's_waitcnt vmcnt({6+np_})'); a(f'ds_write_b128 v25, v[12:15] offset:{4*4736}')
    a(f's_waitcnt vmcnt({5+np_})'); a('ds_write_b128 v25, v[16:19] offset:128')
    a(f's_waitcnt vmcnt({4+np_})'); a(f'ds_write_b128 v25, v[20:23] offset:{4*4736+128}')
    stamp(a,2)
    a('s_waitcnt lgkmcnt(0)'); a('s_barrier')
    a(f's_waitcnt vmcnt({np_})')
    stamp(a,3)
    for s in range(4): a(f'ds_read_b128 v[{XF+4*s}:{XF+4*s+3}], v{24 if s==0 else 43+s}')
    D0=44
    dd=lambda mm,b: D0+(mm*4+b)*4
    gemm_stream(a,26,XF,[76,8],dd) if False else gemm_stream(a,26,XF,[76,92],dd)
    stamp(a,4)
    a('v_lshlrev_b32 v9, 10, v5'); a('v_lshl_add_u32 v9, v7, 4, v9')
    for b in range(4):
        d=dd(0,b)
        a(f'v_pk_mul_f32 v[{d}:{d+1}], v[{d}:{d+1}], s[52:53]'); a(f'v_pk_mul_f32 v[{d+2}:{d+3}], v[{d+2}:{d+3}], s[52:53]')
    for i in range(4):
        o=12+(i%2)*12
        for bp in range(2):
            a(f'v_cvt_pk_bf16_f32 v{o+4+bp}, v{dd(0,2*bp)+i}, v{dd(0,2*bp+1)+i}')
        for b in range(4): a(f'v_max_f32 v{o+8+b}, |v{dd(1,b)+i}|, s57')
        for bp in range(2): a(f'v_xor_b32 v{o+6+bp}, s58, v{o+4+bp}')
        for b in range(4):
            a(f'v_sub_u32_sdwa v{o+8+b}, v{o+8+b}, sext(v{o+6+b//2}) dst_sel:DWORD dst_unused:UNUSED_PAD src0_sel:DWORD src1_sel:WORD_{b%2}')
        for b in range(4): a(f'v_perm_b32 v{o+b}, v{o+8+b}, v{o+4+b//2}, s{54+b%2}')
        for b in range(4): a(f'v_and_or_b32 v{o+b}, v{dd(1,b)+i}, s59, v{o+b}')
        a(f'buffer_store_dwordx4 v[{o}:{o+3}], v9, s[24:27], s50 offen offset:{256*i} {ST} {OPT.get("stt","")}')
    fin(a,3,OFF_ST+(1<<20))
    a('s_endpgm')
    a.label('K1_SORT')
    a(f's_mul_i32 s40, s2, {CE*4}')
    a('v_mul_u32_u24 v1, 20, v0')
    a('v_mov_b32 v20, 0'); a('v_mov_b32 v21, 0'); a('v_lshlrev_b32 v2, 3, v0')
    a('ds_write_b64 v2, v[20:21] offset:0')
    a('s_waitcnt lgkmcnt(0)')
    srd(a,28,10,11,E*4); srd(a,32,8,9,E*4); srd(a,24,20,21,WS_END)
    a('buffer_load_dwordx4 v[8:11], v1, s[28:31], s40 offen'); a('buffer_load_dword v12, v1, s[28:31], s40 offen offset:16')
    a('buffer_load_dwordx4 v[14:17], v1, s[32:35], s40 offen'); a('buffer_load_dword v18, v1, s[32:35], s40 offen offset:16')
    if OPT.get('dbg'):
        a('v_mov_b32 v3, s90'); a('v_mov_b32 v4, 0'); a('s_lshl_b32 s92, s2, 2'); a(f's_add_u32 s92, s92, {3*THALF}'); a('buffer_store_dword v3, v4, s[24:27], s92 offen'); a('s_waitcnt vmcnt(0)')
    a('v_mov_b32 v3, 1'); a('v_mul_u32_u24 v4, 80, v0')
    a('s_barrier')
    a(f'v_cmp_gt_u32 vcc, {CE//5}, v0'); a('s_and_saveexec_b64 s[42:43], vcc')
    stamp(a,2)
    a('s_waitcnt vmcnt(2)')
    stamp(a,3)
    for j in range(5):
        a(f'v_mul_u32_u24 v{24+j}, 52429, v{8+j}'); a(f'v_lshrrev_b32 v{24+j}, 19, v{24+j}')
        a(f'v_lshlrev_b32 v{30+j}, 2, v{24+j}')
        a(f'ds_add_rtn_u32 v{36+j}, v{30+j}, v3')
    a('s_waitcnt vmcnt(0)')
    for j in range(5):
        a(f'v_mul_u32_u24 v{30+j}, 10, v{24+j}'); a(f'v_sub_u32 v{8+j}, v{8+j}, v{30+j}')
        a(f'v_lshl_or_b32 v{8+j}, v{14+j}, 16, v{8+j}')
        a(f'v_add3_u32 v{8+j}, v{8+j}, v4, {16*j}')
        a(f'v_lshlrev_b32 v{24+j}, 6, v{24+j}')
    for j in range(5):
        a(f's_waitcnt lgkmcnt({4})' if j>0 else 's_waitcnt lgkmcnt(4)')
        a(f'v_min_u32 v{36+j}, {CAP-1}, v{36+j}'); a(f'v_lshl_add_u32 v{36+j}, v{36+j}, 2, v{24+j}')
        a(f'ds_write_b32 v{36+j}, v{8+j} offset:{4096+4}')
    a('s_mov_b64 exec, s[42:43]')
    a('v_lshlrev_b32 v1, 6, v0'); a('v_lshlrev_b32 v6, 2, v0'); a('v_lshlrev_b32 v7, 12, v0')
    a('s_and_b32 s44, s2, 7'); a('s_lshl_b32 s44, s44, 3'); a('s_lshr_b32 s45, s2, 3'); a('s_add_u32 s44, s44, s45')
    a('s_lshl_b32 s44, s44, 4'); a(f's_add_u32 s44, s44, {OFF_META}'); a(f's_add_u32 s45, s44, {512*4096}')
    a('s_waitcnt lgkmcnt(0)'); a('s_barrier')
    stamp(a,4)
    for h in range(2):
        a(f'ds_read_b32 v{60+h}, v6 offset:{2048*h}')
        for q in range(2): a(f'ds_read_b128 v[{40+8*h+4*q}:{43+8*h+4*q}], v1 offset:{4096+32768*h+16*q}')
    for h in range(2):
        a(f's_waitcnt lgkmcnt({3-3*h})')
        a(f'v_mov_b32 v{40+8*h}, v{60+h}')
        a(f'v_cmp_lt_u32 vcc, 3, v{60+h}')
        a(f'buffer_store_dwordx4 v[{40+8*h}:{43+8*h}], v7, s[24:27], s{44+h} offen {ST}')
        a('s_mov_b64 exec, vcc')
        a(f'buffer_store_dwordx4 v[{44+8*h}:{47+8*h}], v7, s[24:27], s{44+h} offen offset:1024 {ST}')
        a('s_mov_b64 exec, -1')
    for h in range(2):
        a(f'v_cmp_lt_u32 vcc, 7, v{60+h}'); a('s_and_saveexec_b64 s[42:43], vcc'); a(f's_cbranch_execz K1_SK{h}')
        for q in range(2,4): a(f'ds_read_b128 v[{16+8*h+4*q}:{19+8*h+4*q}], v1 offset:{4096+32768*h+16*q}')
        a('s_waitcnt lgkmcnt(0)')
        for q in range(2,4): a(f'buffer_store_dwordx4 v[{16+8*h+4*q}:{19+8*h+4*q}], v7, s[24:27], s{44+h} offen offset:{1024*q} {ST}')
        a.label(f'K1_SK{h}')
        a('s_mov_b64 exec, s[42:43]')
    fin(a,3,OFF_ST+(1<<20))
    a('s_endpgm')
    a.label('K1_CT')
    a('v_and_b32 v1, 15, v0'); a('v_bfe_u32 v2, v0, 4, 2'); a('v_lshrrev_b32 v3, 6, v0')
    a('v_lshl_add_u32 v1, v3, 4, v1'); a('v_lshlrev_b32 v1, 1, v1'); a('v_lshl_add_u32 v1, v2, 10, v1'); a('v_lshlrev_b32 v2, 3, v0')
    a(f's_mov_b32 s52, {NLOG2E}')
    a('s_waitcnt lgkmcnt(0)')
    srd_off(a,28,16,17,65536,4096); srd_off(a,24,20,21,OFF_CT,4096)
    for j in range(4): a(f'buffer_load_ushort v{4+j}, v1, s[28:31], 0 offen offset:{256*j}')
    a('s_waitcnt vmcnt(0)')
    for j in range(4): a(f'v_lshlrev_b32 v{4+j}, 16, v{4+j}'); a(f'v_mul_f32 v{4+j}, s52, v{4+j}')
    a('v_cvt_pk_bf16_f32 v8, v4, v5'); a('v_cvt_pk_bf16_f32 v9, v6, v7')
    a('buffer_store_dwordx2 v[8:9], v2, s[24:27], 0 offen')
    if OPT.get('pw'):
        PW=OPT['pw']; per=-(-E*32//PW//128)*128; nl=-(-per//65536)
        a('s_endpgm')
        a.label('K1_PF')
        a(f's_sub_u32 s3, s2, {NW1}'); a(f's_cmp_ge_u32 s3, {PW}'); a('s_cbranch_scc1 K1_END')
        a('v_lshlrev_b32 v1, 7, v0'); a(f's_mul_i32 s40, s3, {per}')
        a('s_waitcnt lgkmcnt(0)')
        a(f's_sub_u32 s41, {E*32}, s40'); a(f's_min_u32 s41, s41, {per}')
        srd_off(a,28,6,7,'s40','s41')
        for j in range(nl):
            a(f's_mov_b32 s42, {65536*j}'); a(f'buffer_load_dword v{2+j}, v1, s[28:31], s42 offen')
        a('s_cmp_lg_u32 s3, 0'); a('s_cbranch_scc1 K1_PF2')
        srd(a,32,16,17,272*256); srd(a,36,12,13,32768); a('s_mov_b32 s42, 65536')
        a('buffer_load_dword v10, v1, s[32:35], 0 offen'); a('buffer_load_dword v11, v1, s[32:35], s42 offen'); a('buffer_load_dword v12, v1, s[36:39], 0 offen')
        a.label('K1_PF2')
        a('s_waitcnt vmcnt(0)')
    a.label('K1_END')
    a('s_endpgm')
    return a

LCAP=1088; ARR=LCAP*4
EB=512+2*ARR
WREG=EB+3072
K2_LDS=8*WREG
NL=9
def k2():
    a=Asm()
    stamp(a,0,True); stamp(a,1)
    a('s_load_dwordx16 s[4:19], s[0:1], 0')
    a('s_load_dwordx2 s[20:21], s[0:1], 72')
    if OPT['prio']==2: a('s_setprio 3')
    if OPT['same']:
        a(f's_cmp_ge_u32 s2, {NBK//4}'); a('s_cbranch_scc1 K2_END')
        a('v_lshrrev_b32 v7, 6, v0'); a('v_readfirstlane_b32 s42, v7')
        a('v_and_b32 v7, 63, v0')
        if OPT['same']==1: a('s_and_b32 s41, s42, 1'); a('s_lshr_b32 s40, s42, 1')
        else: a('s_lshr_b32 s41, s42, 2'); a('s_and_b32 s40, s42, 3')
        a('s_lshl_b32 s43, s2, 2'); a('s_add_u32 s40, s40, s43')
    else:
        a('s_lshr_b32 s40, s2, 3'); a('s_lshl_b32 s40, s40, 2'); a('s_and_b32 s41, s2, 3'); a('s_add_u32 s40, s40, s41')
        a('s_bfe_u32 s41, s2, 0x10002')
        a(f's_cmp_ge_u32 s40, {NBK//8}'); a('s_cbranch_scc1 K2_END')
        a('v_lshrrev_b32 v7, 6, v0'); a('v_readfirstlane_b32 s42, v7')
        a('v_and_b32 v7, 63, v0')
        a('s_lshl_b32 s40, s40, 3'); a('s_add_u32 s40, s40, s42')
    BO=16; ACC=32; SS=48; D0=56; D1=72; EE=88; AF=104; XR=120; BUF=[136,168,200]; MR=136
    a(f's_lshl_b32 s43, s40, 12'); a(f's_add_u32 s43, s43, {OFF_META}')
    a('v_lshlrev_b32 v15, 4, v7'); a('v_lshlrev_b32 v52, 3, v7')
    a('v_and_b32 v1, 15, v7'); a('v_lshrrev_b32 v55, 4, v7')
    a('v_lshlrev_b32 v54, 10, v55'); a('v_lshl_add_u32 v54, v1, 4, v54')
    a('s_lshl_b32 s45, s41, 7')
    a(f's_mul_i32 s48, s42, {WREG}')
    a(f's_mul_i32 s46, s41, {THALF}'); a('s_mul_i32 s44, s40, 2560'); a('s_add_u32 s47, s46, s44'); a(f's_add_u32 s47, s47, {2*THALF}')
    a('s_lshl_b32 s60, s41, 11')
    a('v_lshrrev_b32 v4, 2, v7'); a('v_and_b32 v6, 3, v7'); a('v_lshlrev_b32 v5, 2, v6'); a('v_sub_u32 v5, v4, v5')
    a('v_lshlrev_b32 v2, 4, v5'); a('v_mov_b32 v8, 0x3f80'); a('v_mov_b32 v9, 0'); a('v_lshlrev_b64 v[8:9], v2, v[8:9]')
    a('v_cmp_gt_u32 vcc, 4, v5'); a('v_cndmask_b32 v8, 0, v8, vcc'); a('v_cndmask_b32 v9, 0, v9, vcc')
    a('v_lshl_add_u32 v2, v7, 3, s48'); a('ds_write_b64 v2, v[8:9]')
    a('s_waitcnt lgkmcnt(0)')
    srd(a,24,20,21,WS_END)
    MQ=OPT['mq']
    for j in range(MQ): a(f'buffer_load_dwordx4 v[{MR+4*j}:{MR+4*j+3}], v15, s[24:27], s43 offen offset:{1024*j} {OPT["mld"]}')
    srd_off(a,64,20,21,'s47',2560); srd_off(a,68,20,21,OFF_CT,4096)
    srd_off(a,28,20,21,'s46',THALF)
    a('s_mov_b32 s32, s6'); a('s_and_b32 s33, s7, 0xffff'); a('s_or_b32 s33, s33, 0x200000'); a(f's_mov_b32 s34, {E}'); a('s_mov_b32 s35, 0x20000')
    for i in range(4): a(f'buffer_load_dwordx4 v[{D0+4*i}:{D0+4*i+3}], v54, s[64:67], 0 offen offset:{256*i}')
    for b in range(4): a(f'buffer_load_dwordx2 v[{BO+4*b}:{BO+4*b+1}], v52, s[68:71], s60 offen offset:{512*b}')
    a('v_lshl_add_u32 v12, v55, 4, s48'); a('v_add_u32 v12, 512, v12')
    a('v_lshl_add_u32 v13, v1, 2, s48'); a(f'v_add_u32 v13, {512+ARR}, v13')
    a('v_lshl_add_u32 v14, v4, 2, s48'); a(f'v_add_u32 v14, {512+ARR}, v14')
    a('v_lshl_add_u32 v5, v55, 3, s48')
    a(f'v_lshl_add_u32 v11, v1, 5, v5')
    a('v_lshl_add_u32 v6, v6, 3, s48')
    a('v_and_b32 v9, 1, v7'); a('v_lshlrev_b32 v9, 4, v9')
    a('v_lshrrev_b32 v15, 1, v7'); a('v_lshl_add_u32 v15, v15, 2, s48'); a(f'v_add_u32 v15, {512+ARR}, v15')
    a('v_lshlrev_b32 v1, 4, v1')
    a(f'v_and_b32 v{XR}, 7, v7'); a(f'v_lshrrev_b32 v{XR+1}, 3, v7'); a(f'v_lshl_add_u32 v{XR}, v{XR}, 3, v{XR+1}')
    a(f'v_mul_u32_u24 v{XR}, {CE*512}, v{XR}')
    a(f's_mov_b32 s53, {NLOG2E}'); a(f's_mov_b32 s52, {NLOG2E}'); a('s_mov_b32 s54, 1.0'); a('s_mov_b32 s55, 1.0'); a('s_mov_b32 s62, 5')
    if 'g' in OPT['exp']: a('s_and_b32 s78, s2, 3'); a('s_mul_i32 s78, s78, 40000')
    a('s_mov_b32 s50, 0x0c070600'); a('s_mov_b32 s51, 0x1e0'); a('s_mov_b32 s49, 0')
    for k in range(3): a(f's_add_u32 s{36+k}, s48, {EB+1024*k}')
    a('s_waitcnt vmcnt(8)')
    stamp(a,2)
    T=152
    a(f'v_cmp_lt_u32 s[56:57], {CAP}, v{MR}')
    a(f'v_cndmask_b32 v{MR}, v{MR}, 0, s[56:57]')
    a(f'v_mov_b32 v{T}, v{MR}')
    for sh in (1,2,4,8): a(f'v_add_u32_dpp v{T}, v{T}, v{T} row_shr:{sh} row_mask:0xf bank_mask:0xf bound_ctrl:0')
    a(f'v_add_u32_dpp v{T}, v{T}, v{T} row_bcast:15 row_mask:0xa bank_mask:0xf')
    a(f'v_add_u32_dpp v{T}, v{T}, v{T} row_bcast:31 row_mask:0xc bank_mask:0xf')
    a(f'v_readlane_b32 s58, v{T}, 63')
    a(f'v_sub_u32 v{T}, v{T}, v{MR}'); a(f'v_lshl_add_u32 v{T}, v{T}, 2, s48')
    for s in range(CAP):
        a(f'v_cmpx_lt_u32 vcc, {s}, v{MR}')
        if s>=4: a('s_cbranch_execz K2_CDONE')
        if MQ<4 and s==4*MQ-1:
            a(f'v_lshlrev_b32 v{T+3}, 4, v7')
            for j in range(MQ,4): a(f'buffer_load_dwordx4 v[{MR+4*j}:{MR+4*j+3}], v{T+3}, s[24:27], s43 offen offset:{1024*j}')
            a('s_waitcnt vmcnt(0)')
        a(f'v_mad_u32_u16 v{T+1+s%2}, v{MR+1+s}, 32, v{XR}')
        a(f'ds_write_b32 v{T}, v{MR+1+s} offset:{512+4*s}'); a(f'ds_write_b32 v{T}, v{T+1+s%2} offset:{512+ARR+4*s}')
    a.label('K2_CDONE')
    a('s_mov_b64 exec, -1')
    a.label('K2_PROC')
    a(f'v_add_lshl_u32 v{T}, v7, s58, 2'); a(f'v_add_u32 v{T}, s48, v{T}'); a(f'v_mov_b32 v{T+1}, 0'); a(f'v_mov_b32 v{T+2}, 0x1e0')
    for j in range(2):
        a(f'ds_write_b32 v{T}, v{T+1} offset:{512+256*j}'); a(f'ds_write_b32 v{T}, v{T+2} offset:{512+ARR+256*j}')
    a('s_add_u32 s63, s58, 31'); a('s_lshr_b32 s63, s63, 5')
    a('s_max_u32 s59, s63, 2')
    a('v_mov_b32 v2, v12'); a('v_mov_b32 v3, v13'); a('v_mov_b32 v4, v14'); a('v_mov_b32 v10, v15')
    def issue(k,W=XR):
        G=BUF[k]
        a(f'ds_read_b128 v[{W}:{W+3}], v2 offset:{128*k}'); a(f'ds_read_b128 v[{W+4}:{W+7}], v2 offset:{128*k+64}')
        a(f'ds_read_b32 v8, v10 offset:{128*k}')
        a(f's_mov_b32 m0, s{36+k}')
        a('s_waitcnt lgkmcnt(1)')
        for i in range(8):
            a(f'v_perm_b32 v{W+i}, v{W+i}, v1, s50')
            if 't' in OPT['exp']: a(f'v_and_b32 v{W+i}, 0x3fff, v{W+i}')
            a(f'buffer_load_dwordx4 v[{G+4*i}:{G+4*i+3}], v{W+i}, s[28:31], 0 offen {OPT["tld"]}')
        a('s_waitcnt lgkmcnt(0)')
        a(f'v_lshrrev_b32 v8, 9, v8')
        if 'g' in OPT['exp']: a('v_lshrrev_b32 v8, 2, v8'); a('v_add_u32 v8, s78, v8')
        if 'e' in OPT['exp']: a('v_and_b32 v8, 63, v8')
        a(f'buffer_load_dwordx4 v[8:9], s[32:35], 0 idxen offen {OPT["eld"]} lds')
    def compute(k):
        G=BUF[k]; A=AF; DD=[D0,D1]
        a(f'ds_read2_b32 v[{SS+4}:{SS+5}], v3 offset0:{32*k} offset1:{32*k+16}')
        a(f'ds_read2_b32 v[{SS+6}:{SS+7}], v4 offset0:{32*k} offset1:{32*k+16}')
        for t in range(2): a(f'ds_read_b64 v[{A+4*t}:{A+4*t+1}], v11 offset:{EB+1024*k+512*t}')
        for t in range(2):
            for b in range(4):
                for i in range(4): a(f'v_lshlrev_b32 v{DD[t]+4*b+i}, 16, v{G+16*t+4*i+b}')
            if t==0:
                a('s_waitcnt lgkmcnt(2)')
                for u in range(2): a(f'v_and_or_b32 v{SS+4+u}, v{SS+4+u}, s51, v5')
                for u in range(2): a(f'ds_read_b64 v[{A+4*u+2}:{A+4*u+3}], v{SS+4+u}')
                for u in range(2): a(f'v_and_or_b32 v{SS+6+u}, v{SS+6+u}, s51, v6')
                for u in range(2): a(f'ds_read_b64_tr_b16 v[{SS+2*u}:{SS+2*u+1}], v{SS+6+u}')
        a('s_waitcnt lgkmcnt(2)')
        for t in range(2):
            for b in range(4):
                d=DD[t]+4*b
                a(f'v_mfma_f32_16x16x32_bf16 v[{d}:{d+3}], v[{A+4*t}:{A+4*t+3}], v[{BO+4*b}:{BO+4*b+3}], v[{d}:{d+3}]')
        for t in range(2):
            for b in range(4):
                for i in range(4): a(f'v_exp_f32 v{EE+4*i+b}, v{DD[t]+4*b+i}')
            for p in range(8): a(f'v_pk_add_f32 v[{EE+2*p}:{EE+2*p+1}], v[{EE+2*p}:{EE+2*p+1}], s[54:55]')
            for p in range(16): a(f'v_rcp_f32 v{EE+p}, v{EE+p}')
            for p in range(8): a(f'v_pk_mul_f32 v[{EE+2*p}:{EE+2*p+1}], v[{EE+2*p}:{EE+2*p+1}], v[{G+16*t+2*p}:{G+16*t+2*p+1}]')
            for b in range(4):
                m=D0+4*b+2*t
                a(f'v_cvt_pk_bf16_f32 v{m}, v{EE+b}, v{EE+4+b}'); a(f'v_cvt_pk_bf16_f32 v{m+1}, v{EE+8+b}, v{EE+12+b}')
        a('s_waitcnt lgkmcnt(0)')
        for b in range(4):
            a(f'v_mfma_f32_16x16x32_bf16 v[{ACC+4*b}:{ACC+4*b+3}], v[{SS}:{SS+3}], v[{D0+4*b}:{D0+4*b+3}], v[{ACC+4*b}:{ACC+4*b+3}]')
    stamp(a,3)
    issue(0)
    stamp(a,4)
    issue(1)
    a('s_cmp_lg_u32 s49, 0'); a('s_cbranch_scc1 K2_I2')
    a('s_mov_b32 s49, 1'); a('s_mov_b32 s47, 0x05040100')
    a(f's_waitcnt vmcnt({2*NL})')
    for b in range(4):
        for p in range(2): a(f'v_perm_b32 v{BO+4*b+2+p}, v{D0+8*p+4+b}, v{D0+8*p+b}, s47')
        for i in range(4): a(f'v_mov_b32 v{ACC+4*b+i}, v{D0+4*i+b}')
    a.label('K2_I2')
    a(f'ds_read2_b32 v[{SS+4}:{SS+5}], v3 offset0:0 offset1:16'); a('s_waitcnt lgkmcnt(0)')
    for u in range(2): a(f'v_and_or_b32 v{SS+4+u}, v{SS+4+u}, s51, v5')
    for u in range(2): a(f'ds_read_b64 v[{AF+4*u+2}:{AF+4*u+3}], v{SS+4+u}')
    stamp(a,5)
    a('s_cmp_eq_u32 s63, 0'); a('s_cbranch_scc1 K2_NEXT')
    a.label('K2_LOOP')
    def body(k):
        G=BUF[k]; A=AF; DD=[D0,D1]; kn=(k+2)%3; GN=BUF[kn]; W=XR
        skip=[0]
        def grp(f):
            l=f'K2_S{k}_{skip[0]}'; skip[0]+=1
            a(f's_cbranch_scc1 {l}'); f(); a.label(l)
        def ld(i):
            a(f'v_perm_b32 v{W+i}, v{W+i}, v1, s50')
            if 't' in OPT['exp']: a(f'v_and_b32 v{W+i}, 0x3fff, v{W+i}')
            a(f'buffer_load_dwordx4 v[{GN+4*i}:{GN+4*i+3}], v{W+i}, s[28:31], 0 offen {OPT["tld"]}')
        def lde():
            a('v_lshrrev_b32 v8, 9, v8')
            if 'g' in OPT['exp']: a('v_lshrrev_b32 v8, 2, v8'); a('v_add_u32 v8, s78, v8')
            if 'e' in OPT['exp']: a('v_and_b32 v8, 63, v8')
            a(f'buffer_load_dwordx4 v[8:9], s[32:35], 0 idxen offen {OPT["eld"]} lds')
        shl=lambda t,b:[a(f'v_lshlrev_b32 v{DD[t]+4*b+i}, 16, v{G+16*t+4*i+b}') for i in range(4)]
        mf=lambda t,b:a(f'v_mfma_f32_16x16x32_bf16 v[{DD[t]+4*b}:{DD[t]+4*b+3}], v[{A+4*t}:{A+4*t+3}], v[{BO+4*b}:{BO+4*b+3}], v[{DD[t]+4*b}:{DD[t]+4*b+3}]')
        ex=lambda t,b:[a(f'v_exp_f32 v{EE+4*i+b}, v{DD[t]+4*b+i}') for i in range(4)]
        if OPT['prio']:
            if OPT['prio']==1: a('s_setprio 3'); a('s_cmp_ge_u32 s63, 4'); a(f's_cbranch_scc1 K2_W10_{k}')
            a('s_setprio 2'); a('s_cmp_ge_u32 s63, 3'); a(f's_cbranch_scc1 K2_W10_{k}')
            a('s_setprio 1')
        a('s_cmp_ge_u32 s59, 2'); a(f's_cbranch_scc1 K2_W10_{k}')
        if OPT['prio']: a('s_setprio 0')
        a('s_waitcnt vmcnt(0)')
        a.label(f'K2_W10_{k}')
        a(f's_waitcnt vmcnt({NL})')
        for t in range(2): a(f'ds_read_b64 v[{A+4*t}:{A+4*t+1}], v11 offset:{EB+1024*k+512*t}')
        if k==1: a('v_add_u32 v2, 384, v2'); a('v_add_u32 v10, 384, v10')
        a(f'ds_read2_b32 v[{SS+6}:{SS+7}], v4 offset0:{32*k} offset1:{32*k+16}')
        a(f'ds_read2_b32 v[{SS+4}:{SS+5}], v3 offset0:{32*k+32} offset1:{32*k+48}')
        a(f'ds_read_b128 v[{W}:{W+3}], v2 offset:{128*kn}'); a(f'ds_read_b128 v[{W+4}:{W+7}], v2 offset:{128*kn+64}')
        a(f'ds_read_b32 v8, v10 offset:{128*kn}')
        a(f's_mov_b32 m0, s{36+kn}')
        a('s_cmp_lt_u32 s63, 3')
        for b in range(4): shl(0,b)
        shl(1,0)
        a('s_waitcnt lgkmcnt(5)')
        for b in range(4):
            mf(0,b)
            if b<3: shl(1,b+1)
        a('s_waitcnt lgkmcnt(3)')
        for u in range(2): a(f'v_and_or_b32 v{SS+6+u}, v{SS+6+u}, s51, v6')
        for u in range(2): a(f'v_and_or_b32 v{SS+4+u}, v{SS+4+u}, s51, v5')
        for b in range(4):
            mf(1,b); ex(0,b)
        for u in range(2): a(f'ds_read_b64_tr_b16 v[{SS+2*u}:{SS+2*u+1}], v{SS+6+u}')
        for u in range(2): a(f'ds_read_b64 v[{A+4*u+2}:{A+4*u+3}], v{SS+4+u}')
        a('s_waitcnt lgkmcnt(4)')
        for t in range(2):
            if t==1:
                for b in range(4):
                    ex(1,b)
                    if b%2==1: grp(lambda: ld(4+b//2))
            for p in range(8): a(f'v_pk_add_f32 v[{EE+2*p}:{EE+2*p+1}], v[{EE+2*p}:{EE+2*p+1}], s[54:55]')
            for p in range(16):
                a(f'v_rcp_f32 v{EE+p}, v{EE+p}')
                if t==0 and p%4==3: grp(lambda: ld(p//4))
                if t==1 and p in (3,9): grp(lambda: ld(6+p//9))
                if t==1 and p==15: grp(lde)
            for p in range(8): a(f'v_pk_mul_f32 v[{EE+2*p}:{EE+2*p+1}], v[{EE+2*p}:{EE+2*p+1}], v[{G+16*t+2*p}:{G+16*t+2*p+1}]')
            if t==1: a('s_waitcnt lgkmcnt(2)')
            for b in range(4):
                m=D0+4*b+2*t
                a(f'v_cvt_pk_bf16_f32 v{m}, v{EE+b}, v{EE+4+b}'); a(f'v_cvt_pk_bf16_f32 v{m+1}, v{EE+8+b}, v{EE+12+b}')
                if t==1 and b>0: a(f'v_mfma_f32_16x16x32_bf16 v[{ACC+4*b-4}:{ACC+4*b-1}], v[{SS}:{SS+3}], v[{D0+4*b-4}:{D0+4*b-1}], v[{ACC+4*b-4}:{ACC+4*b-1}]')
        a('s_sub_u32 s59, s59, 1'); a('s_sub_u32 s63, s63, 1')
        a(f'v_mfma_f32_16x16x32_bf16 v[{ACC+12}:{ACC+15}], v[{SS}:{SS+3}], v[{D0+12}:{D0+15}], v[{ACC+12}:{ACC+15}]')
        if k==2:
            for r in (3,4): a(f'v_add_u32 v{r}, 384, v{r}')
        a('s_cmp_eq_u32 s63, 0')
        if k<2: a('s_cbranch_scc1 K2_NEXT')
        else: a('s_cbranch_scc0 K2_LOOP')
    for k in range(3): body(k)
    a.label('K2_NEXT')
    a.nop(8)
    a('s_cmp_lt_u32 s62, 5'); a('s_cbranch_scc1 K2_SLOW')
    a('s_cmp_eq_u64 s[56:57], 0'); a('s_cbranch_scc1 K2_FINAL')
    a('s_mov_b32 s62, 0')
    a('s_ff1_i32_b64 s60, s[56:57]'); a('s_bitset0_b64 s[56:57], s60'); a('s_and_b32 s61, s60, 7'); a('s_lshl_b32 s61, s61, 3'); a('s_lshr_b32 s60, s60, 3'); a('s_add_u32 s60, s60, s61'); a(f's_mul_i32 s61, s60, {CE}')
    a.label('K2_SLOW')
    a('s_waitcnt vmcnt(0) lgkmcnt(0)')
    srd(a,68,10,11,E*4); srd(a,72,8,9,E*4)
    a('s_mul_i32 s64, s62, 500'); a('s_add_u32 s64, s64, s61'); a('s_lshl_b32 s65, s64, 2')
    a(f'v_lshlrev_b32 v{T}, 4, v7')
    a(f'buffer_load_dwordx4 v[{MR}:{MR+3}], v{T}, s[68:71], s65 offen'); a(f'buffer_load_dwordx4 v[{MR+4}:{MR+7}], v{T}, s[68:71], s65 offen offset:1024')
    a(f'buffer_load_dwordx4 v[{MR+8}:{MR+11}], v{T}, s[72:75], s65 offen'); a(f'buffer_load_dwordx4 v[{MR+12}:{MR+15}], v{T}, s[72:75], s65 offen offset:1024')
    a('s_mov_b32 s58, 0'); a('s_add_u32 s62, s62, 1'); a('s_mul_i32 s66, s40, 10')
    a('s_waitcnt vmcnt(0)')
    for r in range(8):
        idx=256*(r//4)+(r%4)
        a(f'v_lshlrev_b32 v{T+1}, 2, v7'); a(f'v_add_u32 v{T+1}, {idx}, v{T+1}')
        a(f'v_mov_b32 v{T+2}, 500'); a(f'v_cmp_lt_u32 s[76:77], v{T+1}, v{T+2}')
        a(f'v_subrev_u32 v{T+2}, s66, v{MR+r}'); a(f'v_cmp_gt_u32 vcc, 10, v{T+2}')
        a('s_and_b64 vcc, vcc, s[76:77]')
        a(f'v_lshlrev_b32 v{T+3}, 16, v{MR+8+r}')
        a(f'v_add_lshl_u32 v{T+4}, v{T+1}, s64, 9'); a(f'v_lshl_add_u32 v{T+4}, v{T+2}, 5, v{T+4}')
        a(f'v_mbcnt_lo_u32_b32 v{T+5}, vcc_lo, 0'); a(f'v_mbcnt_hi_u32_b32 v{T+5}, vcc_hi, v{T+5}')
        a(f'v_add_lshl_u32 v{T+5}, v{T+5}, s58, 2'); a(f'v_add_u32 v{T+5}, s48, v{T+5}')
        a('s_bcnt1_i32_b64 s67, vcc'); a('s_add_u32 s58, s58, s67')
        a('s_mov_b64 exec, vcc')
        a(f'ds_write_b32 v{T+5}, v{T+3} offset:512'); a(f'ds_write_b32 v{T+5}, v{T+4} offset:{512+ARR}')
        a('s_mov_b64 exec, -1')
    a('s_branch K2_PROC')
    a.label('K2_FINAL')
    a('s_waitcnt vmcnt(0)')
    stamp(a,6)
    a('v_lshrrev_b32 v15, 4, v7'); a('v_mul_u32_u24 v2, 1088, v15'); a('v_lshrrev_b32 v3, 2, v1'); a('v_add3_u32 v2, v2, v3, s48')
    for b in range(4):
        for i in range(4): a(f'ds_write_b32 v2, v{ACC+4*b+i} offset:{512+272*i+64*b}')
    a('v_mul_u32_u24 v4, 272, v15'); a('v_add3_u32 v4, v4, v1, s48')
    for j in range(3): a(f'ds_read_b128 v[{D0+4*j}:{D0+4*j+3}], v4 offset:{512+1088*j}')
    a('v_lshlrev_b32 v6, 8, v15'); a('v_lshrrev_b32 v3, 1, v1'); a('v_add_u32 v6, v6, v3')
    a('s_mul_i32 s44, s40, 2560'); a('s_add_u32 s44, s44, s45')
    srd_off(a,24,18,19,'s44',2560-128)
    a('s_waitcnt lgkmcnt(0)')
    for p in range(6): a(f'v_pk_mul_f32 v[{D1+2*p}:{D1+2*p+1}], v[{D0+2*p}:{D0+2*p+1}], s[52:53]')
    for i in range(12): a(f'v_exp_f32 v{D1+i}, v{D1+i}')
    for p in range(6): a(f'v_pk_add_f32 v[{D1+2*p}:{D1+2*p+1}], v[{D1+2*p}:{D1+2*p+1}], s[54:55]')
    for i in range(12): a(f'v_rcp_f32 v{D1+i}, v{D1+i}')
    for p in range(6): a(f'v_pk_mul_f32 v[{D0+2*p}:{D0+2*p+1}], v[{D0+2*p}:{D0+2*p+1}], v[{D1+2*p}:{D1+2*p+1}]')
    for p in range(6): a(f'v_cvt_pk_bf16_f32 v{EE+p}, v{D0+2*p}, v{D0+2*p+1}')
    for j in range(3): a(f'buffer_store_dwordx2 v[{EE+2*j}:{EE+2*j+1}], v6, s[24:27], 0 offen offset:{1024*j}')
    if gen1.STAMP:
        a('s_waitcnt vmcnt(0)'); stamp(a,7,True)
        a('s_lshl_b32 s79, s2, 3'); a('s_add_u32 s79, s79, s42'); stamp_out(a,8,'s79',OFF_ST,30)
    a.label('K2_END')
    a('s_endpgm')
    return a
def mk(path):
    build([('prep_kernel',k1(),CH+160*OPT['np']+OPT['np']-1,512,K1_LDS),(NAME+'_kernel',k2(),256,512,K2_LDS)],path)
if __name__=='__main__':
    for arg in sys.argv[2:]:
        if arg=='stamp': gen1.STAMP=True
        else:
            k,v=arg.split('='); OPT[k]=eval(v)
    mk(sys.argv[1])
```

```python
import sys, struct
from asmlib import Asm
import gen1
from gen1 import srd, srd_off, f2u, build, NAME, stamp, stamp_out, OFF_ST
N=10000;E=160000;NBK=1000;CH=64;CE=2500;CAP=15
THALF=N*256
OFF_META=2*THALF
WS_END=OFF_META+NBK*4096
NLOG2E=f2u(-1.4426950408889634)
TINY=f2u(2.0**-100)
OPT=dict(st='',skipq=False,pref=False,exp='',eld='',mld='',xld='',tld='',mq=2,early=True,prio=True)
NG=79
K1_LDS=81920+4096
def wimg_addrs(a,vrow,vpiece,vdst,vt):
    a(f'v_lshrrev_b32 v{vdst}, 4, v{vrow}'); a(f'v_mul_u32_u24 v{vdst}, 4736, v{vdst}')
    a(f'v_and_b32 v{vt}, 15, v{vrow}'); a(f'v_mul_u32_u24 v{vt}, 288, v{vt}'); a(f'v_add_u32 v{vdst}, v{vdst}, v{vt}')
    a(f'v_bfe_u32 v{vt}, v{vrow}, 3, 1'); a(f'v_lshl_add_u32 v{vdst}, v{vt}, 7, v{vdst}'); a(f'v_lshl_add_u32 v{vdst}, v{vpiece}, 4, v{vdst}')
def tr_addr(a,vq,vc,vdst,vt):
    a(f'v_lshrrev_b32 v{vdst}, 1, v{vq}'); a(f'v_mul_u32_u24 v{vdst}, 4736, v{vdst}')
    a(f'v_and_b32 v{vt}, 1, v{vq}'); a(f'v_mul_u32_u24 v{vt}, 2432, v{vt}'); a(f'v_add_u32 v{vdst}, v{vdst}, v{vt}')
    a(f'v_lshrrev_b32 v{vt}, 2, v{vc}'); a(f'v_mul_u32_u24 v{vt}, 288, v{vt}'); a(f'v_add_u32 v{vdst}, v{vdst}, v{vt}')
    a(f'v_and_b32 v{vt}, 3, v{vc}'); a(f'v_lshl_add_u32 v{vdst}, v{vt}, 3, v{vdst}')
def gemm_stream(a,vtr,XF,slots,dres,base=0):
    hs=[(s,mm) for s in range(4) for mm in range(2)]
    def rd(h):
        s,mm=hs[h]; sl=slots[h%len(slots)]
        for b in range(4):
            for u in range(2):
                r=sl+4*b+2*u
                a(f'ds_read_b64_tr_b16 v[{r}:{r+1}], v{vtr} offset:{base+s*9472+u*1152+mm*128+b*32}')
    rd(0)
    for h in range(8):
        if h+1<8: rd(h+1); a('s_waitcnt lgkmcnt(8)')
        else: a('s_waitcnt lgkmcnt(0)')
        s,mm=hs[h]; sl=slots[h%len(slots)]
        for b in range(4):
            d=dres(mm,b); c='0' if s==0 else f'v[{d}:{d+3}]'
            a(f'v_mfma_f32_16x16x32_bf16 v[{d}:{d+3}], v[{XF+4*s}:{XF+4*s+3}], v[{sl+4*b}:{sl+4*b+3}], {c}')
def fin(a,wpw_shift,base):
    if gen1.STAMP:
        stamp(a,5); a('s_waitcnt vmcnt(0)'); stamp(a,6); stamp(a,7,True)
        a('v_lshrrev_b32 v70, 6, v0'); a('v_readfirstlane_b32 s78, v70')
        a(f's_lshl_b32 s79, s2, {wpw_shift}'); a('s_add_u32 s79, s79, s78'); stamp_out(a,8,'s79',base,70)
def k1():
    a=Asm(); ST=OPT['st']
    stamp(a,0,True); stamp(a,1)
    a('s_load_dwordx16 s[4:19], s[0:1], 0')
    a('s_load_dwordx2 s[20:21], s[0:1], 72')
    a(f's_cmp_ge_u32 s2, {CH+160}'); a('s_cbranch_scc1 K1_END')
    a(f's_cmp_lt_u32 s2, {CH}'); a('s_cbranch_scc1 K1_SORT')
    a(f's_sub_u32 s3, s2, {CH}')
    a('s_and_b32 s40, s3, 7'); a('s_lshr_b32 s41, s3, 4'); a('s_lshl_b32 s41, s41, 3'); a('s_add_u32 s40, s40, s41')
    a('s_bfe_u32 s42, s3, 0x10003')
    a(f's_cmp_ge_u32 s40, {NG}'); a('s_cbranch_scc1 K1_END')
    a('v_and_b32 v1, 7, v0'); a('v_lshrrev_b32 v2, 3, v0')
    a('v_lshlrev_b32 v3, 8, v2'); a('v_lshl_add_u32 v3, v1, 4, v3'); a('v_add_u32 v4, 16384, v3')
    a('v_lshrrev_b32 v5, 6, v0'); a('v_readfirstlane_b32 s48, v5')
    a('v_and_b32 v6, 63, v0'); a('v_and_b32 v7, 15, v6'); a('v_lshrrev_b32 v5, 4, v6')
    a('s_lshl_b32 s49, s40, 3'); a('s_add_u32 s49, s49, s48'); a('s_lshl_b32 s50, s49, 12')
    a('v_lshlrev_b32 v24, 8, v7'); a('v_lshl_add_u32 v24, v5, 4, v24')
    a('s_lshl_b32 s45, s42, 7')
    a('s_waitcnt lgkmcnt(0)')
    srd_off(a,28,16,17,32768,32768); srd(a,32,14,15,32768); srd(a,36,4,5,N*256)
    a('buffer_load_dwordx4 v[8:11], v3, s[28:31], s45 offen'); a('buffer_load_dwordx4 v[12:15], v4, s[28:31], s45 offen')
    a('buffer_load_dwordx4 v[16:19], v3, s[32:35], s45 offen'); a('buffer_load_dwordx4 v[20:23], v4, s[32:35], s45 offen')
    XF=28
    for s in range(4): a(f'buffer_load_dwordx4 v[{XF+4*s}:{XF+4*s+3}], v24, s[36:39], s50 offen offset:{64*s}')
    if OPT['pref']:
        srd(a,60,6,7,E*32)
        a('s_mul_i32 s64, s3, 32768'); a('v_lshlrev_b32 v100, 4, v0')
        for j in range(4):
            a(f'buffer_load_dwordx4 v[{104+4*j}:{107+4*j}], v100, s[60:63], s64 offen'); a('s_add_u32 s64, s64, 8192')
    np_=4 if OPT['pref'] else 0
    wimg_addrs(a,2,1,25,26); tr_addr(a,5,7,26,27)
    a(f's_mov_b32 s52, {NLOG2E}'); a(f's_mov_b32 s53, {NLOG2E}'); a(f's_mov_b32 s57, {TINY}')
    a('s_mov_b32 s58, 0x80008000'); a('s_mov_b32 s54, 0x07060100'); a('s_mov_b32 s55, 0x07060302'); a('s_mov_b32 s59, 0x80000000')
    a(f's_mul_i32 s56, s42, {THALF}'); srd_off(a,24,20,21,'s56',THALF)
    a(f's_waitcnt vmcnt({7+np_})'); a('ds_write_b128 v25, v[8:11]')
    a(f's_waitcnt vmcnt({6+np_})'); a(f'ds_write_b128 v25, v[12:15] offset:{4*4736}')
    a(f's_waitcnt vmcnt({5+np_})'); a('ds_write_b128 v25, v[16:19] offset:128')
    a(f's_waitcnt vmcnt({4+np_})'); a(f'ds_write_b128 v25, v[20:23] offset:{4*4736+128}')
    stamp(a,2)
    a('s_waitcnt lgkmcnt(0)'); a('s_barrier')
    a(f's_waitcnt vmcnt({np_})')
    stamp(a,3)
    D0=44
    dd=lambda mm,b: D0+(mm*4+b)*4
    gemm_stream(a,26,XF,[76,8],dd) if False else gemm_stream(a,26,XF,[76,92],dd)
    stamp(a,4)
    a('v_lshlrev_b32 v9, 10, v5'); a('v_lshl_add_u32 v9, v7, 4, v9')
    for b in range(4):
        d=dd(0,b)
        a(f'v_pk_mul_f32 v[{d}:{d+1}], v[{d}:{d+1}], s[52:53]'); a(f'v_pk_mul_f32 v[{d+2}:{d+3}], v[{d+2}:{d+3}], s[52:53]')
    for i in range(4):
        o=12+(i%2)*12
        for bp in range(2):
            a(f'v_cvt_pk_bf16_f32 v{o+4+bp}, v{dd(0,2*bp)+i}, v{dd(0,2*bp+1)+i}')
        for b in range(4): a(f'v_max_f32 v{o+8+b}, |v{dd(1,b)+i}|, s57')
        for bp in range(2): a(f'v_xor_b32 v{o+6+bp}, s58, v{o+4+bp}')
        for b in range(4):
            a(f'v_sub_u32_sdwa v{o+8+b}, v{o+8+b}, sext(v{o+6+b//2}) dst_sel:DWORD dst_unused:UNUSED_PAD src0_sel:DWORD src1_sel:WORD_{b%2}')
        for b in range(4): a(f'v_perm_b32 v{o+b}, v{o+8+b}, v{o+4+b//2}, s{54+b%2}')
        for b in range(4): a(f'v_and_or_b32 v{o+b}, v{dd(1,b)+i}, s59, v{o+b}')
        a(f'buffer_store_dwordx4 v[{o}:{o+3}], v9, s[24:27], s50 offen offset:{256*i} {ST}')
    fin(a,3,OFF_ST+(1<<20))
    a('s_endpgm')
    a.label('K1_SORT')
    a(f's_mul_i32 s40, s2, {CE*4}')
    a('v_mul_u32_u24 v1, 20, v0')
    a('v_mov_b32 v20, 0'); a('v_mov_b32 v21, 0'); a('v_lshlrev_b32 v2, 3, v0')
    a('ds_write_b64 v2, v[20:21] offset:0')
    a('s_waitcnt lgkmcnt(0)')
    srd(a,28,10,11,E*4); srd(a,32,8,9,E*4); srd(a,24,20,21,WS_END)
    a('buffer_load_dwordx4 v[8:11], v1, s[28:31], s40 offen'); a('buffer_load_dword v12, v1, s[28:31], s40 offen offset:16')
    a('buffer_load_dwordx4 v[14:17], v1, s[32:35], s40 offen'); a('buffer_load_dword v18, v1, s[32:35], s40 offen offset:16')
    a('v_mov_b32 v3, 1'); a('v_mul_u32_u24 v4, 80, v0')
    a('s_barrier')
    a(f'v_cmp_gt_u32 vcc, {CE//5}, v0'); a('s_and_saveexec_b64 s[42:43], vcc')
    stamp(a,2)
    a('s_waitcnt vmcnt(2)')
    stamp(a,3)
    for j in range(5):
        a(f'v_mul_u32_u24 v{24+j}, 52429, v{8+j}'); a(f'v_lshrrev_b32 v{24+j}, 19, v{24+j}')
        a(f'v_lshlrev_b32 v{30+j}, 2, v{24+j}')
        a(f'ds_add_rtn_u32 v{36+j}, v{30+j}, v3')
    a('s_waitcnt vmcnt(0)')
    for j in range(5):
        a(f'v_mul_u32_u24 v{30+j}, 10, v{24+j}'); a(f'v_sub_u32 v{8+j}, v{8+j}, v{30+j}')
        a(f'v_lshl_or_b32 v{8+j}, v{14+j}, 16, v{8+j}')
        a(f'v_add3_u32 v{8+j}, v{8+j}, v4, {16*j}')
        a(f'v_mul_u32_u24 v{24+j}, 80, v{24+j}')
    for j in range(5):
        a(f's_waitcnt lgkmcnt({4})' if j>0 else 's_waitcnt lgkmcnt(4)')
        a(f'v_min_u32 v{36+j}, {CAP-1}, v{36+j}'); a(f'v_lshl_add_u32 v{36+j}, v{36+j}, 2, v{24+j}')
        a(f'ds_write_b32 v{36+j}, v{8+j} offset:{4096+4}')
    a('s_mov_b64 exec, s[42:43]')
    a('v_mul_u32_u24 v1, 80, v0'); a('v_lshlrev_b32 v6, 2, v0'); a('v_lshlrev_b32 v7, 12, v0')
    a('s_and_b32 s44, s2, 7'); a('s_lshl_b32 s44, s44, 3'); a('s_lshr_b32 s45, s2, 3'); a('s_add_u32 s44, s44, s45')
    a('s_lshl_b32 s44, s44, 4'); a(f's_add_u32 s44, s44, {OFF_META}'); a(f's_add_u32 s45, s44, {512*4096}')
    a('s_waitcnt lgkmcnt(0)'); a('s_barrier')
    stamp(a,4)
    for h in range(2):
        a(f'ds_read_b32 v{60+h}, v6 offset:{2048*h}')
        for q in range(2): a(f'ds_read_b128 v[{40+8*h+4*q}:{43+8*h+4*q}], v1 offset:{4096+40960*h+16*q}')
    for h in range(2):
        a(f's_waitcnt lgkmcnt({3-3*h})')
        a(f'v_mov_b32 v{40+8*h}, v{60+h}')
        a(f'v_cmp_lt_u32 vcc, 3, v{60+h}')
        a(f'buffer_store_dwordx4 v[{40+8*h}:{43+8*h}], v7, s[24:27], s{44+h} offen {ST}')
        a('s_mov_b64 exec, vcc')
        a(f'buffer_store_dwordx4 v[{44+8*h}:{47+8*h}], v7, s[24:27], s{44+h} offen offset:1024 {ST}')
        a('s_mov_b64 exec, -1')
    for h in range(2):
        a(f'v_cmp_lt_u32 vcc, 7, v{60+h}'); a('s_and_saveexec_b64 s[42:43], vcc'); a(f's_cbranch_execz K1_SK{h}')
        for q in range(2,4): a(f'ds_read_b128 v[{16+8*h+4*q}:{19+8*h+4*q}], v1 offset:{4096+40960*h+16*q}')
        a('s_waitcnt lgkmcnt(0)')
        for q in range(2,4): a(f'buffer_store_dwordx4 v[{16+8*h+4*q}:{19+8*h+4*q}], v7, s[24:27], s{44+h} offen offset:{1024*q} {ST}')
        a.label(f'K1_SK{h}')
        a('s_mov_b64 exec, s[42:43]')
    fin(a,3,OFF_ST+(1<<20))
    a.label('K1_END')
    a('s_endpgm')
    return a

LCAP=1088; ARR=LCAP*4
EB=512+2*ARR
WREG=EB+3072
XIMG=8*WREG; WIMG=XIMG+96*256; CIMG=WIMG+8*4736
INFO=CIMG+16*160
K2_LDS=INFO+128
NL=9
def k2():
    a=Asm()
    stamp(a,0,True); stamp(a,1)
    a('s_load_dwordx16 s[4:19], s[0:1], 0')
    a('s_load_dwordx2 s[20:21], s[0:1], 72')
    if OPT.get('dbg'): a('s_memrealtime s[90:91]'); a('s_load_dwordx2 s[22:23], s[0:1], 64')
    if OPT['prio']==2: a('s_setprio 3')
    a('s_lshr_b32 s40, s2, 3'); a('s_lshl_b32 s40, s40, 2'); a('s_and_b32 s41, s2, 3'); a('s_add_u32 s40, s40, s41')
    a('s_bfe_u32 s41, s2, 0x10002')
    a(f's_cmp_ge_u32 s40, {NBK//8}'); a('s_cbranch_scc1 K2_END')
    a('v_lshrrev_b32 v7, 6, v0'); a('v_readfirstlane_b32 s42, v7')
    a('v_and_b32 v7, 63, v0')
    a('s_mul_i32 s46, s40, 80')
    a('s_lshl_b32 s40, s40, 3'); a('s_add_u32 s40, s40, s42')
    BO=16; ACC=32; SS=48; D0=56; D1=72; EE=88; AF=104; XF=104; XR=120; BUF=[136,168,200]; MR=136; X=232
    a(f's_lshl_b32 s43, s40, 12'); a(f's_add_u32 s43, s43, {OFF_META}')
    a('v_lshlrev_b32 v15, 4, v7')
    a('v_and_b32 v52, 7, v0'); a('v_lshrrev_b32 v53, 3, v0')
    a('v_lshlrev_b32 v54, 8, v53'); a('v_lshl_add_u32 v54, v52, 4, v54')
    a('v_and_b32 v1, 15, v7'); a('v_lshrrev_b32 v55, 4, v7')
    a('s_mul_i32 s47, s42, 12'); a('s_add_u32 s46, s46, s47')
    a(f'v_lshlrev_b32 v{X+3}, 2, v55'); a(f'v_xor_b32 v{X+3}, v{X+3}, v1'); a(f'v_lshlrev_b32 v{X+3}, 4, v{X+3}')
    for j in range(3):
        a(f'v_add3_u32 v{X+j}, v55, s46, {4*j}'); a(f'v_min_u32 v{X+j}, {N-1}, v{X+j}'); a(f'v_lshl_add_u32 v{X+j}, v{X+j}, 8, v{X+3}')
    a('s_lshl_b32 s45, s41, 7')
    a(f's_mul_i32 s48, s42, {WREG}')
    a(f's_mul_i32 s36, s42, 3072'); a(f's_add_u32 s36, s36, {XIMG}')
    a('s_waitcnt lgkmcnt(0)')
    srd(a,24,20,21,WS_END)
    MQ=OPT['mq']
    for j in range(MQ): a(f'buffer_load_dwordx4 v[{MR+4*j}:{MR+4*j+3}], v15, s[24:27], s43 offen offset:{1024*j} {OPT["mld"]}')
    srd(a,64,16,17,272*256); srd(a,68,12,13,32768); srd(a,72,4,5,N*256)
    a(f's_mul_i32 s46, s41, {THALF}'); srd_off(a,28,20,21,'s46',THALF)
    a('s_mov_b32 s32, s6'); a('s_and_b32 s33, s7, 0xffff'); a('s_or_b32 s33, s33, 0x200000'); a(f's_mov_b32 s34, {E}'); a('s_mov_b32 s35, 0x20000')
    a('v_lshrrev_b32 v4, 2, v7'); a('v_and_b32 v6, 3, v7'); a('v_lshlrev_b32 v5, 2, v6'); a('v_sub_u32 v5, v4, v5')
    a('v_lshlrev_b32 v2, 4, v5'); a('v_mov_b32 v8, 0x3f80'); a('v_mov_b32 v9, 0'); a('v_lshlrev_b64 v[8:9], v2, v[8:9]')
    a('v_cmp_gt_u32 vcc, 4, v5'); a('v_cndmask_b32 v8, 0, v8, vcc'); a('v_cndmask_b32 v9, 0, v9, vcc')
    a('v_lshl_add_u32 v2, v7, 3, s48'); a('ds_write_b64 v2, v[8:9]')
    a('s_cmp_ge_u32 s42, 2'); a('s_cbranch_scc1 K2_NOC0')
    a('s_add_u32 s47, s45, 65536')
    a(f'buffer_load_dwordx4 v[{EE}:{EE+3}], v54, s[64:67], s47 offen')
    a.label('K2_NOC0')
    a('s_add_u32 s47, s45, 16384'); a('s_mov_b32 m0, s36')
    for j in range(2):
        a(f'buffer_load_dwordx4 v[{D0+8*j}:{D0+8*j+3}], v54, s[64:67], s{45+2*j} offen')
        a(f'buffer_load_dwordx4 v[{D0+8*j+4}:{D0+8*j+7}], v54, s[68:71], s{45+2*j} offen')
    for j in range(3):
        a(f'buffer_load_dwordx4 v{X+j}, s[72:75], 0 offen {OPT["xld"]} lds')
        if j<2: a('s_add_u32 m0, m0, 1024'); a('s_nop 0')
    if OPT.get('ns'):
        a('s_lshr_b32 s76, s2, 3'); a('s_lshl_b32 s76, s76, 3'); a('s_add_u32 s76, s76, s42'); a('s_mul_i32 s76, s76, 10240'); a('s_add_u32 s76, s76, s46')
        a('s_add_u32 s76, s20, s76'); a('s_addc_u32 s77, s21, 0')
        for j in range(OPT['ns']): a(f's_load_dword s22, s[76:77], {128*j}')
    a('v_lshl_add_u32 v12, v55, 4, s48'); a('v_add_u32 v12, 512, v12')
    a('v_lshl_add_u32 v13, v1, 2, s48'); a(f'v_add_u32 v13, {512+ARR}, v13')
    a('v_lshl_add_u32 v14, v4, 2, s48'); a(f'v_add_u32 v14, {512+ARR}, v14')
    a('v_lshl_add_u32 v5, v55, 3, s48')
    a(f'v_lshl_add_u32 v11, v1, 5, v5')
    a('v_lshl_add_u32 v6, v6, 3, s48')
    a('v_and_b32 v9, 1, v7'); a('v_lshlrev_b32 v9, 4, v9')
    wimg_addrs(a,53,52,54,15)
    a('v_mul_u32_u24 v53, 160, v53'); a('v_lshl_add_u32 v53, v52, 4, v53')
    tr_addr(a,55,1,52,15)
    a('s_mul_i32 s47, s42, 10'); a(f'v_add_u32 v{X+4}, s47, v1'); a(f'v_and_b32 v15, 3, v{X+4}')
    a(f'v_lshlrev_b32 v{X+4}, 8, v{X+4}'); a(f'v_lshl_add_u32 v{X+4}, v15, 6, v{X+4}'); a(f'v_lshl_add_u32 v{X+4}, v55, 4, v{X+4}'); a(f'v_add_u32 v{X+4}, {XIMG}, v{X+4}')
    for s in range(1,4): a(f'v_xor_b32 v{X+4+s}, {64*s}, v{X+4}')
    a('v_mul_u32_u24 v55, 160, v4'); a('v_and_b32 v15, 3, v7'); a('v_lshl_add_u32 v55, v15, 3, v55')
    a(f'v_add_u32 v53, {CIMG}, v53'); a(f'v_add_u32 v55, {CIMG}, v55'); a(f'v_add_u32 v52, {WIMG}, v52'); a(f'v_add_u32 v54, {WIMG}, v54')
    a('v_lshrrev_b32 v15, 1, v7'); a('v_lshl_add_u32 v15, v15, 2, s48'); a(f'v_add_u32 v15, {512+ARR}, v15')
    a('v_lshlrev_b32 v1, 4, v1')
    a(f'v_and_b32 v{XR}, 7, v7'); a(f'v_lshrrev_b32 v{XR+1}, 3, v7'); a(f'v_lshl_add_u32 v{XR}, v{XR}, 3, v{XR+1}')
    a(f'v_mul_u32_u24 v{XR}, {CE*512}, v{XR}')
    a(f's_mov_b32 s53, {NLOG2E}'); a(f's_mov_b32 s52, {NLOG2E}'); a('s_mov_b32 s54, 1.0'); a('s_mov_b32 s55, 1.0'); a('s_mov_b32 s62, 5')
    if 'g' in OPT['exp']: a('s_and_b32 s78, s2, 3'); a('s_mul_i32 s78, s78, 40000')
    if OPT.get('sel'):
        a('v_and_b32 v241, 15, v7'); a('v_lshrrev_b32 v242, 4, v7'); a('v_lshlrev_b32 v242, 2, v242'); a('v_xor_b32 v245, v241, v242')
        for i in (0,2,3,1):
            c=240+4*i
            a(f'v_lshrrev_b32_e64 v{c}, v245, {1<<i}'); a(f'v_and_b32 v{c}, 1, v{c}'); a(f'v_mul_u32_u24 v{c}, 0x3f80, v{c}')
            a(f'v_mov_b32 v{c+3}, v{c}'); a(f'v_mov_b32 v{c+1}, 0'); a(f'v_mov_b32 v{c+2}, 0')
    a('s_mov_b32 s50, 0x0c070600'); a('s_mov_b32 s51, 0x1e0'); a('s_mov_b32 s49, 0')
    for k in range(3): a(f's_add_u32 s{36+k}, s48, {EB+1024*k}')
    a('s_waitcnt vmcnt(7)')
    stamp(a,2)
    T=152
    a(f'v_cmp_lt_u32 s[56:57], {CAP}, v{MR}')
    a(f'v_cndmask_b32 v{MR}, v{MR}, 0, s[56:57]')
    a(f'v_mov_b32 v{T}, v{MR}')
    for sh in (1,2,4,8): a(f'v_add_u32_dpp v{T}, v{T}, v{T} row_shr:{sh} row_mask:0xf bank_mask:0xf bound_ctrl:0')
    a(f'v_add_u32_dpp v{T}, v{T}, v{T} row_bcast:15 row_mask:0xa bank_mask:0xf')
    a(f'v_add_u32_dpp v{T}, v{T}, v{T} row_bcast:31 row_mask:0xc bank_mask:0xf')
    a(f'v_readlane_b32 s58, v{T}, 63')
    a(f'v_sub_u32 v{T}, v{T}, v{MR}'); a(f'v_lshl_add_u32 v{T}, v{T}, 2, s48')
    for s in range(CAP):
        a(f'v_cmpx_lt_u32 vcc, {s}, v{MR}')
        if s>=4: a('s_cbranch_execz K2_CDONE')
        if MQ<4 and s==4*MQ-1:
            a(f'v_lshlrev_b32 v{T+3}, 4, v7')
            for j in range(MQ,4): a(f'buffer_load_dwordx4 v[{MR+4*j}:{MR+4*j+3}], v{T+3}, s[24:27], s43 offen offset:{1024*j}')
            a('s_waitcnt vmcnt(0)')
        a(f'v_mad_u32_u16 v{T+1+s%2}, v{MR+1+s}, 32, v{XR}')
        a(f'ds_write_b32 v{T}, v{MR+1+s} offset:{512+4*s}'); a(f'ds_write_b32 v{T}, v{T+1+s%2} offset:{512+ARR+4*s}')
    a.label('K2_CDONE')
    a('s_mov_b64 exec, -1')
    a.label('K2_PROC')
    a(f'v_add_lshl_u32 v{T}, v7, s58, 2'); a(f'v_add_u32 v{T}, s48, v{T}'); a(f'v_mov_b32 v{T+1}, 0'); a(f'v_mov_b32 v{T+2}, 0x1e0')
    for j in range(2):
        a(f'ds_write_b32 v{T}, v{T+1} offset:{512+256*j}'); a(f'ds_write_b32 v{T}, v{T+2} offset:{512+ARR+256*j}')
    a('s_add_u32 s63, s58, 31'); a('s_lshr_b32 s63, s63, 5')
    a('s_max_u32 s59, s63, 2'); a('s_add_u32 s23, s58, 31'); a('s_and_b32 s23, s23, 16')
    a('v_mov_b32 v2, v12'); a('v_mov_b32 v3, v13'); a('v_mov_b32 v4, v14'); a('v_mov_b32 v10, v15')
    def issue(k,W=XR,part=None):
        G=BUF[k]; P=OPT.get('pre',0)
        if part!=1:
            a(f'ds_read_b32 v8, v10 offset:{128*k}')
            a(f'ds_read_b128 v[{W}:{W+3}], v2 offset:{128*k}'); a(f'ds_read_b128 v[{W+4}:{W+7}], v2 offset:{128*k+64}')
            a(f's_mov_b32 m0, s{36+k}')
            a('s_waitcnt lgkmcnt(2)')
            a(f'v_lshrrev_b32 v8, 9, v8')
            if 'g' in OPT['exp']: a('v_lshrrev_b32 v8, 2, v8'); a('v_add_u32 v8, s78, v8')
            if 'e' in OPT['exp']: a('v_and_b32 v8, 63, v8')
            a(f'buffer_load_dwordx4 v[8:9], s[32:35], 0 idxen offen {OPT["eld"]} lds')
            a('s_waitcnt lgkmcnt(0)')
        for i in (range(8) if part is None else range(P) if part==0 else range(P,8)):
            a(f'v_perm_b32 v{W+i}, v{W+i}, v1, s50')
            if 't' in OPT['exp']: a(f'v_and_b32 v{W+i}, 0x3fff, v{W+i}')
            a(f'buffer_load_dwordx4 v[{G+4*i}:{G+4*i+3}], v{W+i}, s[28:31], 0 offen {OPT["tld"]}')
    def compute(k):
        G=BUF[k]; A=AF; DD=[D0,D1]
        a(f'ds_read2_b32 v[{SS+4}:{SS+5}], v3 offset0:{32*k} offset1:{32*k+16}')
        a(f'ds_read2_b32 v[{SS+6}:{SS+7}], v4 offset0:{32*k} offset1:{32*k+16}')
        for t in range(2): a(f'ds_read_b64 v[{A+4*t}:{A+4*t+1}], v11 offset:{EB+1024*k+512*t}')
        for t in range(2):
            for b in range(4):
                for i in range(4): a(f'v_lshlrev_b32 v{DD[t]+4*b+i}, 16, v{G+16*t+4*i+b}')
            if t==0:
                a('s_waitcnt lgkmcnt(2)')
                for u in range(2): a(f'v_and_or_b32 v{SS+4+u}, v{SS+4+u}, s51, v5')
                for u in range(2): a(f'ds_read_b64 v[{A+4*u+2}:{A+4*u+3}], v{SS+4+u}')
                for u in range(2): a(f'v_and_or_b32 v{SS+6+u}, v{SS+6+u}, s51, v6')
                for u in range(2): a(f'ds_read_b64_tr_b16 v[{SS+2*u}:{SS+2*u+1}], v{SS+6+u}')
        a('s_waitcnt lgkmcnt(2)')
        for t in range(2):
            for b in range(4):
                d=DD[t]+4*b
                a(f'v_mfma_f32_16x16x32_bf16 v[{d}:{d+3}], v[{A+4*t}:{A+4*t+3}], v[{BO+4*b}:{BO+4*b+3}], v[{d}:{d+3}]')
        for t in range(2):
            for b in range(4):
                for i in range(4): a(f'v_exp_f32 v{EE+4*i+b}, v{DD[t]+4*b+i}')
            for p in range(8): a(f'v_pk_add_f32 v[{EE+2*p}:{EE+2*p+1}], v[{EE+2*p}:{EE+2*p+1}], s[54:55]')
            for p in range(16): a(f'v_rcp_f32 v{EE+p}, v{EE+p}')
            for p in range(8): a(f'v_pk_mul_f32 v[{EE+2*p}:{EE+2*p+1}], v[{EE+2*p}:{EE+2*p+1}], v[{G+16*t+2*p}:{G+16*t+2*p+1}]')
            for b in range(4):
                m=D0+4*b+2*t
                a(f'v_cvt_pk_bf16_f32 v{m}, v{EE+b}, v{EE+4+b}'); a(f'v_cvt_pk_bf16_f32 v{m+1}, v{EE+8+b}, v{EE+12+b}')
        a('s_waitcnt lgkmcnt(0)')
        for b in range(4):
            a(f'v_mfma_f32_16x16x32_bf16 v[{ACC+4*b}:{ACC+4*b+3}], v[{SS}:{SS+3}], v[{D0+4*b}:{D0+4*b+3}], v[{ACC+4*b}:{ACC+4*b+3}]')
    PRE='pre' in OPT
    BAL=OPT.get('bal')
    if BAL:
        a('s_cmp_lg_u32 s49, 0'); a('s_cbranch_scc1 K2_P0')
        a(f'v_mov_b32 v{T}, s58'); a(f'v_mov_b32 v{T+1}, s56'); a(f'v_mov_b32 v{T+2}, s57'); a(f'v_mov_b32 v{T+3}, 0')
        a('s_lshl_b32 s47, s42, 4'); a(f's_add_u32 s47, s47, {INFO}'); a(f'v_mov_b32 v{T+4}, s47')
        a(f'ds_write_b128 v{T+4}, v[{T}:{T+3}]')
        a('s_cmp_lt_u32 s42, 4'); a('s_cbranch_scc1 K2_P0')
        a('s_waitcnt vmcnt(0)'); a('s_branch K2_P1')
        a.label('K2_P0')
    if PRE: issue(0,part=0)
    a('s_cmp_lg_u32 s49, 0'); a('s_cbranch_scc1 K2_I1')
    a.label('K2_P1')
    stamp(a,3)
    a(f's_waitcnt vmcnt({OPT["pre"]+1 if PRE else 0})')
    for j in range(2):
        a(f'ds_write_b128 v54, v[{D0+8*j}:{D0+8*j+3}] offset:{18944*j}'); a(f'ds_write_b128 v54, v[{D0+8*j+4}:{D0+8*j+7}] offset:{18944*j+128}')
    a('s_cmp_ge_u32 s42, 2'); a('s_cbranch_scc1 K2_NOC')
    a(f'ds_write_b128 v53, v[{EE}:{EE+3}]')
    a.label('K2_NOC')
    a('s_waitcnt lgkmcnt(0)'); a('s_barrier')
    stamp(a,4)
    if BAL:
        a('s_cmp_lt_u32 s42, 4'); a('s_cbranch_scc1 K2_I1')
        a(f'v_and_b32 v{T+4}, 7, v7'); a(f'v_lshlrev_b32 v{T+5}, 4, v{T+4}'); a(f'v_add_u32 v{T+5}, {INFO}, v{T+5}')
        a(f'ds_read_b128 v[{T}:{T+3}], v{T+5}'); a('s_waitcnt lgkmcnt(0)')
        a(f'v_lshl_add_u32 v{T+4}, v{T}, 3, v{T+4}')
        for qp in ('[1,2,3,0]','[2,3,0,1]','[3,0,1,2]'):
            a(f'v_mov_b32_dpp v{T+5}, v{T+4} quad_perm:{qp} row_mask:0xf bank_mask:0xf')
            a(f'v_cmp_lt_u32 vcc, v{T+5}, v{T+4}'); a(f'v_addc_co_u32 v{T+3}, vcc, 0, v{T+3}, vcc')
        a('s_sub_u32 s47, s42, 4'); a(f'v_readlane_b32 s60, v{T+3}, s47'); a('s_sub_u32 s60, 3, s60')
        a(f'v_cmp_eq_u32 vcc, s60, v{T+3}'); a('s_and_b32 s60, vcc_lo, 0xf0'); a('s_ff1_i32_b32 s60, s60')
        a(f'v_readlane_b32 s58, v{T}, s60'); a(f'v_readlane_b32 s56, v{T+1}, s60'); a(f'v_readlane_b32 s57, v{T+2}, s60')
        a('s_sub_i32 s61, s60, s42'); a('s_add_i32 s40, s40, s61'); a(f's_mul_i32 s61, s61, {WREG}')
        for r in (36,37,38,48): a(f's_add_i32 s{r}, s{r}, s61')
        for r in (2,3,4,5,6,10,11,12,13,14,15): a(f'v_add_u32 v{r}, s61, v{r}')
        a('s_add_u32 s63, s58, 31'); a('s_lshr_b32 s63, s63, 5'); a('s_max_u32 s59, s63, 2'); a('s_add_u32 s23, s58, 31'); a('s_and_b32 s23, s23, 16')
        a('s_mul_i32 s47, s60, 10'); a(f'v_lshrrev_b32 v{T}, 4, v1'); a(f'v_add_u32 v{X+4}, s47, v{T}'); a(f'v_and_b32 v{T}, 3, v{X+4}')
        a(f'v_lshlrev_b32 v{X+4}, 8, v{X+4}'); a(f'v_lshl_add_u32 v{X+4}, v{T}, 6, v{X+4}'); a(f'v_and_b32 v{T}, 48, v7')
        a(f'v_add_u32 v{T}, {XIMG}, v{T}'); a(f'v_add_u32 v{X+4}, v{T}, v{X+4}')
        for s in range(1,4): a(f'v_xor_b32 v{X+4+s}, {64*s}, v{X+4}')
        issue(0,part=0)
    a.label('K2_I1')
    issue(0,part=1 if PRE else None)
    a('s_cmp_lg_u32 s49, 0'); a('s_cbranch_scc1 K2_I2')
    a('s_mov_b32 s49, 1')
    for s in range(4): a(f'ds_read_b128 v[{XF+4*s}:{XF+4*s+3}], v{X+4+s}')
    for b in range(4): a(f'ds_read_b64_tr_b16 v[{EE+2*b}:{EE+2*b+1}], v55 offset:{32*b}')
    gemm_stream(a,52,XF,[D0,D1],lambda mm,b:(XR if mm==0 else ACC)+4*b)
    for b in range(4):
        for p in range(2):
            r=EE+2*b+p
            a(f'v_lshlrev_b32 v{EE+8}, 16, v{r}'); a(f'v_and_b32 v{EE+9}, 0xffff0000, v{r}')
            a(f'v_pk_mul_f32 v[{EE+8}:{EE+9}], v[{EE+8}:{EE+9}], s[52:53]')
            a(f'v_cvt_pk_bf16_f32 v{BO+4*b+p}, v{EE+8}, v{EE+9}')
    for b in range(4):
        for p in range(2):
            r=XR+4*b+2*p
            a(f'v_pk_mul_f32 v[{r}:{r+1}], v[{r}:{r+1}], s[52:53]')
            a(f'v_cvt_pk_bf16_f32 v{BO+4*b+2+p}, v{r}, v{r+1}')
    a.settle()
    a.label('K2_I2')
    FB=OPT.get('fb',0)
    if not FB: issue(1)
    a(f'ds_read2_b32 v[{SS+4}:{SS+5}], v3 offset0:0 offset1:16'); a('s_waitcnt lgkmcnt(0)')
    for u in range(2): a(f'v_and_or_b32 v{SS+4+u}, v{SS+4+u}, s51, v5')
    for u in range(2): a(f'ds_read_b64 v[{AF+4*u+2}:{AF+4*u+3}], v{SS+4+u}')
    stamp(a,5)
    a('s_cmp_eq_u32 s63, 0'); a('s_cbranch_scc1 K2_NEXT')
    def body(k,u=0,last=True,first=False):
        G=BUF[k]; A=AF; DD=[D0,D1]; kn=1 if first else (k+2)%3; GN=BUF[kn]; W=XR
        skip=[0]
        def grp(f):
            l=f'K2_S{k}_{u}_{skip[0]}'; skip[0]+=1
            a(f's_cbranch_scc1 {l}'); f(); a.label(l)
        def ld(i):
            a(f'v_perm_b32 v{W+i}, v{W+i}, v1, s50')
            if 't' in OPT['exp']: a(f'v_and_b32 v{W+i}, 0x3fff, v{W+i}')
            a(f'buffer_load_dwordx4 v[{GN+4*i}:{GN+4*i+3}], v{W+i}, s[28:31], 0 offen {OPT["tld"]}')
        def lde():
            a('v_lshrrev_b32 v8, 9, v8')
            if 'g' in OPT['exp']: a('v_lshrrev_b32 v8, 2, v8'); a('v_add_u32 v8, s78, v8')
            if 'e' in OPT['exp']: a('v_and_b32 v8, 63, v8')
            a(f'buffer_load_dwordx4 v[8:9], s[32:35], 0 idxen offen {OPT["eld"]} lds')
        shl=lambda t,b:[a(f'v_lshlrev_b32 v{DD[t]+4*b+i}, 16, v{G+16*t+4*i+b}') for i in range(4)]
        mf=lambda t,b:a(f'v_mfma_f32_16x16x32_bf16 v[{DD[t]+4*b}:{DD[t]+4*b+3}], v[{A+4*t}:{A+4*t+3}], v[{BO+4*b}:{BO+4*b+3}], v[{DD[t]+4*b}:{DD[t]+4*b+3}]')
        ex=lambda t,b:[a(f'v_exp_f32 v{EE+4*i+b}, v{DD[t]+4*b+i}') for i in range(4)]
        if first: a('s_waitcnt vmcnt(0)')
        elif k==0 and u==0: a.label('K2_LOOP')
        elif k==1 and u==0: a.label('K2_B1')
        if OPT['prio'] and not first:
            if OPT['prio']==1: a('s_setprio 3'); a('s_cmp_ge_u32 s63, 4'); a(f's_cbranch_scc1 K2_W10_{k}_{u}')
            a('s_setprio 2'); a('s_cmp_ge_u32 s63, 3'); a(f's_cbranch_scc1 K2_W10_{k}_{u}')
            a('s_setprio 1')
        if not first:
            a(f's_cmp_ge_u32 s{63 if FB else 59}, 2'); a(f's_cbranch_scc1 K2_W10_{k}_{u}')
            if OPT['prio']: a('s_setprio 0')
            a('s_waitcnt vmcnt(0)')
            if OPT.get('half'): a('s_cmp_eq_u32 s23, 0'); a(f's_cbranch_scc1 K2_H{k}')
            a.label(f'K2_W10_{k}_{u}')
            a(f's_waitcnt vmcnt({NL})')
        for t in range(2): a(f'ds_read_b64 v[{A+4*t}:{A+4*t+1}], v11 offset:{EB+1024*k+512*t}')
        if k==1: a('v_add_u32 v2, 384, v2'); a('v_add_u32 v10, 384, v10')
        a(f'ds_read2_b32 v[{SS+6}:{SS+7}], v4 offset0:{32*k} offset1:{32*k+16}')
        a(f'ds_read2_b32 v[{SS+4}:{SS+5}], v3 offset0:{32*k+32} offset1:{32*k+48}')
        a(f'ds_read_b128 v[{W}:{W+3}], v2 offset:{128*kn}'); a(f'ds_read_b128 v[{W+4}:{W+7}], v2 offset:{128*kn+64}')
        a(f'ds_read_b32 v8, v10 offset:{128*kn}')
        a(f's_mov_b32 m0, s{36+kn}')
        a(f's_cmp_lt_u32 s63, {2 if first else 3}')
        SEL=OPT.get('sel')
        def sl(t,i,b,z=False):
            d=DD[t]+4*b; c=240+4*i+2*(b&1); g=G+16*t+4*i+2*(b>>1)
            a(f'v_mfma_f32_16x16x16_bf16 v[{d}:{d+3}], v[{c}:{c+1}], v[{g}:{g+1}], {"0" if z else f"v[{d}:{d+3}]"}')
        if SEL==2:
            for b in range(4):
                sl(1,0,b,True); a(f'v_lshlrev_b32 v{D0+4*b}, 16, v{G+b}'); a(f'v_lshlrev_b32 v{D0+4*b+1}, 16, v{G+4+b}')
            for b in range(4):
                sl(1,1,b); a(f'v_lshlrev_b32 v{D0+4*b+2}, 16, v{G+8+b}'); a(f'v_lshlrev_b32 v{D0+4*b+3}, 16, v{G+12+b}')
        else:
            for b in range(4): shl(0,b)
        if not SEL: shl(1,0)
        a('s_waitcnt lgkmcnt(5)')
        for b in range(4):
            mf(0,b)
            if b<3 and not SEL: shl(1,b+1)
        if SEL==1:
            for b in range(4): sl(1,0,b,True)
        a('s_waitcnt lgkmcnt(3)')
        for uu in range(2): a(f'v_and_or_b32 v{SS+6+uu}, v{SS+6+uu}, s51, v6')
        for uu in range(2): a(f'v_and_or_b32 v{SS+4+uu}, v{SS+4+uu}, s51, v5')
        for b in range(4):
            if SEL==1:
                for i in range(4):
                    (sl(1,b+1,i) if b<3 else mf(1,i)); a(f'v_exp_f32 v{EE+4*i+b}, v{D0+4*b+i}')
            elif SEL==2:
                for i in range(4):
                    if b<3: (sl(1,b+2,i) if b<2 else mf(1,i))
                    a(f'v_exp_f32 v{EE+4*i+b}, v{D0+4*b+i}')
            else: mf(1,b); ex(0,b)
        for uu in range(2): a(f'ds_read_b64_tr_b16 v[{SS+2*uu}:{SS+2*uu+1}], v{SS+6+uu}')
        for uu in range(2): a(f'ds_read_b64 v[{A+4*uu+2}:{A+4*uu+3}], v{SS+4+uu}')
        a('s_waitcnt lgkmcnt(4)')
        for t in range(2):
            if t==1:
                for b in range(4):
                    ex(1,b)
                    if b%2==1: grp(lambda: ld(4+b//2))
            for p in range(8): a(f'v_pk_add_f32 v[{EE+2*p}:{EE+2*p+1}], v[{EE+2*p}:{EE+2*p+1}], s[54:55]')
            for p in range(16):
                a(f'v_rcp_f32 v{EE+p}, v{EE+p}')
                if t==0 and p==0 and OPT.get('ef'): grp(lde)
                if t==0 and p%4==3: grp(lambda: ld(p//4))
                if t==1 and p in (3,9): grp(lambda: ld(6+p//9))
                if t==1 and p==15 and not OPT.get('ef'): grp(lde)
            for p in range(8): a(f'v_pk_mul_f32 v[{EE+2*p}:{EE+2*p+1}], v[{EE+2*p}:{EE+2*p+1}], v[{G+16*t+2*p}:{G+16*t+2*p+1}]')
            if t==1: a('s_waitcnt lgkmcnt(2)')
            for b in range(4):
                m=D0+4*b+2*t
                a(f'v_cvt_pk_bf16_f32 v{m}, v{EE+b}, v{EE+4+b}'); a(f'v_cvt_pk_bf16_f32 v{m+1}, v{EE+8+b}, v{EE+12+b}')
                if t==1 and b>0: a(f'v_mfma_f32_16x16x32_bf16 v[{ACC+4*b-4}:{ACC+4*b-1}], v[{SS}:{SS+3}], v[{D0+4*b-4}:{D0+4*b-1}], v[{ACC+4*b-4}:{ACC+4*b-1}]')
        a('s_sub_u32 s59, s59, 1'); a('s_sub_u32 s63, s63, 1')
        a(f'v_mfma_f32_16x16x32_bf16 v[{ACC+12}:{ACC+15}], v[{SS}:{SS+3}], v[{D0+12}:{D0+15}], v[{ACC+12}:{ACC+15}]')
        if k==2:
            for r in (3,4): a(f'v_add_u32 v{r}, 384, v{r}')
        a('s_cmp_eq_u32 s63, 0')
        if k<2 or not last: a('s_cbranch_scc1 K2_NEXT')
        else: a('s_cbranch_scc0 K2_LOOP')
        if first:
            a('s_cmp_lt_u32 s63, 2'); a('s_cbranch_scc1 K2_B1')
            issue(2)
            a('s_branch K2_B1')
    if FB: body(0,9,first=True)
    for u in range(OPT.get('unr',1)):
        for k in range(3): body(k,u,u==OPT.get('unr',1)-1)
    if OPT.get('half'):
        a('s_branch K2_NEXT')
        for k in range(3):
            G=BUF[k]
            a.label(f'K2_H{k}')
            a(f'ds_read_b64 v[{AF}:{AF+1}], v11 offset:{EB+1024*k}')
            a(f'ds_read2_b32 v[{SS+6}:{SS+7}], v4 offset0:{32*k} offset1:{32*k+16}')
            for b in range(4):
                for i in range(4): a(f'v_lshlrev_b32 v{D1+4*b+i}, 16, v{G+4*i+b}')
            for p in range(8): a(f'v_mov_b32 v{G+16+p}, v{G+p}') if False else None
            a('s_waitcnt lgkmcnt(0)')
            for b in range(4):
                a(f'v_mfma_f32_16x16x32_bf16 v[{D1+4*b}:{D1+4*b+3}], v[{AF}:{AF+3}], v[{BO+4*b}:{BO+4*b+3}], v[{D1+4*b}:{D1+4*b+3}]')
                a(f'v_mov_b32 v{D0+4*b+2}, 0'); a(f'v_mov_b32 v{D0+4*b+3}, 0')
            for uu in range(2): a(f'v_and_or_b32 v{SS+6+uu}, v{SS+6+uu}, s51, v6')
            for uu in range(2): a(f'ds_read_b64_tr_b16 v[{SS+2*uu}:{SS+2*uu+1}], v{SS+6+uu}')
            for b in range(4):
                for i in range(4): a(f'v_exp_f32 v{EE+4*i+b}, v{D1+4*b+i}')
            for p in range(8): a(f'v_pk_add_f32 v[{EE+2*p}:{EE+2*p+1}], v[{EE+2*p}:{EE+2*p+1}], s[54:55]')
            for p in range(16): a(f'v_rcp_f32 v{EE+p}, v{EE+p}')
            for p in range(8): a(f'v_pk_mul_f32 v[{EE+2*p}:{EE+2*p+1}], v[{EE+2*p}:{EE+2*p+1}], v[{G+2*p}:{G+2*p+1}]')
            if k<2: a('s_branch K2_HE')
        a.label('K2_HE')
        a('s_waitcnt lgkmcnt(0)')
        for b in range(4):
            a(f'v_cvt_pk_bf16_f32 v{D0+4*b}, v{EE+b}, v{EE+4+b}'); a(f'v_cvt_pk_bf16_f32 v{D0+4*b+1}, v{EE+8+b}, v{EE+12+b}')
        for b in range(4):
            a(f'v_mfma_f32_16x16x32_bf16 v[{ACC+4*b}:{ACC+4*b+3}], v[{SS}:{SS+3}], v[{D0+4*b}:{D0+4*b+3}], v[{ACC+4*b}:{ACC+4*b+3}]')
    a.label('K2_NEXT')
    a.nop(8)
    a('s_cmp_lt_u32 s62, 5'); a('s_cbranch_scc1 K2_SLOW')
    a('s_cmp_eq_u64 s[56:57], 0'); a('s_cbranch_scc1 K2_FINAL')
    a('s_mov_b32 s62, 0')
    a('s_ff1_i32_b64 s60, s[56:57]'); a('s_bitset0_b64 s[56:57], s60'); a('s_and_b32 s61, s60, 7'); a('s_lshl_b32 s61, s61, 3'); a('s_lshr_b32 s60, s60, 3'); a('s_add_u32 s60, s60, s61'); a(f's_mul_i32 s61, s60, {CE}')
    a.label('K2_SLOW')
    a('s_waitcnt vmcnt(0) lgkmcnt(0)')
    srd(a,68,10,11,E*4); srd(a,72,8,9,E*4)
    a('s_mul_i32 s64, s62, 500'); a('s_add_u32 s64, s64, s61'); a('s_lshl_b32 s65, s64, 2')
    a(f'v_lshlrev_b32 v{T}, 4, v7')
    a(f'buffer_load_dwordx4 v[{MR}:{MR+3}], v{T}, s[68:71], s65 offen'); a(f'buffer_load_dwordx4 v[{MR+4}:{MR+7}], v{T}, s[68:71], s65 offen offset:1024')
    a(f'buffer_load_dwordx4 v[{MR+8}:{MR+11}], v{T}, s[72:75], s65 offen'); a(f'buffer_load_dwordx4 v[{MR+12}:{MR+15}], v{T}, s[72:75], s65 offen offset:1024')
    a('s_mov_b32 s58, 0'); a('s_add_u32 s62, s62, 1'); a('s_mul_i32 s66, s40, 10')
    a('s_waitcnt vmcnt(0)')
    for r in range(8):
        idx=256*(r//4)+(r%4)
        a(f'v_lshlrev_b32 v{T+1}, 2, v7'); a(f'v_add_u32 v{T+1}, {idx}, v{T+1}')
        a(f'v_mov_b32 v{T+2}, 500'); a(f'v_cmp_lt_u32 s[76:77], v{T+1}, v{T+2}')
        a(f'v_subrev_u32 v{T+2}, s66, v{MR+r}'); a(f'v_cmp_gt_u32 vcc, 10, v{T+2}')
        a('s_and_b64 vcc, vcc, s[76:77]')
        a(f'v_lshlrev_b32 v{T+3}, 16, v{MR+8+r}')
        a(f'v_add_lshl_u32 v{T+4}, v{T+1}, s64, 9'); a(f'v_lshl_add_u32 v{T+4}, v{T+2}, 5, v{T+4}')
        a(f'v_mbcnt_lo_u32_b32 v{T+5}, vcc_lo, 0'); a(f'v_mbcnt_hi_u32_b32 v{T+5}, vcc_hi, v{T+5}')
        a(f'v_add_lshl_u32 v{T+5}, v{T+5}, s58, 2'); a(f'v_add_u32 v{T+5}, s48, v{T+5}')
        a('s_bcnt1_i32_b64 s67, vcc'); a('s_add_u32 s58, s58, s67')
        a('s_mov_b64 exec, vcc')
        a(f'ds_write_b32 v{T+5}, v{T+3} offset:512'); a(f'ds_write_b32 v{T+5}, v{T+4} offset:{512+ARR}')
        a('s_mov_b64 exec, -1')
    a('s_branch K2_PROC')
    a.label('K2_FINAL')
    a('s_waitcnt vmcnt(0)')
    stamp(a,6)
    a('v_lshrrev_b32 v15, 4, v7'); a('v_mul_u32_u24 v2, 1088, v15'); a('v_lshrrev_b32 v3, 2, v1'); a('v_add3_u32 v2, v2, v3, s48')
    for b in range(4):
        for i in range(4): a(f'ds_write_b32 v2, v{ACC+4*b+i} offset:{512+272*i+64*b}')
    a('v_mul_u32_u24 v4, 272, v15'); a('v_add3_u32 v4, v4, v1, s48')
    for j in range(3): a(f'ds_read_b128 v[{D0+4*j}:{D0+4*j+3}], v4 offset:{512+1088*j}')
    a('v_lshlrev_b32 v6, 8, v15'); a('v_lshrrev_b32 v3, 1, v1'); a('v_add_u32 v6, v6, v3')
    a('s_mul_i32 s44, s40, 2560'); a('s_add_u32 s44, s44, s45')
    srd_off(a,24,18,19,'s44',2560-128)
    a('s_waitcnt lgkmcnt(0)')
    for p in range(6): a(f'v_pk_mul_f32 v[{D1+2*p}:{D1+2*p+1}], v[{D0+2*p}:{D0+2*p+1}], s[52:53]')
    for i in range(12): a(f'v_exp_f32 v{D1+i}, v{D1+i}')
    for p in range(6): a(f'v_pk_add_f32 v[{D1+2*p}:{D1+2*p+1}], v[{D1+2*p}:{D1+2*p+1}], s[54:55]')
    for i in range(12): a(f'v_rcp_f32 v{D1+i}, v{D1+i}')
    for p in range(6): a(f'v_pk_mul_f32 v[{D0+2*p}:{D0+2*p+1}], v[{D0+2*p}:{D0+2*p+1}], v[{D1+2*p}:{D1+2*p+1}]')
    for p in range(6): a(f'v_cvt_pk_bf16_f32 v{EE+p}, v{D0+2*p}, v{D0+2*p+1}')
    for j in range(3): a(f'buffer_store_dwordx2 v[{EE+2*j}:{EE+2*j+1}], v6, s[24:27], 0 offen offset:{1024*j} {OPT.get("ost","")}')
    if OPT.get('dbg'):
        a('s_waitcnt vmcnt(0)'); a('s_memrealtime s[92:93]'); srd(a,24,20,21,WS_END); srd(a,28,22,23,256)
        a('s_mov_b64 exec, 1'); a('v_mov_b32 v4, 0'); a(f's_mov_b32 s94, {3*THALF}')
        a('buffer_load_dword v3, v4, s[24:27], s94 offen'); a('s_waitcnt vmcnt(0) lgkmcnt(0)')
        a('v_sub_u32 v5, s92, v3'); a('v_sub_u32 v6, s90, v3'); a('v_sub_u32 v7, 0x100000, v6')
        a('buffer_atomic_umax v5, v4, s[28:31], 0 offen'); a('buffer_atomic_umax v6, v4, s[28:31], 0 offen offset:4'); a('buffer_atomic_umax v7, v4, s[28:31], 0 offen offset:8')
    if gen1.STAMP:
        a('s_waitcnt vmcnt(0)'); stamp(a,7,True)
        a('s_lshl_b32 s79, s2, 3'); a('s_add_u32 s79, s79, s42'); stamp_out(a,8,'s79',OFF_ST,30)
    a.label('K2_END')
    a('s_endpgm')
    return a
def mk(path):
    build([('prep_kernel',k1(),CH+160,512,K1_LDS+2048),(NAME+'_kernel',k2(),256,512,K2_LDS)],path)
if __name__=='__main__':
    for arg in sys.argv[2:]:
        if arg=='stamp': gen1.STAMP=True
        else:
            k,v=arg.split('='); OPT[k]=eval(v)
    mk(sys.argv[1])
```

```python
import sys, struct
from asmlib import Asm
import gen1
from gen1 import srd, srd_off, f2u, build, NAME, stamp, stamp_out, OFF_ST
N=10000;E=160000;NBK=1000;CH=64;CE=2500;CAP=15
THALF=N*256
OFF_META=2*THALF
WS_END=OFF_META+NBK*4096
NLOG2E=f2u(-1.4426950408889634)
TINY=f2u(2.0**-100)
OPT=dict(st='',skipq=False,pref=False,exp='',eld='',mld='',xld='',tld='',mq=2,early=True,prio=True)
NG=79
K1_LDS=81920+4096
def wimg_addrs(a,vrow,vpiece,vdst,vt):
    a(f'v_lshrrev_b32 v{vdst}, 4, v{vrow}'); a(f'v_mul_u32_u24 v{vdst}, 4736, v{vdst}')
    a(f'v_and_b32 v{vt}, 15, v{vrow}'); a(f'v_mul_u32_u24 v{vt}, 288, v{vt}'); a(f'v_add_u32 v{vdst}, v{vdst}, v{vt}')
    a(f'v_bfe_u32 v{vt}, v{vrow}, 3, 1'); a(f'v_lshl_add_u32 v{vdst}, v{vt}, 7, v{vdst}'); a(f'v_lshl_add_u32 v{vdst}, v{vpiece}, 4, v{vdst}')
def tr_addr(a,vq,vc,vdst,vt):
    a(f'v_lshrrev_b32 v{vdst}, 1, v{vq}'); a(f'v_mul_u32_u24 v{vdst}, 4736, v{vdst}')
    a(f'v_and_b32 v{vt}, 1, v{vq}'); a(f'v_mul_u32_u24 v{vt}, 2432, v{vt}'); a(f'v_add_u32 v{vdst}, v{vdst}, v{vt}')
    a(f'v_lshrrev_b32 v{vt}, 2, v{vc}'); a(f'v_mul_u32_u24 v{vt}, 288, v{vt}'); a(f'v_add_u32 v{vdst}, v{vdst}, v{vt}')
    a(f'v_and_b32 v{vt}, 3, v{vc}'); a(f'v_lshl_add_u32 v{vdst}, v{vt}, 3, v{vdst}')
def gemm_stream(a,vtr,XF,slots,dres,base=0):
    hs=[(s,mm) for s in range(4) for mm in range(2)]
    def rd(h):
        s,mm=hs[h]; sl=slots[h%len(slots)]
        for b in range(4):
            for u in range(2):
                r=sl+4*b+2*u
                a(f'ds_read_b64_tr_b16 v[{r}:{r+1}], v{vtr} offset:{base+s*9472+u*1152+mm*128+b*32}')
    rd(0)
    for h in range(8):
        if h+1<8: rd(h+1); a('s_waitcnt lgkmcnt(8)')
        else: a('s_waitcnt lgkmcnt(0)')
        s,mm=hs[h]; sl=slots[h%len(slots)]
        for b in range(4):
            d=dres(mm,b); c='0' if s==0 else f'v[{d}:{d+3}]'
            a(f'v_mfma_f32_16x16x32_bf16 v[{d}:{d+3}], v[{XF+4*s}:{XF+4*s+3}], v[{sl+4*b}:{sl+4*b+3}], {c}')
def fin(a,wpw_shift,base):
    if gen1.STAMP:
        stamp(a,5); a('s_waitcnt vmcnt(0)'); stamp(a,6); stamp(a,7,True)
        a('v_lshrrev_b32 v70, 6, v0'); a('v_readfirstlane_b32 s78, v70')
        a(f's_lshl_b32 s79, s2, {wpw_shift}'); a('s_add_u32 s79, s79, s78'); stamp_out(a,8,'s79',base,70)
def k1():
    a=Asm(); ST=OPT['st']
    stamp(a,0,True); stamp(a,1)
    a('s_load_dwordx16 s[4:19], s[0:1], 0')
    a('s_load_dwordx2 s[20:21], s[0:1], 72')
    a(f's_cmp_ge_u32 s2, {CH+160}'); a('s_cbranch_scc1 K1_END')
    a(f's_cmp_lt_u32 s2, {CH}'); a('s_cbranch_scc1 K1_SORT')
    a(f's_sub_u32 s3, s2, {CH}')
    a('s_and_b32 s40, s3, 7'); a('s_lshr_b32 s41, s3, 4'); a('s_lshl_b32 s41, s41, 3'); a('s_add_u32 s40, s40, s41')
    a('s_bfe_u32 s42, s3, 0x10003')
    a(f's_cmp_ge_u32 s40, {NG}'); a('s_cbranch_scc1 K1_END')
    a('v_and_b32 v1, 7, v0'); a('v_lshrrev_b32 v2, 3, v0')
    a('v_lshlrev_b32 v3, 8, v2'); a('v_lshl_add_u32 v3, v1, 4, v3'); a('v_add_u32 v4, 16384, v3')
    a('v_lshrrev_b32 v5, 6, v0'); a('v_readfirstlane_b32 s48, v5')
    a('v_and_b32 v6, 63, v0'); a('v_and_b32 v7, 15, v6'); a('v_lshrrev_b32 v5, 4, v6')
    a('s_lshl_b32 s49, s40, 3'); a('s_add_u32 s49, s49, s48'); a('s_lshl_b32 s50, s49, 12')
    a('v_lshlrev_b32 v24, 8, v7'); a('v_lshl_add_u32 v24, v5, 4, v24')
    a('s_lshl_b32 s45, s42, 7')
    a('s_waitcnt lgkmcnt(0)')
    srd_off(a,28,16,17,32768,32768); srd(a,32,14,15,32768); srd(a,36,4,5,N*256)
    a('buffer_load_dwordx4 v[8:11], v3, s[28:31], s45 offen'); a('buffer_load_dwordx4 v[12:15], v4, s[28:31], s45 offen')
    a('buffer_load_dwordx4 v[16:19], v3, s[32:35], s45 offen'); a('buffer_load_dwordx4 v[20:23], v4, s[32:35], s45 offen')
    XF=28
    for s in range(4): a(f'buffer_load_dwordx4 v[{XF+4*s}:{XF+4*s+3}], v24, s[36:39], s50 offen offset:{64*s}')
    if OPT['pref']:
        srd(a,60,6,7,E*32)
        a('s_mul_i32 s64, s3, 32768'); a('v_lshlrev_b32 v100, 4, v0')
        for j in range(4):
            a(f'buffer_load_dwordx4 v[{104+4*j}:{107+4*j}], v100, s[60:63], s64 offen'); a('s_add_u32 s64, s64, 8192')
    np_=4 if OPT['pref'] else 0
    wimg_addrs(a,2,1,25,26); tr_addr(a,5,7,26,27)
    a(f's_mov_b32 s52, {NLOG2E}'); a(f's_mov_b32 s53, {NLOG2E}'); a(f's_mov_b32 s57, {TINY}')
    a('s_mov_b32 s58, 0x80008000'); a('s_mov_b32 s54, 0x07060100'); a('s_mov_b32 s55, 0x07060302'); a('s_mov_b32 s59, 0x80000000')
    a(f's_mul_i32 s56, s42, {THALF}'); srd_off(a,24,20,21,'s56',THALF)
    a(f's_waitcnt vmcnt({7+np_})'); a('ds_write_b128 v25, v[8:11]')
    a(f's_waitcnt vmcnt({6+np_})'); a(f'ds_write_b128 v25, v[12:15] offset:{4*4736}')
    a(f's_waitcnt vmcnt({5+np_})'); a('ds_write_b128 v25, v[16:19] offset:128')
    a(f's_waitcnt vmcnt({4+np_})'); a(f'ds_write_b128 v25, v[20:23] offset:{4*4736+128}')
    stamp(a,2)
    a('s_waitcnt lgkmcnt(0)'); a('s_barrier')
    a(f's_waitcnt vmcnt({np_})')
    stamp(a,3)
    D0=44
    dd=lambda mm,b: D0+(mm*4+b)*4
    gemm_stream(a,26,XF,[76,8],dd) if False else gemm_stream(a,26,XF,[76,92],dd)
    stamp(a,4)
    a('v_lshlrev_b32 v9, 10, v5'); a('v_lshl_add_u32 v9, v7, 4, v9')
    for b in range(4):
        d=dd(0,b)
        a(f'v_pk_mul_f32 v[{d}:{d+1}], v[{d}:{d+1}], s[52:53]'); a(f'v_pk_mul_f32 v[{d+2}:{d+3}], v[{d+2}:{d+3}], s[52:53]')
    for i in range(4):
        o=12+(i%2)*12
        for bp in range(2):
            a(f'v_cvt_pk_bf16_f32 v{o+4+bp}, v{dd(0,2*bp)+i}, v{dd(0,2*bp+1)+i}')
        for b in range(4): a(f'v_max_f32 v{o+8+b}, |v{dd(1,b)+i}|, s57')
        for bp in range(2): a(f'v_xor_b32 v{o+6+bp}, s58, v{o+4+bp}')
        for b in range(4):
            a(f'v_sub_u32_sdwa v{o+8+b}, v{o+8+b}, sext(v{o+6+b//2}) dst_sel:DWORD dst_unused:UNUSED_PAD src0_sel:DWORD src1_sel:WORD_{b%2}')
        for b in range(4): a(f'v_perm_b32 v{o+b}, v{o+8+b}, v{o+4+b//2}, s{54+b%2}')
        for b in range(4): a(f'v_and_or_b32 v{o+b}, v{dd(1,b)+i}, s59, v{o+b}')
        a(f'buffer_store_dwordx4 v[{o}:{o+3}], v9, s[24:27], s50 offen offset:{256*i} {ST}')
    fin(a,3,OFF_ST+(1<<20))
    a('s_endpgm')
    a.label('K1_SORT')
    a(f's_mul_i32 s40, s2, {CE*4}')
    a('v_mul_u32_u24 v1, 20, v0')
    a('v_mov_b32 v20, 0'); a('v_mov_b32 v21, 0'); a('v_lshlrev_b32 v2, 3, v0')
    a('ds_write_b64 v2, v[20:21] offset:0')
    a('s_waitcnt lgkmcnt(0)')
    srd(a,28,10,11,E*4); srd(a,32,8,9,E*4); srd(a,24,20,21,WS_END)
    a('buffer_load_dwordx4 v[8:11], v1, s[28:31], s40 offen'); a('buffer_load_dword v12, v1, s[28:31], s40 offen offset:16')
    a('buffer_load_dwordx4 v[14:17], v1, s[32:35], s40 offen'); a('buffer_load_dword v18, v1, s[32:35], s40 offen offset:16')
    a('v_mov_b32 v3, 1'); a('v_mul_u32_u24 v4, 80, v0')
    a('s_barrier')
    a(f'v_cmp_gt_u32 vcc, {CE//5}, v0'); a('s_and_saveexec_b64 s[42:43], vcc')
    stamp(a,2)
    a('s_waitcnt vmcnt(2)')
    stamp(a,3)
    for j in range(5):
        a(f'v_mul_u32_u24 v{24+j}, 52429, v{8+j}'); a(f'v_lshrrev_b32 v{24+j}, 19, v{24+j}')
        a(f'v_lshlrev_b32 v{30+j}, 2, v{24+j}')
        a(f'ds_add_rtn_u32 v{36+j}, v{30+j}, v3')
    a('s_waitcnt vmcnt(0)')
    for j in range(5):
        a(f'v_mul_u32_u24 v{30+j}, 10, v{24+j}'); a(f'v_sub_u32 v{8+j}, v{8+j}, v{30+j}')
        a(f'v_lshl_or_b32 v{8+j}, v{14+j}, 16, v{8+j}')
        a(f'v_add3_u32 v{8+j}, v{8+j}, v4, {16*j}')
        a(f'v_mul_u32_u24 v{24+j}, 80, v{24+j}')
    for j in range(5):
        a(f's_waitcnt lgkmcnt({4})' if j>0 else 's_waitcnt lgkmcnt(4)')
        a(f'v_min_u32 v{36+j}, {CAP-1}, v{36+j}'); a(f'v_lshl_add_u32 v{36+j}, v{36+j}, 2, v{24+j}')
        a(f'ds_write_b32 v{36+j}, v{8+j} offset:{4096+4}')
    a('s_mov_b64 exec, s[42:43]')
    a('v_mul_u32_u24 v1, 80, v0'); a('v_lshlrev_b32 v6, 2, v0'); a('v_lshlrev_b32 v7, 12, v0')
    a('s_and_b32 s44, s2, 7'); a('s_lshl_b32 s44, s44, 3'); a('s_lshr_b32 s45, s2, 3'); a('s_add_u32 s44, s44, s45')
    a('s_lshl_b32 s44, s44, 4'); a(f's_add_u32 s44, s44, {OFF_META}'); a(f's_add_u32 s45, s44, {512*4096}')
    a('s_waitcnt lgkmcnt(0)'); a('s_barrier')
    stamp(a,4)
    for h in range(2):
        a(f'ds_read_b32 v{60+h}, v6 offset:{2048*h}')
        for q in range(2): a(f'ds_read_b128 v[{40+8*h+4*q}:{43+8*h+4*q}], v1 offset:{4096+40960*h+16*q}')
    for h in range(2):
        a(f's_waitcnt lgkmcnt({3-3*h})')
        a(f'v_mov_b32 v{40+8*h}, v{60+h}')
        a(f'v_cmp_lt_u32 vcc, 3, v{60+h}')
        a(f'buffer_store_dwordx4 v[{40+8*h}:{43+8*h}], v7, s[24:27], s{44+h} offen {ST}')
        a('s_mov_b64 exec, vcc')
        a(f'buffer_store_dwordx4 v[{44+8*h}:{47+8*h}], v7, s[24:27], s{44+h} offen offset:1024 {ST}')
        a('s_mov_b64 exec, -1')
    for h in range(2):
        a(f'v_cmp_lt_u32 vcc, 7, v{60+h}'); a('s_and_saveexec_b64 s[42:43], vcc'); a(f's_cbranch_execz K1_SK{h}')
        for q in range(2,4): a(f'ds_read_b128 v[{16+8*h+4*q}:{19+8*h+4*q}], v1 offset:{4096+40960*h+16*q}')
        a('s_waitcnt lgkmcnt(0)')
        for q in range(2,4): a(f'buffer_store_dwordx4 v[{16+8*h+4*q}:{19+8*h+4*q}], v7, s[24:27], s{44+h} offen offset:{1024*q} {ST}')
        a.label(f'K1_SK{h}')
        a('s_mov_b64 exec, s[42:43]')
    fin(a,3,OFF_ST+(1<<20))
    a.label('K1_END')
    a('s_endpgm')
    return a

LCAP=1088; ARR=LCAP*4
EB=512+2*ARR
WREG=EB+3072
XIMG=8*WREG; WIMG=XIMG+96*256; CIMG=WIMG+8*4736
INFO=CIMG+16*160
K2_LDS=INFO+128
NL=9
def k2():
    a=Asm()
    stamp(a,0,True); stamp(a,1)
    a('s_load_dwordx16 s[4:19], s[0:1], 0')
    a('s_load_dwordx2 s[20:21], s[0:1], 72')
    if OPT.get('dbg'): a('s_memrealtime s[90:91]'); a('s_load_dwordx2 s[22:23], s[0:1], 64')
    if OPT['prio']==2: a('s_setprio 3')
    a('s_lshr_b32 s40, s2, 3'); a('s_lshl_b32 s40, s40, 2'); a('s_and_b32 s41, s2, 3'); a('s_add_u32 s40, s40, s41')
    a('s_bfe_u32 s41, s2, 0x10002')
    a(f's_cmp_ge_u32 s40, {NBK//8}'); a('s_cbranch_scc1 K2_END')
    a('v_lshrrev_b32 v7, 6, v0'); a('v_readfirstlane_b32 s42, v7')
    a('v_and_b32 v7, 63, v0')
    a('s_mul_i32 s46, s40, 80')
    a('s_lshl_b32 s40, s40, 3'); a('s_add_u32 s40, s40, s42')
    BO=16; ACC=32; SS=48; D0=56; D1=72; EE=88; AF=104; XF=104; XR=120; BUF=[136,168,200]; MR=136; X=232
    a(f's_lshl_b32 s43, s40, 12'); a(f's_add_u32 s43, s43, {OFF_META}')
    a('v_lshlrev_b32 v15, 4, v7')
    a('v_and_b32 v52, 7, v0'); a('v_lshrrev_b32 v53, 3, v0')
    a('v_lshlrev_b32 v54, 8, v53'); a('v_lshl_add_u32 v54, v52, 4, v54')
    a('v_and_b32 v1, 15, v7'); a('v_lshrrev_b32 v55, 4, v7')
    a('s_mul_i32 s47, s42, 12'); a('s_add_u32 s46, s46, s47')
    a(f'v_lshlrev_b32 v{X+3}, 2, v55'); a(f'v_xor_b32 v{X+3}, v{X+3}, v1'); a(f'v_lshlrev_b32 v{X+3}, 4, v{X+3}')
    for j in range(3):
        a(f'v_add3_u32 v{X+j}, v55, s46, {4*j}'); a(f'v_min_u32 v{X+j}, {N-1}, v{X+j}'); a(f'v_lshl_add_u32 v{X+j}, v{X+j}, 8, v{X+3}')
    a('s_lshl_b32 s45, s41, 7')
    a(f's_mul_i32 s48, s42, {WREG}')
    a(f's_mul_i32 s36, s42, 3072'); a(f's_add_u32 s36, s36, {XIMG}')
    a('s_waitcnt lgkmcnt(0)')
    srd(a,24,20,21,WS_END)
    MQ=OPT['mq']
    for j in range(MQ): a(f'buffer_load_dwordx4 v[{MR+4*j}:{MR+4*j+3}], v15, s[24:27], s43 offen offset:{1024*j} {OPT["mld"]}')
    srd(a,64,16,17,272*256); srd(a,68,12,13,32768); srd(a,72,4,5,N*256)
    a(f's_mul_i32 s46, s41, {THALF}'); srd_off(a,28,20,21,'s46',THALF)
    a('s_mov_b32 s32, s6'); a('s_and_b32 s33, s7, 0xffff'); a('s_or_b32 s33, s33, 0x200000'); a(f's_mov_b32 s34, {E}'); a('s_mov_b32 s35, 0x20000')
    a('v_lshrrev_b32 v4, 2, v7'); a('v_and_b32 v6, 3, v7'); a('v_lshlrev_b32 v5, 2, v6'); a('v_sub_u32 v5, v4, v5')
    a('v_lshlrev_b32 v2, 4, v5'); a('v_mov_b32 v8, 0x3f80'); a('v_mov_b32 v9, 0'); a('v_lshlrev_b64 v[8:9], v2, v[8:9]')
    a('v_cmp_gt_u32 vcc, 4, v5'); a('v_cndmask_b32 v8, 0, v8, vcc'); a('v_cndmask_b32 v9, 0, v9, vcc')
    a('v_lshl_add_u32 v2, v7, 3, s48'); a('ds_write_b64 v2, v[8:9]')
    a('s_cmp_ge_u32 s42, 2'); a('s_cbranch_scc1 K2_NOC0')
    a('s_add_u32 s47, s45, 65536')
    a(f'buffer_load_dwordx4 v[{EE}:{EE+3}], v54, s[64:67], s47 offen')
    a.label('K2_NOC0')
    a('s_add_u32 s47, s45, 16384'); a('s_mov_b32 m0, s36')
    for j in range(2):
        a(f'buffer_load_dwordx4 v[{D0+8*j}:{D0+8*j+3}], v54, s[64:67], s{45+2*j} offen')
        a(f'buffer_load_dwordx4 v[{D0+8*j+4}:{D0+8*j+7}], v54, s[68:71], s{45+2*j} offen')
    for j in range(3):
        a(f'buffer_load_dwordx4 v{X+j}, s[72:75], 0 offen {OPT["xld"]} lds')
        if j<2: a('s_add_u32 m0, m0, 1024'); a('s_nop 0')
    if OPT.get('ns'):
        a('s_lshr_b32 s76, s2, 3'); a('s_lshl_b32 s76, s76, 3'); a('s_add_u32 s76, s76, s42'); a('s_mul_i32 s76, s76, 10240'); a('s_add_u32 s76, s76, s46')
        a('s_add_u32 s76, s20, s76'); a('s_addc_u32 s77, s21, 0')
        for j in range(OPT['ns']): a(f's_load_dword s22, s[76:77], {128*j}')
    a('v_lshl_add_u32 v12, v55, 4, s48'); a('v_add_u32 v12, 512, v12')
    a('v_lshl_add_u32 v13, v1, 2, s48'); a(f'v_add_u32 v13, {512+ARR}, v13')
    a('v_lshl_add_u32 v14, v4, 2, s48'); a(f'v_add_u32 v14, {512+ARR}, v14')
    a('v_lshl_add_u32 v5, v55, 3, s48')
    a(f'v_lshl_add_u32 v11, v1, 5, v5')
    a('v_lshl_add_u32 v6, v6, 3, s48')
    a('v_and_b32 v9, 1, v7'); a('v_lshlrev_b32 v9, 4, v9')
    wimg_addrs(a,53,52,54,15)
    a('v_mul_u32_u24 v53, 160, v53'); a('v_lshl_add_u32 v53, v52, 4, v53')
    tr_addr(a,55,1,52,15)
    a('s_mul_i32 s47, s42, 10'); a(f'v_add_u32 v{X+4}, s47, v1'); a(f'v_and_b32 v15, 3, v{X+4}')
    a(f'v_lshlrev_b32 v{X+4}, 8, v{X+4}'); a(f'v_lshl_add_u32 v{X+4}, v15, 6, v{X+4}'); a(f'v_lshl_add_u32 v{X+4}, v55, 4, v{X+4}'); a(f'v_add_u32 v{X+4}, {XIMG}, v{X+4}')
    for s in range(1,4): a(f'v_xor_b32 v{X+4+s}, {64*s}, v{X+4}')
    a('v_mul_u32_u24 v55, 160, v4'); a('v_and_b32 v15, 3, v7'); a('v_lshl_add_u32 v55, v15, 3, v55')
    a(f'v_add_u32 v53, {CIMG}, v53'); a(f'v_add_u32 v55, {CIMG}, v55'); a(f'v_add_u32 v52, {WIMG}, v52'); a(f'v_add_u32 v54, {WIMG}, v54')
    a('v_lshrrev_b32 v15, 1, v7'); a('v_lshl_add_u32 v15, v15, 2, s48'); a(f'v_add_u32 v15, {512+ARR}, v15')
    a('v_lshlrev_b32 v1, 4, v1')
    a(f'v_and_b32 v{XR}, 7, v7'); a(f'v_lshrrev_b32 v{XR+1}, 3, v7'); a(f'v_lshl_add_u32 v{XR}, v{XR}, 3, v{XR+1}')
    a(f'v_mul_u32_u24 v{XR}, {CE*512}, v{XR}')
    a(f's_mov_b32 s53, {NLOG2E}'); a(f's_mov_b32 s52, {NLOG2E}'); a('s_mov_b32 s54, 1.0'); a('s_mov_b32 s55, 1.0'); a('s_mov_b32 s62, 5')
    if 'g' in OPT['exp']: a('s_and_b32 s78, s2, 3'); a('s_mul_i32 s78, s78, 40000')
    if OPT.get('sel'):
        a('v_and_b32 v241, 15, v7'); a('v_lshrrev_b32 v242, 4, v7'); a('v_lshlrev_b32 v242, 2, v242'); a('v_xor_b32 v245, v241, v242')
        for i in (0,2,3,1):
            c=240+4*i
            a(f'v_lshrrev_b32_e64 v{c}, v245, {1<<i}'); a(f'v_and_b32 v{c}, 1, v{c}'); a(f'v_mul_u32_u24 v{c}, 0x3f80, v{c}')
            a(f'v_mov_b32 v{c+3}, v{c}'); a(f'v_mov_b32 v{c+1}, 0'); a(f'v_mov_b32 v{c+2}, 0')
    a('s_mov_b32 s50, 0x0c070600'); a('s_mov_b32 s51, 0x1e0'); a('s_mov_b32 s49, 0')
    for k in range(3): a(f's_add_u32 s{36+k}, s48, {EB+1024*k}')
    a('s_waitcnt vmcnt(7)')
    stamp(a,2)
    T=152
    a(f'v_cmp_lt_u32 s[56:57], {CAP}, v{MR}')
    a(f'v_cndmask_b32 v{MR}, v{MR}, 0, s[56:57]')
    a(f'v_mov_b32 v{T}, v{MR}')
    for sh in (1,2,4,8): a(f'v_add_u32_dpp v{T}, v{T}, v{T} row_shr:{sh} row_mask:0xf bank_mask:0xf bound_ctrl:0')
    a(f'v_add_u32_dpp v{T}, v{T}, v{T} row_bcast:15 row_mask:0xa bank_mask:0xf')
    a(f'v_add_u32_dpp v{T}, v{T}, v{T} row_bcast:31 row_mask:0xc bank_mask:0xf')
    a(f'v_readlane_b32 s58, v{T}, 63')
    a(f'v_sub_u32 v{T}, v{T}, v{MR}'); a(f'v_lshl_add_u32 v{T}, v{T}, 2, s48')
    for s in range(CAP):
        a(f'v_cmpx_lt_u32 vcc, {s}, v{MR}')
        if s>=4: a('s_cbranch_execz K2_CDONE')
        if MQ<4 and s==4*MQ-1:
            a(f'v_lshlrev_b32 v{T+3}, 4, v7')
            for j in range(MQ,4): a(f'buffer_load_dwordx4 v[{MR+4*j}:{MR+4*j+3}], v{T+3}, s[24:27], s43 offen offset:{1024*j}')
            a('s_waitcnt vmcnt(0)')
        a(f'v_mad_u32_u16 v{T+1+s%2}, v{MR+1+s}, 32, v{XR}')
        a(f'ds_write_b32 v{T}, v{MR+1+s} offset:{512+4*s}'); a(f'ds_write_b32 v{T}, v{T+1+s%2} offset:{512+ARR+4*s}')
    a.label('K2_CDONE')
    a('s_mov_b64 exec, -1')
    a.label('K2_PROC')
    a(f'v_add_lshl_u32 v{T}, v7, s58, 2'); a(f'v_add_u32 v{T}, s48, v{T}'); a(f'v_mov_b32 v{T+1}, 0'); a(f'v_mov_b32 v{T+2}, 0x1e0')
    for j in range(2):
        a(f'ds_write_b32 v{T}, v{T+1} offset:{512+256*j}'); a(f'ds_write_b32 v{T}, v{T+2} offset:{512+ARR+256*j}')
    a('s_add_u32 s63, s58, 31'); a('s_lshr_b32 s63, s63, 5')
    a('s_max_u32 s59, s63, 2'); a('s_add_u32 s23, s58, 31'); a('s_and_b32 s23, s23, 16')
    a('v_mov_b32 v2, v12'); a('v_mov_b32 v3, v13'); a('v_mov_b32 v4, v14'); a('v_mov_b32 v10, v15')
    def issue(k,W=XR,part=None):
        G=BUF[k]; P=OPT.get('pre',0)
        if part!=1:
            a(f'ds_read_b32 v8, v10 offset:{128*k}')
            a(f'ds_read_b128 v[{W}:{W+3}], v2 offset:{128*k}'); a(f'ds_read_b128 v[{W+4}:{W+7}], v2 offset:{128*k+64}')
            a(f's_mov_b32 m0, s{36+k}')
            a('s_waitcnt lgkmcnt(2)')
            a(f'v_lshrrev_b32 v8, 9, v8')
            if 'g' in OPT['exp']: a('v_lshrrev_b32 v8, 2, v8'); a('v_add_u32 v8, s78, v8')
            if 'e' in OPT['exp']: a('v_and_b32 v8, 63, v8')
            a(f'buffer_load_dwordx4 v[8:9], s[32:35], 0 idxen offen {OPT["eld"]} lds')
            a('s_waitcnt lgkmcnt(0)')
        for i in (range(8) if part is None else range(P) if part==0 else range(P,8)):
            a(f'v_perm_b32 v{W+i}, v{W+i}, v1, s50')
            if 't' in OPT['exp']: a(f'v_and_b32 v{W+i}, 0x3fff, v{W+i}')
            a(f'buffer_load_dwordx4 v[{G+4*i}:{G+4*i+3}], v{W+i}, s[28:31], 0 offen {OPT["tld"]}')
    def compute(k):
        G=BUF[k]; A=AF; DD=[D0,D1]
        a(f'ds_read2_b32 v[{SS+4}:{SS+5}], v3 offset0:{32*k} offset1:{32*k+16}')
        a(f'ds_read2_b32 v[{SS+6}:{SS+7}], v4 offset0:{32*k} offset1:{32*k+16}')
        for t in range(2): a(f'ds_read_b64 v[{A+4*t}:{A+4*t+1}], v11 offset:{EB+1024*k+512*t}')
        for t in range(2):
            for b in range(4):
                for i in range(4): a(f'v_lshlrev_b32 v{DD[t]+4*b+i}, 16, v{G+16*t+4*i+b}')
            if t==0:
                a('s_waitcnt lgkmcnt(2)')
                for u in range(2): a(f'v_and_or_b32 v{SS+4+u}, v{SS+4+u}, s51, v5')
                for u in range(2): a(f'ds_read_b64 v[{A+4*u+2}:{A+4*u+3}], v{SS+4+u}')
                for u in range(2): a(f'v_and_or_b32 v{SS+6+u}, v{SS+6+u}, s51, v6')
                for u in range(2): a(f'ds_read_b64_tr_b16 v[{SS+2*u}:{SS+2*u+1}], v{SS+6+u}')
        a('s_waitcnt lgkmcnt(2)')
        for t in range(2):
            for b in range(4):
                d=DD[t]+4*b
                a(f'v_mfma_f32_16x16x32_bf16 v[{d}:{d+3}], v[{A+4*t}:{A+4*t+3}], v[{BO+4*b}:{BO+4*b+3}], v[{d}:{d+3}]')
        for t in range(2):
            for b in range(4):
                for i in range(4): a(f'v_exp_f32 v{EE+4*i+b}, v{DD[t]+4*b+i}')
            for p in range(8): a(f'v_pk_add_f32 v[{EE+2*p}:{EE+2*p+1}], v[{EE+2*p}:{EE+2*p+1}], s[54:55]')
            for p in range(16): a(f'v_rcp_f32 v{EE+p}, v{EE+p}')
            for p in range(8): a(f'v_pk_mul_f32 v[{EE+2*p}:{EE+2*p+1}], v[{EE+2*p}:{EE+2*p+1}], v[{G+16*t+2*p}:{G+16*t+2*p+1}]')
            for b in range(4):
                m=D0+4*b+2*t
                a(f'v_cvt_pk_bf16_f32 v{m}, v{EE+b}, v{EE+4+b}'); a(f'v_cvt_pk_bf16_f32 v{m+1}, v{EE+8+b}, v{EE+12+b}')
        a('s_waitcnt lgkmcnt(0)')
        for b in range(4):
            a(f'v_mfma_f32_16x16x32_bf16 v[{ACC+4*b}:{ACC+4*b+3}], v[{SS}:{SS+3}], v[{D0+4*b}:{D0+4*b+3}], v[{ACC+4*b}:{ACC+4*b+3}]')
    PRE='pre' in OPT
    BAL=OPT.get('bal')
    if BAL:
        a('s_cmp_lg_u32 s49, 0'); a('s_cbranch_scc1 K2_P0')
        a(f'v_mov_b32 v{T}, s58'); a(f'v_mov_b32 v{T+1}, s56'); a(f'v_mov_b32 v{T+2}, s57'); a(f'v_mov_b32 v{T+3}, 0')
        a('s_lshl_b32 s47, s42, 4'); a(f's_add_u32 s47, s47, {INFO}'); a(f'v_mov_b32 v{T+4}, s47')
        a(f'ds_write_b128 v{T+4}, v[{T}:{T+3}]')
        a('s_cmp_lt_u32 s42, 4'); a('s_cbranch_scc1 K2_P0')
        a('s_waitcnt vmcnt(0)'); a('s_branch K2_P1')
        a.label('K2_P0')
    if PRE: issue(0,part=0)
    a('s_cmp_lg_u32 s49, 0'); a('s_cbranch_scc1 K2_I1')
    a.label('K2_P1')
    stamp(a,3)
    a(f's_waitcnt vmcnt({OPT["pre"]+1 if PRE else 0})')
    for j in range(2):
        a(f'ds_write_b128 v54, v[{D0+8*j}:{D0+8*j+3}] offset:{18944*j}'); a(f'ds_write_b128 v54, v[{D0+8*j+4}:{D0+8*j+7}] offset:{18944*j+128}')
    a('s_cmp_ge_u32 s42, 2'); a('s_cbranch_scc1 K2_NOC')
    a(f'ds_write_b128 v53, v[{EE}:{EE+3}]')
    a.label('K2_NOC')
    a('s_waitcnt lgkmcnt(0)'); a('s_barrier')
    stamp(a,4)
    if BAL:
        a('s_cmp_lt_u32 s42, 4'); a('s_cbranch_scc1 K2_I1')
        a(f'v_and_b32 v{T+4}, 7, v7'); a(f'v_lshlrev_b32 v{T+5}, 4, v{T+4}'); a(f'v_add_u32 v{T+5}, {INFO}, v{T+5}')
        a(f'ds_read_b128 v[{T}:{T+3}], v{T+5}'); a('s_waitcnt lgkmcnt(0)')
        a(f'v_lshl_add_u32 v{T+4}, v{T}, 3, v{T+4}')
        for qp in ('[1,2,3,0]','[2,3,0,1]','[3,0,1,2]'):
            a(f'v_mov_b32_dpp v{T+5}, v{T+4} quad_perm:{qp} row_mask:0xf bank_mask:0xf')
            a(f'v_cmp_lt_u32 vcc, v{T+5}, v{T+4}'); a(f'v_addc_co_u32 v{T+3}, vcc, 0, v{T+3}, vcc')
        a('s_sub_u32 s47, s42, 4'); a(f'v_readlane_b32 s60, v{T+3}, s47'); a('s_sub_u32 s60, 3, s60')
        a(f'v_cmp_eq_u32 vcc, s60, v{T+3}'); a('s_and_b32 s60, vcc_lo, 0xf0'); a('s_ff1_i32_b32 s60, s60')
        a(f'v_readlane_b32 s58, v{T}, s60'); a(f'v_readlane_b32 s56, v{T+1}, s60'); a(f'v_readlane_b32 s57, v{T+2}, s60')
        a('s_sub_i32 s61, s60, s42'); a('s_add_i32 s40, s40, s61'); a(f's_mul_i32 s61, s61, {WREG}')
        for r in (36,37,38,48): a(f's_add_i32 s{r}, s{r}, s61')
        for r in (2,3,4,5,6,10,11,12,13,14,15): a(f'v_add_u32 v{r}, s61, v{r}')
        a('s_add_u32 s63, s58, 31'); a('s_lshr_b32 s63, s63, 5'); a('s_max_u32 s59, s63, 2'); a('s_add_u32 s23, s58, 31'); a('s_and_b32 s23, s23, 16')
        a('s_mul_i32 s47, s60, 10'); a(f'v_lshrrev_b32 v{T}, 4, v1'); a(f'v_add_u32 v{X+4}, s47, v{T}'); a(f'v_and_b32 v{T}, 3, v{X+4}')
        a(f'v_lshlrev_b32 v{X+4}, 8, v{X+4}'); a(f'v_lshl_add_u32 v{X+4}, v{T}, 6, v{X+4}'); a(f'v_and_b32 v{T}, 48, v7')
        a(f'v_add_u32 v{T}, {XIMG}, v{T}'); a(f'v_add_u32 v{X+4}, v{T}, v{X+4}')
        for s in range(1,4): a(f'v_xor_b32 v{X+4+s}, {64*s}, v{X+4}')
        issue(0,part=0)
    a.label('K2_I1')
    issue(0,part=1 if PRE else None)
    a('s_cmp_lg_u32 s49, 0'); a('s_cbranch_scc1 K2_I2')
    a('s_mov_b32 s49, 1')
    for s in range(4): a(f'ds_read_b128 v[{XF+4*s}:{XF+4*s+3}], v{X+4+s}')
    for b in range(4): a(f'ds_read_b64_tr_b16 v[{EE+2*b}:{EE+2*b+1}], v55 offset:{32*b}')
    gemm_stream(a,52,XF,[D0,D1],lambda mm,b:(XR if mm==0 else ACC)+4*b)
    for b in range(4):
        for p in range(2):
            r=EE+2*b+p
            a(f'v_lshlrev_b32 v{EE+8}, 16, v{r}'); a(f'v_and_b32 v{EE+9}, 0xffff0000, v{r}')
            a(f'v_pk_mul_f32 v[{EE+8}:{EE+9}], v[{EE+8}:{EE+9}], s[52:53]')
            a(f'v_cvt_pk_bf16_f32 v{BO+4*b+p}, v{EE+8}, v{EE+9}')
    for b in range(4):
        for p in range(2):
            r=XR+4*b+2*p
            a(f'v_pk_mul_f32 v[{r}:{r+1}], v[{r}:{r+1}], s[52:53]')
            a(f'v_cvt_pk_bf16_f32 v{BO+4*b+2+p}, v{r}, v{r+1}')
    a.settle()
    a.label('K2_I2')
    FB=OPT.get('fb',0)
    if not FB: issue(1)
    a(f'ds_read2_b32 v[{SS+4}:{SS+5}], v3 offset0:0 offset1:16'); a('s_waitcnt lgkmcnt(0)')
    for u in range(2): a(f'v_and_or_b32 v{SS+4+u}, v{SS+4+u}, s51, v5')
    for u in range(2): a(f'ds_read_b64 v[{AF+4*u+2}:{AF+4*u+3}], v{SS+4+u}')
    stamp(a,5)
    a('s_cmp_eq_u32 s63, 0'); a('s_cbranch_scc1 K2_NEXT')
    def body(k,u=0,last=True,first=False):
        G=BUF[k]; A=AF; DD=[D0,D1]; kn=1 if first else (k+2)%3; GN=BUF[kn]; W=XR
        skip=[0]
        def grp(f):
            l=f'K2_S{k}_{u}_{skip[0]}'; skip[0]+=1
            a(f's_cbranch_scc1 {l}'); f(); a.label(l)
        def ld(i):
            a(f'v_perm_b32 v{W+i}, v{W+i}, v1, s50')
            if 't' in OPT['exp']: a(f'v_and_b32 v{W+i}, 0x3fff, v{W+i}')
            a(f'buffer_load_dwordx4 v[{GN+4*i}:{GN+4*i+3}], v{W+i}, s[28:31], 0 offen {OPT["tld"]}')
        def lde():
            a('v_lshrrev_b32 v8, 9, v8')
            if 'g' in OPT['exp']: a('v_lshrrev_b32 v8, 2, v8'); a('v_add_u32 v8, s78, v8')
            if 'e' in OPT['exp']: a('v_and_b32 v8, 63, v8')
            a(f'buffer_load_dwordx4 v[8:9], s[32:35], 0 idxen offen {OPT["eld"]} lds')
        shl=lambda t,b:[a(f'v_lshlrev_b32 v{DD[t]+4*b+i}, 16, v{G+16*t+4*i+b}') for i in range(4)]
        mf=lambda t,b:a(f'v_mfma_f32_16x16x32_bf16 v[{DD[t]+4*b}:{DD[t]+4*b+3}], v[{A+4*t}:{A+4*t+3}], v[{BO+4*b}:{BO+4*b+3}], v[{DD[t]+4*b}:{DD[t]+4*b+3}]')
        ex=lambda t,b:[a(f'v_exp_f32 v{EE+4*i+b}, v{DD[t]+4*b+i}') for i in range(4)]
        if first: a('s_waitcnt vmcnt(0)')
        elif k==0 and u==0: a.label('K2_LOOP')
        elif k==1 and u==0: a.label('K2_B1')
        if OPT['prio'] and not first:
            if OPT['prio']==1: a('s_setprio 3'); a('s_cmp_ge_u32 s63, 4'); a(f's_cbranch_scc1 K2_W10_{k}_{u}')
            a('s_setprio 2'); a('s_cmp_ge_u32 s63, 3'); a(f's_cbranch_scc1 K2_W10_{k}_{u}')
            a('s_setprio 1')
        if not first:
            a(f's_cmp_ge_u32 s{63 if FB else 59}, 2'); a(f's_cbranch_scc1 K2_W10_{k}_{u}')
            if OPT['prio']: a('s_setprio 0')
            a('s_waitcnt vmcnt(0)')
            if OPT.get('half'): a('s_cmp_eq_u32 s23, 0'); a(f's_cbranch_scc1 K2_H{k}')
            a.label(f'K2_W10_{k}_{u}')
            a(f's_waitcnt vmcnt({NL})')
        for t in range(2): a(f'ds_read_b64 v[{A+4*t}:{A+4*t+1}], v11 offset:{EB+1024*k+512*t}')
        if k==1: a('v_add_u32 v2, 384, v2'); a('v_add_u32 v10, 384, v10')
        a(f'ds_read2_b32 v[{SS+6}:{SS+7}], v4 offset0:{32*k} offset1:{32*k+16}')
        a(f'ds_read2_b32 v[{SS+4}:{SS+5}], v3 offset0:{32*k+32} offset1:{32*k+48}')
        a(f'ds_read_b128 v[{W}:{W+3}], v2 offset:{128*kn}'); a(f'ds_read_b128 v[{W+4}:{W+7}], v2 offset:{128*kn+64}')
        a(f'ds_read_b32 v8, v10 offset:{128*kn}')
        a(f's_mov_b32 m0, s{36+kn}')
        a(f's_cmp_lt_u32 s63, {2 if first else 3}')
        SEL=OPT.get('sel')
        def sl(t,i,b,z=False):
            d=DD[t]+4*b; c=240+4*i+2*(b&1); g=G+16*t+4*i+2*(b>>1)
            a(f'v_mfma_f32_16x16x16_bf16 v[{d}:{d+3}], v[{c}:{c+1}], v[{g}:{g+1}], {"0" if z else f"v[{d}:{d+3}]"}')
        if SEL==2:
            for b in range(4):
                sl(1,0,b,True); a(f'v_lshlrev_b32 v{D0+4*b}, 16, v{G+b}'); a(f'v_lshlrev_b32 v{D0+4*b+1}, 16, v{G+4+b}')
            for b in range(4):
                sl(1,1,b); a(f'v_lshlrev_b32 v{D0+4*b+2}, 16, v{G+8+b}'); a(f'v_lshlrev_b32 v{D0+4*b+3}, 16, v{G+12+b}')
        elif SEL in (3,5):
            for i in range(4):
                for b in range(4): sl(0,i,b,i==0)
        elif SEL==6:
            for i in range(4):
                for b in range(2): sl(0,i,b,i==0); a(f'v_lshlrev_b32 v{D0+8+4*b+i}, 16, v{G+4*i+2+b}')
        else:
            for b in range(4): shl(0,b)
        if not SEL: shl(1,0)
        a('s_waitcnt lgkmcnt(5)')
        for b in range(4):
            mf(0,b)
            if b<3 and not SEL: shl(1,b+1)
        if SEL in (1,3,6):
            for b in range(4): sl(1,0,b,True)
        if SEL in (4,5):
            for b in range(4): a(f'v_mfma_f32_16x16x32_bf16 v[{D1+4*b}:{D1+4*b+3}], v[{A+4}:{A+7}], v[{BO+4*b}:{BO+4*b+3}], 0')
        a('s_waitcnt lgkmcnt(3)')
        for uu in range(2): a(f'v_and_or_b32 v{SS+6+uu}, v{SS+6+uu}, s51, v6')
        for uu in range(2): a(f'v_and_or_b32 v{SS+4+uu}, v{SS+4+uu}, s51, v5')
        for b in range(4):
            if SEL in (4,5):
                for i in range(4):
                    a(f'v_exp_f32 v{EE+4*i+b}, v{D0+4*b+i}')
                    if i&1: q=2*b+i//2; sl(1,q//4,q%4)
            elif SEL in (1,3,6):
                for i in range(4):
                    (sl(1,b+1,i) if b<3 else mf(1,i)); a(f'v_exp_f32 v{EE+4*i+b}, v{D0+4*b+i}')
            elif SEL==2:
                for i in range(4):
                    if b<3: (sl(1,b+2,i) if b<2 else mf(1,i))
                    a(f'v_exp_f32 v{EE+4*i+b}, v{D0+4*b+i}')
            else: mf(1,b); ex(0,b)
        for uu in range(2): a(f'ds_read_b64_tr_b16 v[{SS+2*uu}:{SS+2*uu+1}], v{SS+6+uu}')
        for uu in range(2): a(f'ds_read_b64 v[{A+4*uu+2}:{A+4*uu+3}], v{SS+4+uu}')
        a('s_waitcnt lgkmcnt(4)')
        for t in range(2):
            if t==1:
                for b in range(4):
                    ex(1,b)
                    if b%2==1: grp(lambda: ld(4+b//2))
            for p in range(8): a(f'v_pk_add_f32 v[{EE+2*p}:{EE+2*p+1}], v[{EE+2*p}:{EE+2*p+1}], s[54:55]')
            for p in range(16):
                a(f'v_rcp_f32 v{EE+p}, v{EE+p}')
                if t==0 and p==0 and OPT.get('ef'): grp(lde)
                if t==0 and SEL in (4,5) and p%2==0: q=8+p//2; sl(1,q//4,q%4)
                if t==0 and p%4==3: grp(lambda: ld(p//4))
                if t==1 and p in (3,9): grp(lambda: ld(6+p//9))
                if t==1 and p==15 and not OPT.get('ef'): grp(lde)
            for p in range(8): a(f'v_pk_mul_f32 v[{EE+2*p}:{EE+2*p+1}], v[{EE+2*p}:{EE+2*p+1}], v[{G+16*t+2*p}:{G+16*t+2*p+1}]')
            if t==1: a('s_waitcnt lgkmcnt(2)')
            for b in range(4):
                m=D0+4*b+2*t
                a(f'v_cvt_pk_bf16_f32 v{m}, v{EE+b}, v{EE+4+b}'); a(f'v_cvt_pk_bf16_f32 v{m+1}, v{EE+8+b}, v{EE+12+b}')
                if t==1 and b>0: a(f'v_mfma_f32_16x16x32_bf16 v[{ACC+4*b-4}:{ACC+4*b-1}], v[{SS}:{SS+3}], v[{D0+4*b-4}:{D0+4*b-1}], v[{ACC+4*b-4}:{ACC+4*b-1}]')
        a('s_sub_u32 s59, s59, 1'); a('s_sub_u32 s63, s63, 1')
        a(f'v_mfma_f32_16x16x32_bf16 v[{ACC+12}:{ACC+15}], v[{SS}:{SS+3}], v[{D0+12}:{D0+15}], v[{ACC+12}:{ACC+15}]')
        if k==2:
            for r in (3,4): a(f'v_add_u32 v{r}, 384, v{r}')
        a('s_cmp_eq_u32 s63, 0')
        if k<2 or not last: a('s_cbranch_scc1 K2_NEXT')
        else: a('s_cbranch_scc0 K2_LOOP')
        if first:
            a('s_cmp_lt_u32 s63, 2'); a('s_cbranch_scc1 K2_B1')
            issue(2)
            a('s_branch K2_B1')
    if FB: body(0,9,first=True)
    for u in range(OPT.get('unr',1)):
        for k in range(3): body(k,u,u==OPT.get('unr',1)-1)
    if OPT.get('half'):
        a('s_branch K2_NEXT')
        for k in range(3):
            G=BUF[k]
            a.label(f'K2_H{k}')
            a(f'ds_read_b64 v[{AF}:{AF+1}], v11 offset:{EB+1024*k}')
            a(f'ds_read2_b32 v[{SS+6}:{SS+7}], v4 offset0:{32*k} offset1:{32*k+16}')
            for b in range(4):
                for i in range(4): a(f'v_lshlrev_b32 v{D1+4*b+i}, 16, v{G+4*i+b}')
            for p in range(8): a(f'v_mov_b32 v{G+16+p}, v{G+p}') if False else None
            a('s_waitcnt lgkmcnt(0)')
            for b in range(4):
                a(f'v_mfma_f32_16x16x32_bf16 v[{D1+4*b}:{D1+4*b+3}], v[{AF}:{AF+3}], v[{BO+4*b}:{BO+4*b+3}], v[{D1+4*b}:{D1+4*b+3}]')
                a(f'v_mov_b32 v{D0+4*b+2}, 0'); a(f'v_mov_b32 v{D0+4*b+3}, 0')
            for uu in range(2): a(f'v_and_or_b32 v{SS+6+uu}, v{SS+6+uu}, s51, v6')
            for uu in range(2): a(f'ds_read_b64_tr_b16 v[{SS+2*uu}:{SS+2*uu+1}], v{SS+6+uu}')
            for b in range(4):
                for i in range(4): a(f'v_exp_f32 v{EE+4*i+b}, v{D1+4*b+i}')
            for p in range(8): a(f'v_pk_add_f32 v[{EE+2*p}:{EE+2*p+1}], v[{EE+2*p}:{EE+2*p+1}], s[54:55]')
            for p in range(16): a(f'v_rcp_f32 v{EE+p}, v{EE+p}')
            for p in range(8): a(f'v_pk_mul_f32 v[{EE+2*p}:{EE+2*p+1}], v[{EE+2*p}:{EE+2*p+1}], v[{G+2*p}:{G+2*p+1}]')
            if k<2: a('s_branch K2_HE')
        a.label('K2_HE')
        a('s_waitcnt lgkmcnt(0)')
        for b in range(4):
            a(f'v_cvt_pk_bf16_f32 v{D0+4*b}, v{EE+b}, v{EE+4+b}'); a(f'v_cvt_pk_bf16_f32 v{D0+4*b+1}, v{EE+8+b}, v{EE+12+b}')
        for b in range(4):
            a(f'v_mfma_f32_16x16x32_bf16 v[{ACC+4*b}:{ACC+4*b+3}], v[{SS}:{SS+3}], v[{D0+4*b}:{D0+4*b+3}], v[{ACC+4*b}:{ACC+4*b+3}]')
    a.label('K2_NEXT')
    a.nop(8)
    a('s_cmp_lt_u32 s62, 5'); a('s_cbranch_scc1 K2_SLOW')
    a('s_cmp_eq_u64 s[56:57], 0'); a('s_cbranch_scc1 K2_FINAL')
    a('s_mov_b32 s62, 0')
    a('s_ff1_i32_b64 s60, s[56:57]'); a('s_bitset0_b64 s[56:57], s60'); a('s_and_b32 s61, s60, 7'); a('s_lshl_b32 s61, s61, 3'); a('s_lshr_b32 s60, s60, 3'); a('s_add_u32 s60, s60, s61'); a(f's_mul_i32 s61, s60, {CE}')
    a.label('K2_SLOW')
    a('s_waitcnt vmcnt(0) lgkmcnt(0)')
    srd(a,68,10,11,E*4); srd(a,72,8,9,E*4)
    a('s_mul_i32 s64, s62, 500'); a('s_add_u32 s64, s64, s61'); a('s_lshl_b32 s65, s64, 2')
    a(f'v_lshlrev_b32 v{T}, 4, v7')
    a(f'buffer_load_dwordx4 v[{MR}:{MR+3}], v{T}, s[68:71], s65 offen'); a(f'buffer_load_dwordx4 v[{MR+4}:{MR+7}], v{T}, s[68:71], s65 offen offset:1024')
    a(f'buffer_load_dwordx4 v[{MR+8}:{MR+11}], v{T}, s[72:75], s65 offen'); a(f'buffer_load_dwordx4 v[{MR+12}:{MR+15}], v{T}, s[72:75], s65 offen offset:1024')
    a('s_mov_b32 s58, 0'); a('s_add_u32 s62, s62, 1'); a('s_mul_i32 s66, s40, 10')
    a('s_waitcnt vmcnt(0)')
    for r in range(8):
        idx=256*(r//4)+(r%4)
        a(f'v_lshlrev_b32 v{T+1}, 2, v7'); a(f'v_add_u32 v{T+1}, {idx}, v{T+1}')
        a(f'v_mov_b32 v{T+2}, 500'); a(f'v_cmp_lt_u32 s[76:77], v{T+1}, v{T+2}')
        a(f'v_subrev_u32 v{T+2}, s66, v{MR+r}'); a(f'v_cmp_gt_u32 vcc, 10, v{T+2}')
        a('s_and_b64 vcc, vcc, s[76:77]')
        a(f'v_lshlrev_b32 v{T+3}, 16, v{MR+8+r}')
        a(f'v_add_lshl_u32 v{T+4}, v{T+1}, s64, 9'); a(f'v_lshl_add_u32 v{T+4}, v{T+2}, 5, v{T+4}')
        a(f'v_mbcnt_lo_u32_b32 v{T+5}, vcc_lo, 0'); a(f'v_mbcnt_hi_u32_b32 v{T+5}, vcc_hi, v{T+5}')
        a(f'v_add_lshl_u32 v{T+5}, v{T+5}, s58, 2'); a(f'v_add_u32 v{T+5}, s48, v{T+5}')
        a('s_bcnt1_i32_b64 s67, vcc'); a('s_add_u32 s58, s58, s67')
        a('s_mov_b64 exec, vcc')
        a(f'ds_write_b32 v{T+5}, v{T+3} offset:512'); a(f'ds_write_b32 v{T+5}, v{T+4} offset:{512+ARR}')
        a('s_mov_b64 exec, -1')
    a('s_branch K2_PROC')
    a.label('K2_FINAL')
    a('s_waitcnt vmcnt(0)')
    stamp(a,6)
    a('v_lshrrev_b32 v15, 4, v7'); a('v_mul_u32_u24 v2, 1088, v15'); a('v_lshrrev_b32 v3, 2, v1'); a('v_add3_u32 v2, v2, v3, s48')
    for b in range(4):
        for i in range(4): a(f'ds_write_b32 v2, v{ACC+4*b+i} offset:{512+272*i+64*b}')
    a('v_mul_u32_u24 v4, 272, v15'); a('v_add3_u32 v4, v4, v1, s48')
    for j in range(3): a(f'ds_read_b128 v[{D0+4*j}:{D0+4*j+3}], v4 offset:{512+1088*j}')
    a('v_lshlrev_b32 v6, 8, v15'); a('v_lshrrev_b32 v3, 1, v1'); a('v_add_u32 v6, v6, v3')
    a('s_mul_i32 s44, s40, 2560'); a('s_add_u32 s44, s44, s45')
    srd_off(a,24,18,19,'s44',2560-128)
    a('s_waitcnt lgkmcnt(0)')
    for p in range(6): a(f'v_pk_mul_f32 v[{D1+2*p}:{D1+2*p+1}], v[{D0+2*p}:{D0+2*p+1}], s[52:53]')
    for i in range(12): a(f'v_exp_f32 v{D1+i}, v{D1+i}')
    for p in range(6): a(f'v_pk_add_f32 v[{D1+2*p}:{D1+2*p+1}], v[{D1+2*p}:{D1+2*p+1}], s[54:55]')
    for i in range(12): a(f'v_rcp_f32 v{D1+i}, v{D1+i}')
    for p in range(6): a(f'v_pk_mul_f32 v[{D0+2*p}:{D0+2*p+1}], v[{D0+2*p}:{D0+2*p+1}], v[{D1+2*p}:{D1+2*p+1}]')
    for p in range(6): a(f'v_cvt_pk_bf16_f32 v{EE+p}, v{D0+2*p}, v{D0+2*p+1}')
    for j in range(3): a(f'buffer_store_dwordx2 v[{EE+2*j}:{EE+2*j+1}], v6, s[24:27], 0 offen offset:{1024*j} {OPT.get("ost","")}')
    if OPT.get('dbg'):
        a('s_waitcnt vmcnt(0)'); a('s_memrealtime s[92:93]'); srd(a,24,20,21,WS_END); srd(a,28,22,23,256)
        a('s_mov_b64 exec, 1'); a('v_mov_b32 v4, 0'); a(f's_mov_b32 s94, {3*THALF}')
        a('buffer_load_dword v3, v4, s[24:27], s94 offen'); a('s_waitcnt vmcnt(0) lgkmcnt(0)')
        a('v_sub_u32 v5, s92, v3'); a('v_sub_u32 v6, s90, v3'); a('v_sub_u32 v7, 0x100000, v6')
        a('buffer_atomic_umax v5, v4, s[28:31], 0 offen'); a('buffer_atomic_umax v6, v4, s[28:31], 0 offen offset:4'); a('buffer_atomic_umax v7, v4, s[28:31], 0 offen offset:8')
    if gen1.STAMP:
        a('s_waitcnt vmcnt(0)'); stamp(a,7,True)
        a('s_lshl_b32 s79, s2, 3'); a('s_add_u32 s79, s79, s42'); stamp_out(a,8,'s79',OFF_ST,30)
    a.label('K2_END')
    a('s_endpgm')
    return a
def mk(path):
    build([('prep_kernel',k1(),CH+160,512,K1_LDS+2048),(NAME+'_kernel',k2(),256,512,K2_LDS)],path)
if __name__=='__main__':
    for arg in sys.argv[2:]:
        if arg=='stamp': gen1.STAMP=True
        else:
            k,v=arg.split('='); OPT[k]=eval(v)
    mk(sys.argv[1])
```
